```python
import torch

def _softmax(x, axis=-1):
    return torch.softmax(x, dim=axis)
def _gelu(x):
    return torch.nn.functional.gelu(x, approximate="tanh")
def _silu(x):
    return torch.nn.functional.silu(x)
def _sigmoid(x):
    return torch.sigmoid(x)
def _layernorm(x, axis=-1, eps=1e-5):
    m = x.mean(dim=axis, keepdim=True)
    v = x.var(dim=axis, keepdim=True, unbiased=False)
    return (x - m) / torch.sqrt(v + eps)
def _scatter_add(tgt, idx, src, axis=0):
    return tgt.clone().index_add_(axis, idx, src)
def _segment_sum(src, seg, n):
    out = torch.zeros((n,) + src.shape[1:], dtype=src.dtype)
    return out.index_add_(0, seg, src)
def _pad(x, pw):
    flat = tuple(v for pair in reversed(pw) for v in pair)
    return torch.nn.functional.pad(x, flat)

kernel_name = 'recurrent_scan__sliding_block_cached__geglu_ffn__decode'

def setup_inputs():

    _w = (lambda a: (lambda t: t.to(torch.bfloat16) if t.is_floating_point() else t)(torch.as_tensor(a)))
    def _A_setup():
        B, Sq, D = 2, 1, 448
        Hq, Hkv, Sk, Dh = 16, 8, 32768, 256
        assert Hq % Hkv == 0, (Hq, Hkv)
        return {
            "x": _w((lambda *s: torch.randn(*s, dtype=torch.bfloat16) * 0.05)(B, Sq, D)),
            "k_cache": _w((lambda *s: torch.randn(*s, dtype=torch.bfloat16) * 1.6)(B, Hkv, Sk, Dh)),
            "v_cache": _w((lambda *s: torch.randn(*s, dtype=torch.bfloat16) * 0.2)(B, Hkv, Sk, Dh)),
            "wq": _w((lambda *s: torch.randn(*s, dtype=torch.bfloat16) * 1.6)(D, Hq * Dh) * (D ** -0.5)),
            "wo": _w((lambda *s: torch.randn(*s, dtype=torch.bfloat16) * 0.2)(Hq * Dh, D) * ((Hq * Dh) ** -0.5)),
        }
    _A_in = _A_setup()

    def _B_setup():
        B, S, D, F = 2, 1, 448, 1792
        return {
            "x": _w((lambda *s: torch.randn(*s, dtype=torch.bfloat16) * 0.05)(B, S, D)),
            "w_gate": _w((lambda *s: torch.randn(*s, dtype=torch.bfloat16) * 0.1)(D, F)),
            "w_up": _w((lambda *s: torch.randn(*s, dtype=torch.bfloat16) * 0.1)(D, F)),
            "w_down": _w((lambda *s: torch.randn(*s, dtype=torch.bfloat16) * 0.1)(F, D)),
        }
    _B_in = _B_setup()

    return {
        "A_x": _A_in["x"],
        "A_k_cache": _A_in["k_cache"],
        "A_v_cache": _A_in["v_cache"],
        "A_wq": _A_in["wq"],
        "A_wo": _A_in["wo"],
        "B_x": _B_in["x"],
        "B_w_gate": _B_in["w_gate"],
        "B_w_up": _B_in["w_up"],
        "B_w_down": _B_in["w_down"],
    }

def reference(A_x, A_k_cache, A_v_cache, A_wq, A_wo, B_x, B_w_gate, B_w_up, B_w_down):
    def _A_ref(x, k_cache, v_cache, wq, wo):
        B, Sq, D = x.shape
        Hq, Dh = 16, 256
        Hkv, Sk = k_cache.shape[1], k_cache.shape[2]
        W = min(4096, max(256, Sk // 4))
        rep = Hq // Hkv
        q = (lambda x, *d: x.permute(*d))((x @ wq).reshape(B, Sq, Hq, Dh), 0, 2, 1, 3)
        k = (lambda x, n, axis: torch.repeat_interleave(x, n, dim=axis))(k_cache[:, :, Sk - W:, :], rep, axis=1)
        v = (lambda x, n, axis: torch.repeat_interleave(x, n, dim=axis))(v_cache[:, :, Sk - W:, :], rep, axis=1)
        scores = torch.einsum("bhqd,bhkd->bhqk", q, k) * (Dh ** -0.5)
        p = _softmax(scores, axis=-1)
        o = torch.einsum("bhqk,bhkd->bhqd", p, v)
        return (lambda x, *d: x.permute(*d))(o, 0, 2, 1, 3).reshape(B, Sq, Hq * Dh) @ wo

    def _B_ref(x, w_gate, w_up, w_down):
        return (_gelu(x @ w_gate) * (x @ w_up)) @ w_down

    x = A_x
    xn = _layernorm(x, axis=-1)
    s = _A_ref(xn, A_k_cache, A_v_cache, A_wq, A_wo)
    g = _silu(_B_ref(xn, B_w_gate, B_w_up, B_w_down))
    return x + s * g
```

```python
KN = "recurrent_scan__sliding_block_cached__geglu_ffn__decode"
HDR = """; Kernarg layout for this problem (96 bytes, ptrs only, base s[0:1]):
"""
class Asm:
    def __init__(self):
        self.l = []
        self.n = 0
    def __call__(self, s=""):
        for line in s.split("\n"):
            self.l.append(line)
    def lab(self, base="L"):
        self.n += 1
        return "%s_%d" % (base, self.n)
    def text(self):
        return "\n".join(self.l) + "\n"

def kernel_file(body, grid, block, lds, vgpr=256, sgpr=102, accum=None, name=KN + "_kernel"):
    if accum is None: accum = min(256, (vgpr + 3) // 4 * 4)
    s = HDR
    s += "; @launch grid=(%d,1,1) block=(%d,1,1) lds=%d\n" % (grid, block, lds)
    s += '.amdgcn_target "amdgcn-amd-amdhsa--gfx950"\n.text\n.globl %s\n.p2align 8\n.type %s,@function\n%s:\n' % (name, name, name)
    s += body
    s += '.section .rodata,"a"\n.p2align 6\n.amdhsa_kernel %s\n' % name
    s += "  .amdhsa_next_free_vgpr %d\n  .amdhsa_next_free_sgpr %d\n  .amdhsa_accum_offset %d\n" % (vgpr, sgpr, accum)
    s += "  .amdhsa_group_segment_fixed_size 0\n  .amdhsa_kernarg_size 96\n  .amdhsa_user_sgpr_count 2\n"
    s += "  .amdhsa_user_sgpr_kernarg_segment_ptr 1\n  .amdhsa_system_sgpr_workgroup_id_x 1\n.end_amdhsa_kernel\n"
    return s
```

```python
import re
TRANS = ("v_exp_f32", "v_log_f32", "v_rcp_f32", "v_rsq_f32", "v_sqrt_f32", "v_sin_f32", "v_cos_f32")
def regs_of(tok):
    tok = tok.strip()
    tok = re.sub(r"^-|^abs\(|\)$|^\|", "", tok).strip("|")
    m = re.fullmatch(r"([vsa])\[(\d+):(\d+)\]", tok)
    if m: return {(m.group(1), i) for i in range(int(m.group(2)), int(m.group(3)) + 1)}
    m = re.fullmatch(r"([vsa])(\d+)", tok)
    if m: return {(m.group(1), int(m.group(2)))}
    if tok in ("vcc", "vcc_lo", "vcc_hi"): return {("vcc", 0)}
    if tok in ("exec", "exec_lo", "exec_hi"): return {("exec", 0)}
    if tok == "m0": return {("m0", 0)}
    return set()
def parse(line):
    s = line.split(";")[0].strip()
    if not s or s.endswith(":") or s.startswith("."): return None
    parts = s.split(None, 1)
    op = parts[0]
    ops = []
    if len(parts) > 1:
        ops = [x.strip() for x in re.split(r",(?![^\[]*\])", parts[1])]
        if ops:
            last = ops[-1].split()
            ops[-1] = last[0] if last else ""
    return op, ops, s
def classify(op, ops, s):
    d = dict(op=op, w=set(), r=set(), kind="other")
    base = re.sub(r"_(e32|e64|dpp|sdwa)$", "", op)
    R = [regs_of(o) for o in ops]
    if op.startswith("v_mfma"):
        d["kind"] = "mfma"; d["w"] = R[0]; d["a"] = R[1]; d["b"] = R[2]; d["c"] = R[3] if len(R) > 3 else set()
        d["r"] = d["a"] | d["b"] | d["c"]
    elif op.startswith("v_cmp"):
        d["kind"] = "valu"; d["w"] = R[0]; d["r"] = set().union(*R[1:]) if len(R) > 1 else set()
    elif op.startswith("v_readfirstlane") or op.startswith("v_readlane"):
        d["kind"] = "valu"; d["rl"] = True; d["w"] = R[0]; d["r"] = set().union(*R[1:])
    elif op.startswith("v_permlane"):
        d["kind"] = "valu"; d["perm"] = True; d["w"] = R[0] | R[1]; d["r"] = R[0] | R[1]
    elif op.startswith("v_"):
        d["kind"] = "valu"; d["w"] = R[0]; d["r"] = set().union(*R[1:]) if len(R) > 1 else set()
        if base in ("v_add_co_u32", "v_addc_co_u32", "v_sub_co_u32", "v_div_scale_f32"):
            d["w"] = R[0] | R[1]; d["r"] = set().union(*R[2:])
        if base.startswith("v_cndmask") and len(ops) == 3: d["r"] |= {("vcc", 0)}
        if base in ("v_fmac_f32", "v_dot2c_f32_bf16", "v_pk_fmac_f16") or op.startswith("v_writelane"): d["r"] |= R[0]
        if "_dpp" in op or " row_" in s or "quad_perm" in s: d["dpp"] = True; d["r"] |= (R[0] if "bank_mask" in s and False else set())
        if base in TRANS: d["trans"] = True
    elif op.startswith("ds_"):
        d["kind"] = "ds"
        if op.startswith("ds_read") or op.startswith("ds_bpermute") or op.startswith("ds_permute") or "_rtn" in op or op.startswith("ds_swizzle"):
            d["w"] = R[0]; d["r"] = set().union(*R[1:]) if len(R) > 1 else set()
        else:
            d["r"] = set().union(*R)
    elif op.startswith("global_") or op.startswith("buffer_") or op.startswith("flat_"):
        d["kind"] = "vmem"
        if "load_lds" in op or " lds" in s:
            d["r"] = set().union(*R); d["lds"] = True
        elif "_load" in op:
            d["w"] = R[0]; d["r"] = set().union(*R[1:])
        elif "atomic" in op and (" sc0" in s):
            d["w"] = R[0]; d["r"] = set().union(*R[1:])
        else:
            d["r"] = set().union(*R)
            if "store" in op and ("x3" in op or "x4" in op):
                d["wide"] = R[1] if op.startswith("global") else R[0]
    elif op.startswith("s_"):
        d["kind"] = "salu"
        if op in ("s_nop", "s_waitcnt", "s_barrier", "s_endpgm", "s_sleep", "s_setprio", "s_branch") or op.startswith("s_cbranch") or op.startswith("s_cmp"):
            d["r"] = set().union(*R) if R else set()
        else:
            d["w"] = R[0] if R else set(); d["r"] = set().union(*R[1:]) if len(R) > 1 else set()
    return d
def states(d, s):
    if d["op"] == "s_nop":
        return int(s.split()[1], 0) + 1
    return 1
def need(prev, cur):
    n = 0
    pk, ck = prev["kind"], cur["kind"]
    pw = prev["w"]
    vw = {x for x in pw if x[0] in "va"}
    sw = {x for x in pw if x[0] in ("s", "vcc")}
    if pk == "valu":
        if ck == "mfma" and (vw & cur["r"]): n = max(n, 2)
        if ck == "valu" and cur.get("perm") and (vw & cur["r"]): n = max(n, 2)
        if ck == "valu" and cur.get("dpp") and (vw & cur["r"]): n = max(n, 2)
        if ck == "valu" and cur.get("rl") and (vw & cur["r"]): n = max(n, 1)
        if prev.get("trans") and ck in ("valu", "mfma") and (vw & cur["r"]): n = max(n, 1)
        if sw and ck == "valu" and (sw & cur["r"]): n = max(n, 2)
        if sw and ck == "valu" and cur.get("rl") and (sw & cur["r"]): n = max(n, 4)
        if sw and ck == "vmem" and (sw & cur["r"]): n = max(n, 5)
        if sw and ck == "salu" and (sw & cur["r"]): n = max(n, 1)
    if pk == "mfma":
        if ck == "mfma":
            if pw & (cur["a"] | cur["b"]): n = max(n, 8)
            elif pw & cur["c"]:
                if not (pw == cur["c"] and prev["op"] == cur["op"]): n = max(n, 6)
            if (pw & cur["w"]) and not (pw == cur["w"] and prev["op"] == cur["op"]): n = max(n, 6)
        elif ck in ("valu", "vmem", "ds"):
            if pw & (cur["r"] | cur["w"]): n = max(n, 8)
        if ck == "valu" and (prev["c"] & cur["w"]): n = max(n, 3)
    if pk == "vmem" and prev.get("wide") and ck == "valu" and (prev["wide"] & cur["w"]): n = max(n, 2)
    if pk == "vmem" and prev.get("wide") and ck in ("ds", "vmem") and (prev["wide"] & cur["w"]): n = max(n, 1)
    if pk == "salu" and ("m0", 0) in pw and (cur.get("lds") or "addtid" in cur["op"]): n = max(n, 1)
    if pk == "salu" and ("exec", 0) in pw and ck == "mfma": n = max(n, 4)
    return n
def fix(lines):
    out = []
    hist = []
    for line in lines:
        p = parse(line)
        if p is None:
            out.append(line); continue
        op, ops, s = p
        d = classify(op, ops, s)
        dist = 0; req = 0
        for (pd, ps) in reversed(hist):
            k = need(pd, d)
            if k > dist: req = max(req, k - dist)
            dist += ps
            if dist >= 20: break
        if req > 0:
            out.append("  s_nop %d" % (req - 1) + "   ; hz")
            hist.append((dict(op="s_nop", kind="salu", w=set(), r=set()), req))
        out.append(line)
        hist.append((d, states(d, s)))
        if len(hist) > 40: hist = hist[-40:]
    return out
```

```python
import sys, argparse
from asmlib import HDR, KN
import hz

KV = 0
AUX = 131072
WQ_T = 0; GU_T = 14336; WD_T = 0; WO_T = 8192
MISC = 159744
XN = MISC; PB = MISC
QB = MISC + 1792; OB = QB
HB = MISC + 2816
WM = MISC + 3072; WL = MISC + 3104
PROG = MISC + 3136
LAND = MISC + 3200
JUNK = MISC + 3456
LDS_BYTES = 163840
QP = 0x1000; GP = 0x21000; ST = 0x3D000; YP = 0x40000; SP = 0x60000; OP = 0x80000
STAMP = 512 << 20
TAGMASK = 0x3FF; TAGMID = 0x200

class G:
    def __init__(self, W=24, stamps=False, sleep_mid=2, sleep_tail=0):
        self.l = []; self.n = 0; self.W = W; self.stamps = stamps; self.sleep_mid = sleep_mid; self.sleep_tail = sleep_tail
        self.nst = 0; self.stat_at = 12; self.pre_sleep = 0; self.q_issue_at = 3
    def __call__(self, s):
        for x in s.split("\n"): self.l.append("  " + x.strip() if not x.strip().endswith(":") else x.strip())
    def lab(self, b="L"):
        self.n += 1; return "%s_%d" % (b, self.n)
    def c(self, s): self.l.append("  ; " + s)
    def stamp(self, k):
        if self.stamps:
            self("s_memrealtime s[%d:%d]" % (64 + 2 * k, 65 + 2 * k))

S_X, S_K, S_V, S_WQ, S_WO, S_WG, S_WU, S_WD, S_OUT, S_WS = 4, 6, 8, 10, 12, 16, 18, 20, 22, 24
S_KVH, S_I, S_B, S_J, S_WAVE, S_CW = 26, 27, 28, 29, 30, 31
S_E = 32
S_G, S_D, S_O = 34, 35, 36
S_BK, S_BV = 37, 38
S_MASK = 39
S_BUD = 40
S_T0 = 41
S_RBL, S_CB, S_F = 50, 51, 52
S_EX = 54
S_C = 56
S_HI = 57
S_LAND = 60

def sp(r): return "s[%d:%d]" % (r, r + 1)
def vr(r, n=1): return "v%d" % r if n == 1 else "v[%d:%d]" % (r, r + n - 1)

def budget_exit(g, lab):
    g("s_cmp_eq_u32 s%d, 0" % S_BUD)
    g("s_cbranch_scc1 %s" % lab)
    g("s_sub_u32 s%d, s%d, 1" % (S_BUD, S_BUD))

def loader(g):
    W = g.W
    g.c("================= loader wave =================")
    g("s_setprio 3")
    g("v_lshlrev_b32 v16, 2, v0")
    g("v_add_u32 v16, %d, v16" % LAND)
    g("v_mov_b32 v5, 0xC0000000")
    g("ds_write_b32 v16, v5")
    g("v_mov_b32 v17, %d" % PROG)
    g("v_mov_b32 v6, 0"); g("v_mov_b32 v7, 0"); g("v_mov_b32 v8, 0"); g("v_mov_b32 v9, 0")
    g("ds_write_b128 v17, v[6:9]")
    g("s_waitcnt lgkmcnt(0)")
    g("s_barrier")
    g("v_lshrrev_b32 v2, 3, v0")
    g("v_and_b32 v3, 7, v0")
    g("v_lshrrev_b32 v4, 4, v0")
    g("v_lshlrev_b32 v4, 1, v4")
    g("v_xor_b32 v3, v3, v4")
    g("v_lshlrev_b32 v3, 4, v3")
    g("v_lshl_add_u32 v5, v2, 13, v3")
    g("v_mul_u32_u24 v6, 3584, v2")
    g("v_add_u32 v6, v6, v3")
    g("v_mul_u32_u24 v7, 896, v2")
    g("v_add_u32 v7, v7, v3")
    g("s_lshr_b32 s41, s%d, 3" % S_I)
    g("s_mul_i32 s41, s41, %d" % (112 * 8192))
    g("s_lshl_b32 s42, s%d, 10" % S_KVH)
    g("s_add_u32 s41, s41, s42")
    g("s_and_b32 s42, s%d, 7" % S_I)
    g("s_lshl_b32 s42, s42, 7")
    g("s_add_u32 s41, s41, s42")
    g("s_add_u32 s44, s%d, s41" % S_WQ)
    g("s_addc_u32 s45, s%d, 0" % (S_WQ + 1))
    g("s_mov_b32 m0, %d" % (AUX + WQ_T))
    g("s_mov_b32 s46, 14")
    lp = g.lab("WQ")
    g(lp + ":")
    g("global_load_lds_dwordx4 v5, s[44:45] nt")
    g("s_add_u32 s44, s44, 65536")
    g("s_addc_u32 s45, s45, 0")
    g("s_add_u32 m0, m0, 1024")
    g("s_sub_u32 s46, s46, 1")
    g("s_cmp_lg_u32 s46, 0")
    g("s_cbranch_scc1 " + lp)
    g("v_lshrrev_b32 v8, 5, v0")
    g("v_and_b32 v9, 31, v0")
    g("v_lshlrev_b32 v10, 1, v8")
    g("v_xor_b32 v9, v9, v10")
    g("v_lshlrev_b32 v9, 4, v9")
    g("v_lshlrev_b32 v8, 9, v8")
    for u in range(4):
        g("v_xor_b32 v%d, %d, v9" % (12 + u, u * 64))
        g("v_add_u32 v%d, v%d, v8" % (12 + u, 12 + u))
    sk = g.lab("NOGU")
    g("s_cmp_eq_u32 s%d, 0" % S_G)
    g("s_cbranch_scc1 " + sk)
    g("s_and_b32 s41, s%d, 1" % S_KVH)
    g("s_cmp_eq_u32 s41, 0")
    g("s_cselect_b32 s44, s%d, s%d" % (S_WG, S_WU))
    g("s_cselect_b32 s45, s%d, s%d" % (S_WG + 1, S_WU + 1))
    g("s_lshr_b32 s41, s%d, 1" % S_KVH)
    g("s_mul_i32 s41, s41, %d" % (112 * 3584))
    g("s_lshl_b32 s42, s%d, 7" % S_I)
    g("s_add_u32 s41, s41, s42")
    g("s_add_u32 s44, s44, s41")
    g("s_addc_u32 s45, s45, 0")
    g("s_mov_b32 m0, %d" % (AUX + GU_T))
    g("s_mov_b32 s46, 14")
    lp = g.lab("GU")
    g(lp + ":")
    g("global_load_lds_dwordx4 v6, s[44:45] nt")
    g("s_add_u32 s44, s44, %d" % (8 * 3584))
    g("s_addc_u32 s45, s45, 0")
    g("s_add_u32 m0, m0, 1024")
    g("s_sub_u32 s46, s46, 1")
    g("s_cmp_lg_u32 s46, 0")
    g("s_cbranch_scc1 " + lp)
    g(sk + ":")
    g("s_lshl_b32 s41, s%d, 3" % S_B)
    g("s_add_u32 s41, s41, s%d" % S_KVH)
    g("s_lshl_b32 s41, s41, 24")
    g("s_add_u32 s41, s41, %d" % (28672 * 512))
    g("s_lshl_b32 s42, s%d, 13" % S_J)
    g("s_add_u32 s41, s41, s42")
    g("s_add_u32 s44, s%d, s41" % S_K)
    g("s_addc_u32 s45, s%d, 0" % (S_K + 1))
    g("s_add_u32 s48, s%d, s41" % S_V)
    g("s_addc_u32 s49, s%d, 0" % (S_V + 1))
    g("s_add_u32 s47, s%d, 14" % S_G)
    g("s_mov_b32 m0, %d" % KV)
    def tile(sb):
        for u in range(8):
            if u == 4:
                g("s_add_u32 s%d, s%d, 4096" % (sb, sb)); g("s_addc_u32 s%d, s%d, 0" % (sb + 1, sb + 1)); g("s_add_u32 m0, m0, 4096"); g("s_nop 0")
            g("global_load_lds_dwordx4 v%d, s[%d:%d] offset:%d nt" % (12 + (u & 3), sb, sb + 1, (u & 3) * 1024))
        g("s_add_u32 s%d, s%d, %d" % (sb, sb, 131072 - 4096)); g("s_addc_u32 s%d, s%d, 0" % (sb + 1, sb + 1)); g("s_add_u32 m0, m0, 4096")
        g("s_add_u32 s47, s47, 8")
    def flag(n):
        g("s_waitcnt vmcnt(%d)" % n)
        g("s_sub_u32 s46, s47, %d" % n)
        g("v_mov_b32 v18, s46")
        g("ds_write_b32 v16, v18")
    tile(44)
    g.c("wq landed when only (G + 8) remain outstanding")
    has = g.lab("HASGU"); j2 = g.lab("J")
    g("s_cmp_eq_u32 s%d, 0" % S_G)
    g("s_cbranch_scc0 " + has)
    flag(8)
    tile(44)
    g("s_branch " + j2)
    g(has + ":")
    flag(22)
    tile(44)
    flag(16)
    g(j2 + ":")
    lp = g.lab("KL")
    g("s_mov_b32 s43, 14")
    g(lp + ":")
    tile(44)
    flag(W)
    g("s_sub_u32 s43, s43, 1")
    g("s_cmp_lg_u32 s43, 0")
    g("s_cbranch_scc1 " + lp)
    g.stamp(1)
    def wait_prog(sthr):
        lp = g.lab("WP"); ex = g.lab("WPX")
        g("s_cmp_ge_i32 s%d, %s" % (S_LAND, sthr))
        g("s_cbranch_scc1 " + ex)
        g(lp + ":")
        g("ds_read_b128 v[20:23], v17")
        g("s_waitcnt lgkmcnt(0)")
        g("v_min3_i32 v20, v20, v21, v22")
        g("v_min_i32 v20, v20, v23")
        g("v_readfirstlane_b32 s%d, v20" % S_LAND)
        g("s_cmp_ge_i32 s%d, %s" % (S_LAND, sthr))
        g("s_cbranch_scc1 " + ex)
        budget_exit(g, ex)
        g("s_branch " + lp)
        g(ex + ":")
    sk = g.lab("NOWD")
    g("s_cmp_eq_u32 s%d, 0" % S_D)
    g("s_cbranch_scc1 " + sk)
    wait_prog("1")
    g("s_mul_i32 s41, s%d, %d" % (S_I, 64 * 896))
    g("s_lshl_b32 s42, s%d, 7" % S_KVH)
    g("s_add_u32 s41, s41, s42")
    g("s_add_u32 s58, s%d, s41" % S_WD)
    g("s_addc_u32 s59, s%d, 0" % (S_WD + 1))
    g("s_mov_b32 m0, %d" % (AUX + WD_T))
    g("s_mov_b32 s46, 8")
    lp = g.lab("WD")
    g(lp + ":")
    g("global_load_lds_dwordx4 v7, s[58:59] nt")
    g("s_add_u32 s58, s58, 7168")
    g("s_addc_u32 s59, s59, 0")
    g("s_add_u32 m0, m0, 1024")
    g("s_sub_u32 s46, s46, 1")
    g("s_cmp_lg_u32 s46, 0")
    g("s_cbranch_scc1 " + lp)
    g("s_add_u32 s47, s47, 8")
    flag(W)
    g(sk + ":")
    g("s_mov_b32 m0, %d" % KV)
    lp = g.lab("VL")
    g("s_mov_b32 s43, 0")
    g(lp + ":")
    g("s_lshr_b32 s41, s43, 2")
    g("s_add_u32 s41, s41, 2")
    wait_prog("s41")
    tile(48)
    flag(W)
    g("s_add_u32 s43, s43, 1")
    g("s_cmp_lg_u32 s43, 16")
    g("s_cbranch_scc1 " + lp)
    g.stamp(2)
    sk = g.lab("NOWO"); dn = g.lab("LDONE")
    g("s_cmp_eq_u32 s%d, 0" % S_O)
    g("s_cbranch_scc1 " + sk)
    g("s_lshl_b32 s41, s%d, 2" % S_KVH)
    g("s_add_u32 s41, s41, s%d" % S_RBL)
    g("s_mul_i32 s41, s41, %d" % (128 * 896))
    g("s_lshl_b32 s42, s%d, 7" % S_CB)
    g("s_add_u32 s41, s41, s42")
    g("s_add_u32 s58, s%d, s41" % S_WO)
    g("s_addc_u32 s59, s%d, 0" % (S_WO + 1))
    g("s_mov_b32 m0, %d" % (AUX + WO_T))
    g("s_mov_b32 s46, 16")
    lp = g.lab("WO")
    g(lp + ":")
    g("global_load_lds_dwordx4 v7, s[58:59] nt")
    g("s_add_u32 s58, s58, 7168")
    g("s_addc_u32 s59, s59, 0")
    g("s_add_u32 m0, m0, 1024")
    g("s_sub_u32 s46, s46, 1")
    g("s_cmp_lg_u32 s46, 0")
    g("s_cbranch_scc1 " + lp)
    g("s_add_u32 s47, s47, 16")
    for n in range(W - 8 + 16, 15, -8): flag(n)
    g("s_waitcnt vmcnt(0)")
    g("s_branch " + dn)
    g(sk + ":")
    for n in range(W - 8, -1, -8): flag(n)
    g(dn + ":")
    g.stamp(3)
    g("s_waitcnt lgkmcnt(0)")
    if g.stamps: write_stamps(g, 0)
    g("s_endpgm")

def write_stamps(g, vtmp):
    g("s_waitcnt lgkmcnt(0)")
    g("s_mul_i32 s41, s2, 5")
    g("s_add_u32 s41, s41, s%d" % S_WAVE)
    g("s_lshl_b32 s41, s41, 7")
    g("s_add_u32 s41, s41, %d" % STAMP)
    g("v_mov_b32 v100, s41")
    for q in range(8):
        for k in range(4): g("v_mov_b32 v%d, s%d" % (104 + k, 64 + 4 * q + k))
        g("s_mov_b64 exec, 1")
        g("global_store_dwordx4 v100, v[104:107], s[%d:%d] offset:%d" % (S_WS, S_WS + 1, 16 * q))
        g("s_mov_b64 exec, -1")
        g("s_nop 1")

V_N, V_KG = 1, 2
V_T = 12
V_MID = 16
V_PW = 17
V_PR = 18
V_LR = 19
V_TR = 20
V_F = 21
V_TMP = 24
V_Q = 64
V_S = 96
V_ACC = 112
V_K = 128
V_ST = 40
V_G = 44
V_C = 52

def wait_landed(g, sthr):
    lp = g.lab("WL"); ex = g.lab("WLX")
    g("s_cmp_ge_i32 s%d, %s" % (S_LAND, sthr))
    g("s_cbranch_scc1 " + ex)
    g(lp + ":")
    g("ds_read_b32 v%d, v%d" % (V_F, V_LR))
    g("s_waitcnt lgkmcnt(0)")
    g("v_readfirstlane_b32 s%d, v%d" % (S_LAND, V_F))
    g("s_cmp_ge_i32 s%d, %s" % (S_LAND, sthr))
    g("s_cbranch_scc1 " + ex)
    budget_exit(g, ex)
    g("s_branch " + lp)
    g(ex + ":")
def prog_set(g, val):
    g("v_mov_b32 v%d, %s" % (V_F, val))
    g("ds_write_b32 v%d, v%d" % (V_PW, V_F))
def wait_prog_c(g, val):
    lp = g.lab("WP"); ex = g.lab("WPX")
    t = V_TMP + 36
    g(lp + ":")
    g("ds_read_b128 v[%d:%d], v%d" % (t, t + 3, V_PR))
    g("s_waitcnt lgkmcnt(0)")
    g("v_min3_i32 v%d, v%d, v%d, v%d" % (t, t, t + 1, t + 2))
    g("v_min_i32 v%d, v%d, v%d" % (t, t, t + 3))
    g("v_cmp_gt_i32 vcc, %s, v%d" % (val, t))
    g("s_cbranch_vccz " + ex)
    budget_exit(g, ex)
    g("s_branch " + lp)
    g(ex + ":")
def tag4(g, r):
    for k in range(4): g("v_bfi_b32 v%d, s%d, v%d, v%d" % (r + k, S_MASK, V_T + k, r + k))
def strip(g, r, n):
    for k in range(n): g("v_bfi_b32 v%d, s%d, v%d, v%d" % (r + k, S_MASK, V_MID, r + k))
def poll(g, emit_loads, regs, sleep, acc, masked_last=None, diag=False, pre=False):
    lp = g.lab("PL"); ex = g.lab("PX"); ck = g.lab("PC")
    if diag and g.stamps: g("s_mov_b32 s63, 0")
    if pre: g("s_branch " + ck)
    g(lp + ":")
    emit_loads()
    g(ck + ":")
    g("s_waitcnt vmcnt(0)")
    if diag and g.stamps:
        sk = g.lab("DG")
        g("s_cmp_lg_u32 s63, 0"); g("s_cbranch_scc1 " + sk); g.stamp(14); g(sk + ":"); g("s_add_u32 s63, s63, 1")
    first = True
    for idx, r in enumerate(regs):
        if masked_last and idx == len(regs) - 1: g("s_mov_b32 exec_hi, 0")
        for k in range(4):
            if first:
                g("v_xor_b32 v%d, v%d, v%d" % (acc, r + k, V_T + k)); first = False
            else:
                g("v_bitop3_b32 v%d, v%d, v%d, v%d bitop3:0xBE" % (acc, r + k, V_T + k, acc))
    if masked_last: g("s_mov_b64 exec, -1")
    g("v_and_b32 v%d, s%d, v%d" % (acc, S_MASK, acc))
    g("v_cmp_ne_u32 vcc, 0, v%d" % acc)
    g("s_cbranch_vccz " + ex)
    budget_exit(g, ex)
    if sleep: g("s_sleep %d" % sleep)
    g("s_branch " + lp)
    g(ex + ":")
    if diag and g.stamps:
        g("s_waitcnt lgkmcnt(0)")
        g("s_mul_i32 s94, s63, 100"); g("s_add_u32 s94, s94, s64"); g("s_addc_u32 s95, s65, 0")
def T4(g, r):
    g("v_permlane16_swap_b32 v%d, v%d" % (r, r + 1))
    g("v_permlane16_swap_b32 v%d, v%d" % (r + 2, r + 3))
    g("v_add_f32 v%d, v%d, v%d" % (r, r, r + 1))
    g("v_add_f32 v%d, v%d, v%d" % (r + 2, r + 2, r + 3))
    g("v_permlane32_swap_b32 v%d, v%d" % (r, r + 2))
    g("v_add_f32 v%d, v%d, v%d" % (r, r, r + 2))
def rnd_bf16(g, dst, src, tmp=None):
    g("v_cvt_pk_bf16_f32 v%d, v%d, v%d" % (dst, src, src))
    g("v_and_b32 v%d, s%d, v%d" % (dst, S_HI, dst))
def allreduce16(g, op, regs, tmp):
    for sh in (8, 4, 2, 1):
        for r in regs: g("%s_dpp v%d, v%d, v%d row_ror:%d row_mask:0xf bank_mask:0xf" % (op, r, r, r, sh))
def xrow(g, op, regs, tmp, which=(16, 32)):
    for w in which:
        for i, r in enumerate(regs): g("v_mov_b32 v%d, v%d" % (tmp + i, r))
        for i, r in enumerate(regs): g("v_permlane%d_swap_b32 v%d, v%d" % (w, r, tmp + i))
        for i, r in enumerate(regs): g("%s v%d, v%d, v%d" % (op, r, r, tmp + i))

def thin_tile16(g, nsteps, tr_off, vb, b_off, acc, tmp):
    for s in range(nsteps):
        g("ds_read_b64_tr_b16 v[%d:%d], v%d offset:%d" % (tmp + 4 * s, tmp + 4 * s + 1, V_TR, tr_off + s * 2048))
        g("ds_read_b64 v[%d:%d], v%d offset:%d" % (tmp + 4 * s + 2, tmp + 4 * s + 3, vb, b_off + s * 32))
    for s in range(nsteps):
        g("s_waitcnt lgkmcnt(%d)" % (2 * (nsteps - 1 - s)))
        g("v_mfma_f32_16x16x16_bf16 v[%d:%d], v[%d:%d], v[%d:%d], %s" % (acc, acc + 3, tmp + 4 * s, tmp + 4 * s + 1, tmp + 4 * s + 2, tmp + 4 * s + 3, "0" if s == 0 else "v[%d:%d]" % (acc, acc + 3)))
def store_n2(g, vaddr, r, off=0):
    g("s_mov_b64 exec, s[%d:%d]" % (S_EX, S_EX + 1))
    g("global_store_dwordx4 v%d, v[%d:%d], s[%d:%d] offset:%d sc1" % (vaddr, r, r + 3, S_WS, S_WS + 1, off))
    g("s_mov_b64 exec, -1")

def compute(g):
    T = V_TMP
    g.c("================= compute waves =================")
    g("s_sub_u32 s%d, s%d, 1" % (S_CW, S_WAVE))
    g("v_min_u32 v3, 55, v0")
    g("v_lshlrev_b32 v3, 4, v3")
    g("global_load_dwordx4 v[%d:%d], v3, s[%d:%d]" % (T, T + 3, S_X, S_X + 1))
    g("global_load_dwordx4 v[%d:%d], v3, s[%d:%d] offset:896" % (T + 4, T + 7, S_X, S_X + 1))
    g("v_and_b32 v%d, 15, v0" % V_N)
    g("v_lshrrev_b32 v%d, 4, v0" % V_KG)
    g("s_barrier")
    g("s_load_dwordx2 s[%d:%d], s[%d:%d], 0" % (S_E, S_E + 1, S_WS, S_WS + 1))
    g("s_mov_b32 s%d, %d" % (S_MASK, TAGMASK))
    g("s_mov_b32 s%d, 0xffff0000" % S_HI)
    g("s_mov_b32 s%d, 0x00030003" % S_EX); g("s_mov_b32 s%d, 0x00030003" % (S_EX + 1))
    g("v_mov_b32 v22, 0"); g("v_mov_b32 v23, 0")
    g("v_mov_b32 v%d, %d" % (V_MID, TAGMID))
    g("v_mov_b32 v%d, %d" % (V_PR, PROG))
    g("v_mov_b32 v%d, %d" % (V_LR, LAND))
    g("v_lshlrev_b32 v4, 2, v0")
    g("v_add_u32 v4, %d, v4" % JUNK)
    g("s_lshl_b32 s41, s%d, 2" % S_CW)
    g("s_add_u32 s41, s41, %d" % PROG)
    g("v_mov_b32 v5, s41")
    g("v_cmp_eq_u32 vcc, 0, v0")
    g("v_cndmask_b32 v%d, v4, v5, vcc" % V_PW)
    g("v_lshrrev_b32 v4, 2, v%d" % V_N)
    g("v_lshl_add_u32 v4, v%d, 2, v4" % V_KG)
    g("v_lshrrev_b32 v5, 1, v4")
    g("v_and_b32 v5, 3, v5")
    g("v_xor_b32 v5, s%d, v5" % S_CW)
    g("v_lshlrev_b32 v5, 5, v5")
    g("v_lshl_add_u32 v5, v4, 7, v5")
    g("v_and_b32 v6, 3, v%d" % V_N)
    g("v_lshl_add_u32 v5, v6, 3, v5")
    g("v_add_u32 v%d, %d, v5" % (V_TR, AUX))
    g.stamp(1)
    g.c("layernorm")
    F = T + 8
    g("v_cmp_gt_u32 vcc, 56, v0")
    g("s_waitcnt vmcnt(0)")
    for k in range(8): g("v_cndmask_b32 v%d, 0, v%d, vcc" % (T + k, T + k))
    for b in range(2):
        for k in range(4):
            g("v_lshlrev_b32 v%d, 16, v%d" % (F + 8 * b + 2 * k, T + 4 * b + k))
            g("v_and_b32 v%d, s%d, v%d" % (F + 8 * b + 2 * k + 1, S_HI, T + 4 * b + k))
    SUM = T + 24
    for b in range(2):
        f = F + 8 * b
        g("v_add_f32 v%d, v%d, v%d" % (SUM + b, f, f + 1))
        for k in range(2, 8): g("v_add_f32 v%d, v%d, v%d" % (SUM + b, SUM + b, f + k))
    allreduce16(g, "v_add_f32", [SUM, SUM + 1], 0)
    xrow(g, "v_add_f32", [SUM, SUM + 1], SUM + 2)
    g("v_mov_b32 v4, 0x3b124925")
    for b in range(2): g("v_mul_f32 v%d, v%d, v4" % (SUM + b, SUM + b))
    VAR = T + 28
    D = T + 30
    for b in range(2):
        f = F + 8 * b
        for k in range(8):
            g("v_sub_f32 v5, v%d, v%d" % (f + k, SUM + b))
            if k == 0: g("v_mul_f32 v%d, v5, v5" % (VAR + b))
            else: g("v_fma_f32 v%d, v5, v5, v%d" % (VAR + b, VAR + b))
    for b in range(2): g("v_cndmask_b32 v%d, 0, v%d, vcc" % (VAR + b, VAR + b))
    allreduce16(g, "v_add_f32", [VAR, VAR + 1], 0)
    xrow(g, "v_add_f32", [VAR, VAR + 1], VAR + 2)
    for b in range(2):
        g("v_mul_f32 v%d, v%d, v4" % (VAR + b, VAR + b))
        rnd_bf16(g, VAR + b, VAR + b)
        g("v_add_f32 v%d, 0x3727c5ac, v%d" % (VAR + b, VAR + b))
        rnd_bf16(g, VAR + b, VAR + b)
        g("v_sqrt_f32 v%d, v%d" % (VAR + b, VAR + b))
        rnd_bf16(g, VAR + b, VAR + b)
        g("v_rcp_f32 v%d, v%d" % (VAR + b, VAR + b))
        rnd_bf16(g, SUM + b, SUM + b)
    for b in range(2):
        f = F + 8 * b
        for k in range(0, 8, 2):
            g("v_sub_f32 v%d, v%d, v%d" % (f + k, f + k, SUM + b))
            g("v_sub_f32 v%d, v%d, v%d" % (f + k + 1, f + k + 1, SUM + b))
            g("v_cvt_pk_bf16_f32 v5, v%d, v%d" % (f + k, f + k + 1))
            g("v_lshlrev_b32 v%d, 16, v5" % (f + k))
            g("v_and_b32 v%d, s%d, v5" % (f + k + 1, S_HI))
            g("v_mul_f32 v%d, v%d, v%d" % (f + k, f + k, VAR + b))
            g("v_mul_f32 v%d, v%d, v%d" % (f + k + 1, f + k + 1, VAR + b))
            g("v_cvt_pk_bf16_f32 v%d, v%d, v%d" % (T + 4 * b + k // 2, f + k, f + k + 1))
    g("v_lshlrev_b32 v4, 4, v0")
    g("v_add_u32 v4, %d, v4" % XN)
    g("s_mov_b32 exec_hi, 0x00ffffff")
    g("ds_write_b128 v4, v[%d:%d]" % (T, T + 3))
    g("ds_write_b128 v4, v[%d:%d] offset:896" % (T + 4, T + 7))
    g("s_mov_b64 exec, -1")
    g("s_waitcnt lgkmcnt(0)")
    g("s_add_u32 s%d, s%d, 1" % (S_E, S_E))
    g("s_and_b32 s41, s%d, s%d" % (S_E, S_MASK)); g("v_mov_b32 v%d, s41" % V_T)
    g("s_lshr_b32 s41, s%d, 10" % S_E); g("s_and_b32 s41, s41, s%d" % S_MASK); g("v_mov_b32 v%d, s41" % (V_T + 1))
    g("s_lshr_b32 s41, s%d, 20" % S_E); g("s_and_b32 s41, s41, s%d" % S_MASK); g("v_mov_b32 v%d, s41" % (V_T + 2))
    g("s_lshr_b32 s41, s%d, 30" % S_E); g("s_lshl_b32 s42, s%d, 2" % (S_E + 1)); g("s_or_b32 s41, s41, s42"); g("s_and_b32 s41, s41, s%d" % S_MASK); g("v_mov_b32 v%d, s41" % (V_T + 3))
    g.stamp(2)
    g.c("q partial")
    g("v_and_b32 v4, 1, v%d" % V_N)
    g("v_mul_u32_u24 v4, 896, v4")
    g("v_lshl_add_u32 v4, v%d, 3, v4" % V_KG)
    g("v_add_u32 v3, %d, v4" % XN)
    g("s_lshr_b32 s41, s%d, 3" % S_I)
    g("s_mul_i32 s41, s41, 224")
    g("v_add_u32 v4, s41, v3")
    g("v_lshlrev_b32 v5, 8, v%d" % V_N)
    g("v_lshl_add_u32 v5, v%d, 4, v5" % V_KG)
    g("s_lshl_b32 s41, s%d, 6" % S_CW)
    g("v_add_u32 v5, s41, v5")
    wait_landed(g, "14")
    thin_tile16(g, 7, WQ_T, 4, 0, T + 32, T)
    g("s_lshl_b32 s41, s%d, 14" % S_KVH)
    g("s_lshl_b32 s42, s%d, 9" % S_I)
    g("s_add_u32 s41, s41, s42")
    g("s_add_u32 s41, s41, %d" % QP)
    g("v_add_u32 v6, s41, v5")
    tag4(g, T + 32)
    store_n2(g, 6, T + 32)
    g.stamp(3)
    g.c("gate/up partial")
    sk = g.lab("NOGU")
    g("s_cmp_eq_u32 s%d, 0" % S_G)
    g("s_cbranch_scc1 " + sk)
    g("s_lshr_b32 s41, s%d, 1" % S_KVH)
    g("s_mul_i32 s41, s41, 224")
    g("v_add_u32 v4, s41, v3")
    wait_landed(g, "28")
    thin_tile16(g, 7, GU_T, 4, 0, T + 32, T)
    g("s_lshl_b32 s41, s%d, 12" % S_I)
    g("s_lshl_b32 s42, s%d, 9" % S_KVH)
    g("s_add_u32 s41, s41, s42")
    g("s_add_u32 s41, s41, %d" % GP)
    g("v_add_u32 v6, s41, v5")
    tag4(g, T + 32)
    store_n2(g, 6, T + 32)
    g(sk + ":")
    prog_set(g, "1")
    g.c("K tiles to registers")
    g("v_and_b32 v8, 7, v%d" % V_N)
    g("v_lshlrev_b32 v8, 1, v8")
    g("s_lshl_b32 s41, s%d, 13" % S_CW)
    g("v_lshlrev_b32 v9, 9, v%d" % V_N)
    g("v_add_u32 v9, s41, v9")
    for s3 in range(4):
        g("v_add_u32 v%d, %d, v%d" % (4 + s3, 4 * s3, V_KG))
        g("v_xor_b32 v%d, v%d, v8" % (4 + s3, 4 + s3))
        g("v_lshl_add_u32 v%d, v%d, 4, v9" % (4 + s3, 4 + s3))
    g("s_lshl_b32 s41, s%d, 14" % S_KVH)
    g("s_lshl_b32 s42, s%d, 10" % S_CW)
    g("s_add_u32 s41, s41, s42")
    g("s_lshl_b32 s42, s%d, 8" % S_B)
    g("s_add_u32 s41, s41, s42")
    g("s_add_u32 s41, s41, %d" % QP)
    g("v_lshlrev_b32 v10, 12, v%d" % V_KG)
    g("v_lshl_add_u32 v10, v%d, 4, v10" % V_N)
    g("v_add_u32 v10, s41, v10")
    g("s_min_u32 s41, s%d, 27" % S_I)
    g("s_lshl_b32 s41, s41, 12")
    g("s_and_b32 s42, s%d, 1" % S_CW)
    g("s_lshl_b32 s42, s42, 8")
    g("s_add_u32 s41, s41, s42"); g("s_add_u32 s41, s41, %d" % GP)
    g("v_lshlrev_b32 v11, 10, v%d" % V_KG)
    g("v_lshl_add_u32 v11, v%d, 4, v11" % V_N)
    g("v_add_u32 v11, s41, v11")
    def ldq():
        g("global_load_dwordx4 v[%d:%d], v10, s[%d:%d] sc1" % (T, T + 3, S_WS, S_WS + 1))
        g("global_load_dwordx4 v[%d:%d], v10, s[%d:%d] offset:512 sc1" % (T + 4, T + 7, S_WS, S_WS + 1))
    def ldg():
        g("global_load_dwordx4 v[%d:%d], v11, s[%d:%d] sc1" % (V_G, V_G + 3, S_WS, S_WS + 1))
        g("global_load_dwordx4 v[%d:%d], v11, s[%d:%d] offset:512 sc1" % (V_G + 4, V_G + 7, S_WS, S_WS + 1))
    for r in range(4):
        if r == g.q_issue_at:
            ldq()
            sk = g.lab("NOGL")
            g("s_cmp_eq_u32 s%d, 0" % S_D); g("s_cbranch_scc1 " + sk)
            g("s_cmp_ge_u32 s%d, 2" % S_CW); g("s_cbranch_scc1 " + sk)
            ldg()
            g(sk + ":")
        g("s_lshl_b32 s41, s%d, 3" % S_CW)
        g("s_add_u32 s41, s41, s%d" % S_BK)
        g("s_add_u32 s41, s41, %d" % (8 + 32 * r))
        wait_landed(g, "s41")
        for s in range(8):
            g("ds_read_b128 v[%d:%d], v%d offset:%d" % (V_K + 32 * r + 4 * s, V_K + 32 * r + 4 * s + 3, 4 + (s & 3), (s >> 2) * 256 + (r & 1) * 32768))
        if r == 1:
            for s3 in range(4): g("v_add_u32 v%d, 0x10000, v%d" % (4 + s3, 4 + s3))
        g("s_waitcnt lgkmcnt(0)")
        prog_set(g, str(2 + r))
    g.stamp(4)
    g.c("gather q")
    poll(g, ldq, [T, T + 4], g.sleep_mid, T + 8, pre=True)
    strip(g, T, 8)
    T4(g, T); T4(g, T + 4)
    g("v_cvt_pk_bf16_f32 v%d, v%d, v%d" % (T, T, T + 4))
    g("s_lshr_b32 s41, s%d, 1" % S_CW); g("s_lshl_b32 s41, s41, 9")
    g("s_and_b32 s42, s%d, 1" % S_CW); g("s_lshl_b32 s42, s42, 8")
    g("s_add_u32 s41, s41, s42"); g("s_add_u32 s41, s41, %d" % QB)
    g("v_lshlrev_b32 v4, 3, v%d" % V_N)
    g("v_lshl_add_u32 v4, v%d, 1, v4" % V_KG)
    g("v_add_u32 v4, s41, v4")
    g("ds_write_b16 v4, v%d" % T)
    g("ds_write_b16_d16_hi v4, v%d offset:128" % T)
    prog_set(g, "6")
    wait_prog_c(g, "6")
    g("v_and_b32 v4, 1, v%d" % V_N)
    g("v_lshlrev_b32 v4, 9, v4")
    g("v_lshl_add_u32 v4, v%d, 4, v4" % V_KG)
    g("v_add_u32 v4, %d, v4" % QB)
    for s in range(8): g("ds_read_b128 v[%d:%d], v4 offset:%d" % (V_Q + 4 * s, V_Q + 4 * s + 3, s * 64))
    g.c("QK")
    for s in range(8):
        g("s_waitcnt lgkmcnt(%d)" % (7 - s))
        for r in range(4):
            g("v_mfma_f32_16x16x32_bf16 v[%d:%d], v[%d:%d], v[%d:%d], %s" % (V_S + 4 * r, V_S + 4 * r + 3, V_K + 32 * r + 4 * s, V_K + 32 * r + 4 * s + 3, V_Q + 4 * s, V_Q + 4 * s + 3, "0" if s == 0 else "v[%d:%d]" % (V_S + 4 * r, V_S + 4 * r + 3)))
    g.stamp(5)
    g.c("softmax")
    for k in range(0, 16, 2):
        g("v_cvt_pk_bf16_f32 v4, v%d, v%d" % (V_S + k, V_S + k + 1))
        g("v_lshlrev_b32 v%d, 16, v4" % (V_S + k))
        g("v_and_b32 v%d, s%d, v4" % (V_S + k + 1, S_HI))
    g("v_max3_f32 v4, v%d, v%d, v%d" % (V_S, V_S + 1, V_S + 2))
    for k in range(3, 15, 2): g("v_max3_f32 v4, v4, v%d, v%d" % (V_S + k, V_S + k + 1))
    g("v_max_f32 v4, v4, v%d" % (V_S + 15))
    xrow(g, "v_max_f32", [4], 5)
    g("v_and_b32 v6, 1, v%d" % V_N)
    g("v_lshlrev_b32 v6, 4, v6")
    g("v_add_u32 v6, %d, v6" % WM)
    g("s_lshl_b32 s41, s%d, 2" % S_CW)
    g("v_add_u32 v7, s41, v6")
    g("ds_write_b32 v7, v4")
    prog_set(g, "7")
    wait_prog_c(g, "7")
    g("ds_read_b128 v[%d:%d], v6" % (T, T + 3))
    g("s_waitcnt lgkmcnt(0)")
    g("v_max3_f32 v4, v%d, v%d, v%d" % (T, T + 1, T + 2))
    g("v_max_f32 v4, v4, v%d" % (T + 3))
    g("s_mov_b32 s%d, 0x3db8aa3b" % S_C)
    g("v_mul_f32 v5, s%d, v4" % S_C)
    for k in range(16):
        g("v_fma_f32 v%d, v%d, s%d, -v5" % (V_S + k, V_S + k, S_C))
    for k in range(16): g("v_exp_f32 v%d, v%d" % (V_S + k, V_S + k))
    g("v_add_f32 v8, v%d, v%d" % (V_S, V_S + 1))
    for k in range(2, 16): g("v_add_f32 v8, v8, v%d" % (V_S + k))
    xrow(g, "v_add_f32", [8], 9)
    g("ds_write_b32 v7, v8 offset:%d" % (WL - WM))
    g("v_and_b32 v9, 1, v%d" % V_N)
    g("v_lshlrev_b32 v9, 5, v9")
    g("v_lshl_add_u32 v9, v%d, 3, v9" % V_KG)
    g("v_add_u32 v9, %d, v9" % PB)
    g("s_lshl_b32 s41, s%d, 6" % S_CW)
    g("v_add_u32 v10, s41, v9")
    for r in range(4):
        g("v_cvt_pk_bf16_f32 v%d, v%d, v%d" % (T + 2 * r, V_S + 4 * r, V_S + 4 * r + 1))
        g("v_cvt_pk_bf16_f32 v%d, v%d, v%d" % (T + 2 * r + 1, V_S + 4 * r + 2, V_S + 4 * r + 3))
        g("ds_write_b64 v10, v[%d:%d] offset:%d" % (T + 2 * r, T + 2 * r + 1, r * 256))
    g("v_mov_b32 v3, v9")
    prog_set(g, "8")
    wait_prog_c(g, "8")
    sk = g.lab("NOST")
    g("s_cmp_lg_u32 s%d, 0" % S_CW)
    g("s_cbranch_scc1 " + sk)
    g("ds_read_b128 v[%d:%d], v6 offset:%d" % (T, T + 3, WL - WM))
    g("s_waitcnt lgkmcnt(0)")
    g("v_add_f32 v%d, v%d, v%d" % (T, T, T + 1))
    g("v_add_f32 v%d, v%d, v%d" % (T + 2, T + 2, T + 3))
    g("v_add_f32 v%d, v%d, v%d" % (T + 1, T, T + 2))
    g("v_mov_b32 v%d, v4" % T)
    g("v_mov_b32 v%d, v4" % (T + 2))
    g("v_mov_b32 v%d, v%d" % (T + 3, T + 1))
    tag4(g, T)
    g("s_lshl_b32 s41, s%d, 1" % S_KVH); g("s_add_u32 s41, s41, s%d" % S_B); g("s_lshl_b32 s41, s41, 4"); g("s_add_u32 s41, s41, s%d" % S_J)
    g("s_lshl_b32 s41, s41, 5"); g("s_add_u32 s41, s41, %d" % ST)
    g("v_lshlrev_b32 v5, 4, v0")
    g("v_add_u32 v5, s41, v5")
    g("s_mov_b64 exec, 3")
    g("global_store_dwordx4 v5, v[%d:%d], s[%d:%d] sc1" % (T, T + 3, S_WS, S_WS + 1))
    g("s_mov_b64 exec, -1")
    g(sk + ":")
    g.stamp(6)
    g.c("ffn down partial")
    sk = g.lab("NOFFN")
    g("s_cmp_eq_u32 s%d, 0" % S_D)
    g("s_cbranch_scc1 " + sk)
    sk2 = g.lab("NOH")
    g("s_cmp_ge_u32 s%d, 2" % S_CW)
    g("s_cbranch_scc1 " + sk2)
    poll(g, ldg, [V_G, V_G + 4], g.sleep_mid, T + 8, pre=True)
    strip(g, V_G, 8)
    T4(g, V_G); T4(g, V_G + 4)
    rnd_bf16(g, T, V_G); rnd_bf16(g, T + 4, V_G + 4)
    g("v_mul_f32 v5, v%d, v%d" % (T, T))
    g("v_mov_b32 v6, 0x3d372713")
    g("v_fma_f32 v5, v5, v6, 1.0")
    g("v_mul_f32 v5, v5, v%d" % T)
    g("v_mul_f32 v5, 0xc0135761, v5")
    g("v_exp_f32 v5, v5")
    g("v_add_f32 v5, 1.0, v5")
    g("v_rcp_f32 v5, v5")
    g("v_mul_f32 v5, v5, v%d" % T)
    rnd_bf16(g, 5, 5)
    g("v_mul_f32 v5, v5, v%d" % (T + 4))
    g("v_cvt_pk_bf16_f32 v5, v5, v5")
    g("s_lshl_b32 s41, s%d, 7" % S_CW); g("s_add_u32 s41, s41, %d" % HB)
    g("v_lshlrev_b32 v4, 3, v%d" % V_N)
    g("v_lshl_add_u32 v4, v%d, 1, v4" % V_KG)
    g("v_add_u32 v4, s41, v4")
    g("ds_write_b16 v4, v5")
    g(sk2 + ":")
    prog_set(g, "9")
    wait_prog_c(g, "9")
    g("s_add_u32 s41, s%d, 136" % S_BK)
    wait_landed(g, "s41")
    g("v_and_b32 v4, 1, v%d" % V_N)
    g("v_lshlrev_b32 v4, 7, v4")
    g("v_lshl_add_u32 v4, v%d, 3, v4" % V_KG)
    g("v_add_u32 v4, %d, v4" % HB)
    thin_tile16(g, 4, WD_T, 4, 0, T + 32, T)
    def part_addr(base, s_cb, s_row):
        g("s_lshl_b32 s41, s%d, 14" % s_cb)
        g("s_lshr_b32 s42, s%d, 1" % S_CW); g("s_lshl_b32 s42, s42, 12"); g("s_add_u32 s41, s41, s42")
        g("s_lshl_b32 s42, %s, 7" % s_row); g("s_add_u32 s41, s41, s42")
        g("s_and_b32 s42, s%d, 1" % S_CW); g("s_lshl_b32 s42, s42, 6"); g("s_add_u32 s41, s41, s42")
        g("s_add_u32 s41, s41, %d" % base)
        g("v_lshlrev_b32 v6, 13, v%d" % V_N)
        g("v_lshl_add_u32 v6, v%d, 4, v6" % V_KG)
        g("v_add_u32 v6, s41, v6")
    part_addr(YP, S_KVH, "s%d" % S_I)
    tag4(g, T + 32)
    store_n2(g, 6, T + 32)
    g(sk + ":")
    g.stamp(7)
    g.c("PV")
    g("v_lshrrev_b32 v8, 2, v%d" % V_N)
    g("v_lshl_add_u32 v8, v%d, 2, v8" % V_KG)
    g("v_and_b32 v9, 7, v8")
    g("v_lshlrev_b32 v8, 9, v8")
    g("v_and_b32 v%d, 3, v%d" % (T + 20, V_N))
    g("v_lshl_add_u32 v8, v%d, 3, v8" % (T + 20))
    g("s_lshl_b32 s41, s%d, 2" % S_CW)
    for mt in range(4):
        g("s_add_u32 s42, s41, %d" % mt)
        g("v_xor_b32 v%d, s42, v9" % (4 + mt))
        g("v_lshl_add_u32 v%d, v%d, 5, v8" % (4 + mt, 4 + mt))
    for k in range(16): g("v_mov_b32 v%d, 0" % (V_ACC + k))
    g("s_add_u32 s61, s%d, 8" % S_BV)
    def pv_loop(n):
        g("s_mov_b32 s62, %d" % n)
        lp = g.lab("PV")
        g(lp + ":")
        wait_landed(g, "s61")
        g("ds_read_b64 v[%d:%d], v3" % (T, T + 1))
        for mt in range(4): g("ds_read_b64_tr_b16 v[%d:%d], v%d" % (T + 2 + 2 * mt, T + 3 + 2 * mt, 4 + mt))
        for mt in range(4): g("v_add_u32 v%d, 8192, v%d" % (4 + mt, 4 + mt))
        g("v_add_u32 v3, 64, v3")
        g("s_add_u32 s61, s61, 8")
        g("s_sub_u32 s62, s62, 1")
        for mt in range(4):
            g("s_waitcnt lgkmcnt(%d)" % (3 - mt))
            g("v_mfma_f32_16x16x16_bf16 v[%d:%d], v[%d:%d], v[%d:%d], v[%d:%d]" % (V_ACC + 4 * mt, V_ACC + 4 * mt + 3, T + 2 + 2 * mt, T + 3 + 2 * mt, T, T + 1, V_ACC + 4 * mt, V_ACC + 4 * mt + 3))
        g("s_cmp_lg_u32 s62, 0")
        g("s_cbranch_scc1 " + lp)
    pv_loop(g.stat_at)
    fin = g.lab("PFIN"); jn = g.lab("PJN")
    g("s_cmp_eq_u32 s%d, 0" % S_O)
    g("s_cbranch_scc1 " + fin)
    g("s_lshl_b32 s41, s%d, 10" % S_KVH)
    g("s_lshr_b32 s42, s%d, 1" % S_RBL); g("s_lshl_b32 s42, s42, 4"); g("s_add_u32 s41, s41, s42")
    g("s_add_u32 s41, s41, %d" % ST)
    g("v_and_b32 v22, 31, v0")
    g("v_lshlrev_b32 v22, 5, v22")
    g("v_add_u32 v22, s41, v22")
    g("global_load_dwordx4 v[%d:%d], v22, s[%d:%d] sc1" % (V_ST, V_ST + 3, S_WS, S_WS + 1))
    g(fin + ":")
    g.stamp(8)
    pv_loop(16 - g.stat_at)
    g.stamp(9)
    g.c("publish o")
    g("s_lshl_b32 s41, s%d, 1" % S_KVH); g("s_add_u32 s41, s41, s%d" % S_B); g("s_lshl_b32 s41, s41, 4"); g("s_add_u32 s41, s41, s%d" % S_J)
    g("s_lshl_b32 s41, s41, 11")
    g("s_lshl_b32 s42, s%d, 8" % S_CW); g("s_add_u32 s41, s41, s42"); g("s_add_u32 s41, s41, %d" % OP)
    g("v_lshlrev_b32 v4, 10, v%d" % V_N)
    g("v_lshl_add_u32 v4, v%d, 4, v4" % V_KG)
    g("v_add_u32 v4, s41, v4")
    for mt in range(4): tag4(g, V_ACC + 4 * mt)
    g("s_mov_b64 exec, s[%d:%d]" % (S_EX, S_EX + 1))
    for mt in range(4):
        g("global_store_dwordx4 v4, v[%d:%d], s[%d:%d] offset:%d sc1" % (V_ACC + 4 * mt, V_ACC + 4 * mt + 3, S_WS, S_WS + 1, mt * 64))
    g("s_mov_b64 exec, -1")
    g.stamp(10)
    fin = g.lab("FIN2"); end = g.lab("CEND")
    g("s_cmp_eq_u32 s%d, 0" % S_O)
    g("s_cbranch_scc1 " + fin)
    g.c("gather o")
    g("s_lshl_b32 s41, s%d, 1" % S_KVH); g("s_lshr_b32 s42, s%d, 1" % S_CW); g("s_add_u32 s41, s41, s42"); g("s_lshl_b32 s41, s41, 15")
    g("s_lshl_b32 s42, s%d, 9" % S_RBL); g("s_add_u32 s41, s41, s42")
    g("s_and_b32 s42, s%d, 1" % S_CW); g("s_lshl_b32 s42, s42, 8"); g("s_add_u32 s41, s41, s42")
    g("s_add_u32 s41, s41, %d" % OP)
    g("v_lshlrev_b32 v4, 11, v%d" % V_KG)
    g("v_lshl_add_u32 v4, v%d, 4, v4" % V_N)
    g("v_add_u32 v4, s41, v4")
    for u in range(1, 4): g("v_add_u32 v%d, %d, v4" % (4 + u, 8192 * u))
    g("v_lshrrev_b32 v8, 3, v%d" % V_N); g("v_lshlrev_b32 v8, 5, v8")
    g("v_and_b32 v9, 3, v%d" % V_N); g("v_lshl_add_u32 v8, v9, 3, v8")
    g("v_bfe_u32 v9, v%d, 2, 1" % V_N); g("v_lshl_add_u32 v8, v9, 2, v8")
    g("v_add_u32 v8, v8, v%d" % V_KG); g("v_lshlrev_b32 v8, 1, v8")
    g("s_lshr_b32 s41, s%d, 1" % S_CW); g("s_lshl_b32 s41, s41, 8")
    g("s_and_b32 s42, s%d, 1" % S_CW); g("s_lshl_b32 s42, s42, 7"); g("s_add_u32 s41, s41, s42"); g("s_add_u32 s41, s41, %d" % OB)
    g("v_add_u32 v8, s41, v8")
    g("v_and_b32 v9, 1, v%d" % V_N); g("v_lshlrev_b32 v9, 8, v9"); g("v_lshl_add_u32 v9, v%d, 4, v9" % V_KG); g("v_add_u32 v9, %d, v9" % OB)
    g("v_mov_b32 v56, v22")
    g("s_lshl_b32 s45, s%d, 2" % S_KVH); g("s_add_u32 s45, s45, s%d" % S_RBL)
    def part_addr2():
        g("s_lshl_b32 s41, s%d, 14" % S_CB)
        g("s_lshr_b32 s42, s%d, 1" % S_CW); g("s_lshl_b32 s42, s42, 12"); g("s_add_u32 s41, s41, s42")
        g("s_lshl_b32 s42, s45, 7"); g("s_add_u32 s41, s41, s42")
        g("s_and_b32 s42, s%d, 1" % S_CW); g("s_lshl_b32 s42, s42, 6"); g("s_add_u32 s41, s41, s42")
        g("s_add_u32 s41, s41, %d" % SP)
        g("v_lshlrev_b32 v22, 13, v%d" % V_N)
        g("v_lshl_add_u32 v22, v%d, 4, v22" % V_KG)
        g("v_add_u32 v22, s41, v22")
    part_addr2()
    def ldo():
        for u in range(4): g("global_load_dwordx4 v[%d:%d], v%d, s[%d:%d] sc1" % (T + 4 * u, T + 4 * u + 3, 4 + u, S_WS, S_WS + 1))
    g.c("stats")
    def ld1(): g("global_load_dwordx4 v[%d:%d], v56, s[%d:%d] sc1" % (V_ST, V_ST + 3, S_WS, S_WS + 1))
    lp = g.lab("SL"); ex = g.lab("SX")
    g("s_waitcnt vmcnt(4)")
    g(lp + ":")
    g("v_xor_b32 v57, v%d, v%d" % (V_ST, V_T))
    for k in range(1, 4): g("v_bitop3_b32 v57, v%d, v%d, v57 bitop3:0xBE" % (V_ST + k, V_T + k))
    g("v_and_b32 v57, s%d, v57" % S_MASK)
    g("v_cmp_ne_u32 vcc, 0, v57")
    g("s_cbranch_vccz " + ex)
    budget_exit(g, ex)
    ld1()
    g("s_waitcnt vmcnt(0)")
    g("s_branch " + lp)
    g(ex + ":")
    Z = V_ST
    strip(g, Z, 2)
    g("v_and_b32 v%d, s%d, v%d" % (Z, S_HI, Z))
    g("v_mov_b32 v57, v%d" % Z)
    allreduce16(g, "v_max_f32", [57], 0)
    g("v_sub_f32 v57, v%d, v57" % Z)
    g("v_mul_f32 v57, s%d, v57" % S_C)
    g("v_exp_f32 v57, v57")
    g("v_mul_f32 v58, v57, v%d" % (Z + 1))
    allreduce16(g, "v_add_f32", [58], 0)
    g("v_rcp_f32 v58, v58")
    g("v_mul_f32 v57, v57, v58")
    g("s_lshr_b32 s41, s%d, 1" % S_CW); g("s_lshl_b32 s41, s41, 6")
    g("v_lshlrev_b32 v58, 2, v%d" % V_KG)
    g("v_add_u32 v58, s41, v58")
    for u in range(4):
        g("v_add_u32 v59, %d, v58" % (16 * u))
        g("ds_bpermute_b32 v%d, v59, v57" % (V_C + u))
    if g.pre_sleep: g("s_sleep %d" % g.pre_sleep)
    poll(g, ldo, [T, T + 4, T + 8, T + 12], g.sleep_tail, T + 16, diag=True)
    g("s_waitcnt lgkmcnt(0)")
    g.stamp(12)
    strip(g, T, 16)
    for k in range(4): g("v_mul_f32 v%d, v%d, v%d" % (T + k, T + k, V_C))
    for u in range(1, 4):
        for k in range(4): g("v_fma_f32 v%d, v%d, v%d, v%d" % (T + k, T + 4 * u + k, V_C + u, T + k))
    T4(g, T)
    g("v_cvt_pk_bf16_f32 v%d, v%d, v%d" % (T, T, T))
    g("ds_write_b16 v8, v%d" % T)
    g("s_waitcnt lgkmcnt(0)")
    g("s_barrier")
    g.stamp(13)
    A = V_Q
    for s in range(4):
        g("ds_read_b64_tr_b16 v[%d:%d], v%d offset:%d" % (A + 8 * s, A + 8 * s + 1, V_TR, WO_T + s * 4096))
        g("ds_read_b64_tr_b16 v[%d:%d], v%d offset:%d" % (A + 8 * s + 2, A + 8 * s + 3, V_TR, WO_T + s * 4096 + 2048))
        g("ds_read_b128 v[%d:%d], v9 offset:%d" % (A + 8 * s + 4, A + 8 * s + 7, s * 64))
    for s in range(4):
        g("s_waitcnt lgkmcnt(%d)" % (3 * (3 - s)))
        g("v_mfma_f32_16x16x32_bf16 v[%d:%d], v[%d:%d], v[%d:%d], %s" % (T, T + 3, A + 8 * s, A + 8 * s + 3, A + 8 * s + 4, A + 8 * s + 7, "0" if s == 0 else "v[%d:%d]" % (T, T + 3)))
    tag4(g, T)
    store_n2(g, 22, T)
    g.stamp(11)
    g("s_branch " + end)
    g(fin + ":")
    g("s_cmp_lg_u32 s%d, 0" % S_CW); g("s_cbranch_scc1 " + end)
    g("s_cmp_ge_u32 s%d, 28" % S_F); g("s_cbranch_scc1 " + end)
    g("s_cmp_ge_u32 s%d, 14" % S_F); g("s_cselect_b32 s42, 1, 0")
    g("s_mul_i32 s43, s42, 14"); g("s_sub_u32 s43, s%d, s43" % S_F)
    g("s_lshr_b32 s44, s43, 1")
    g("s_and_b32 s43, s43, 1")
    g("s_lshl_b32 s41, s44, 1"); g("s_add_u32 s41, s41, s42"); g("s_lshl_b32 s41, s41, 1"); g("s_add_u32 s41, s41, s43"); g("s_lshl_b32 s41, s41, 12")
    g("v_lshlrev_b32 v22, 4, v0")
    g("v_add_u32 v22, s41, v22")
    g("s_mul_i32 s42, s42, 448"); g("s_lshl_b32 s44, s44, 6"); g("s_add_u32 s42, s42, s44"); g("s_lshl_b32 s43, s43, 5"); g("s_add_u32 s42, s42, s43")
    g("v_and_b32 v23, 7, v0")
    g("v_lshl_add_u32 v23, v23, 2, v%d" % V_KG)
    g("v_add_u32 v23, s42, v23")
    g("v_lshlrev_b32 v23, 1, v23")
    g("global_load_ushort v11, v23, s[%d:%d]" % (S_X, S_X + 1))
    g("v_add_u32 v4, %d, v22" % YP)
    for k in range(4): g("v_mov_b32 v%d, 0" % (T + 12 + k))
    def ld4(last_mask):
        def f():
            for u in range(3): g("global_load_dwordx4 v[%d:%d], v4, s[%d:%d] offset:%d sc1" % (T + 4 * u, T + 4 * u + 3, S_WS, S_WS + 1, 1024 * u))
            if last_mask: g("s_mov_b32 exec_hi, 0")
            g("global_load_dwordx4 v[%d:%d], v4, s[%d:%d] offset:3072 sc1" % (T + 12, T + 15, S_WS, S_WS + 1))
            if last_mask: g("s_mov_b64 exec, -1")
        return f
    def red32(dst):
        strip(g, T, 16)
        for k in range(4):
            g("v_add_f32 v%d, v%d, v%d" % (T + k, T + k, T + 4 + k))
            g("v_add_f32 v%d, v%d, v%d" % (T + 8 + k, T + 8 + k, T + 12 + k))
        for k in range(4): g("v_add_f32 v%d, v%d, v%d" % (T + k, T + k, T + 8 + k))
        for k in range(4): g("v_add_f32_dpp v%d, v%d, v%d row_ror:8 row_mask:0xf bank_mask:0xf" % (T + k, T + k, T + k))
        T4(g, T)
        rnd_bf16(g, dst, T)
    poll(g, ld4("0xffffffff"), [T, T + 4, T + 8, T + 12], g.sleep_mid, T + 16, masked_last="0xffffffff")
    red32(10)
    g("v_mul_f32 v5, 0xbfb8aa3b, v10")
    g("v_exp_f32 v5, v5")
    g("v_add_f32 v5, 1.0, v5")
    g("v_rcp_f32 v5, v5")
    g("v_mul_f32 v10, v10, v5")
    rnd_bf16(g, 10, 10)
    g("v_lshlrev_b32 v11, 16, v11")
    g("v_add_u32 v4, %d, v22" % SP)
    poll(g, ld4(None), [T, T + 4, T + 8, T + 12], g.sleep_tail, T + 16, diag=True)
    g.stamp(12)
    red32(5)
    g("v_mul_f32 v5, v5, v10")
    rnd_bf16(g, 5, 5)
    g("v_add_f32 v5, v5, v11")
    g("v_cvt_pk_bf16_f32 v5, v5, v5")
    g("s_mov_b32 s42, 0x00ff00ff"); g("s_mov_b32 s43, 0x00ff00ff")
    g("s_mov_b64 exec, s[42:43]")
    g("global_store_short v23, v5, s[%d:%d]" % (S_OUT, S_OUT + 1))
    g("s_mov_b64 exec, -1")
    g.stamp(11)
    g("s_cmp_lg_u32 s%d, 0" % S_F); g("s_cbranch_scc1 " + end)
    g("v_mov_b32 v4, 0"); g("v_mov_b32 v5, s%d" % S_E)
    g("s_mov_b64 exec, 1")
    g("global_store_dword v4, v5, s[%d:%d] sc1" % (S_WS, S_WS + 1))
    g("s_mov_b64 exec, -1")
    g(end + ":")
    if g.stamps: write_stamps(g, 0)
    g("s_endpgm")

def build(W=24, stamps=False, sleep_mid=2, sleep_tail=0):
    g = G(W=W, stamps=stamps, sleep_mid=sleep_mid, sleep_tail=sleep_tail)
    g("s_cmp_ge_u32 s2, 256")
    g("s_cbranch_scc1 L_exit")
    g.stamp(0)
    g("s_load_dwordx8 s[4:11], s[0:1], 0")
    g("s_load_dwordx2 s[12:13], s[0:1], 32")
    g("s_load_dwordx4 s[16:19], s[0:1], 48")
    g("s_load_dwordx4 s[20:23], s[0:1], 64")
    g("s_load_dwordx2 s[24:25], s[0:1], 88")
    g("v_lshrrev_b32 v1, 6, v0")
    g("v_and_b32 v0, 63, v0")
    g("s_and_b32 s%d, s2, 7" % S_KVH)
    g("v_readfirstlane_b32 s%d, v1" % S_WAVE)
    g("s_lshr_b32 s%d, s2, 3" % S_I)
    g("s_lshr_b32 s%d, s%d, 4" % (S_B, S_I))
    g("s_and_b32 s%d, s%d, 15" % (S_J, S_I))
    g("s_cmp_lt_u32 s%d, 28" % S_I)
    g("s_cselect_b32 s%d, 14, 0" % S_G)
    g("s_cselect_b32 s%d, 16, 0" % S_O)
    g("s_cselect_b32 s%d, 8, 0" % S_D)
    g("s_cmp_lt_u32 s%d, 7" % S_KVH)
    g("s_cselect_b32 s%d, s%d, 0" % (S_D, S_D))
    g("s_add_u32 s%d, s%d, 14" % (S_BK, S_G))
    g("s_add_u32 s%d, s%d, s%d" % (S_BV, S_BK, S_D))
    g("s_add_u32 s%d, s%d, 128" % (S_BV, S_BV))
    g("s_mul_i32 s%d, s%d, 37" % (S_RBL, S_I))
    g("s_lshr_b32 s%d, s%d, 8" % (S_RBL, S_RBL))
    g("s_mul_i32 s41, s%d, 7" % S_RBL)
    g("s_sub_u32 s%d, s%d, s41" % (S_CB, S_I))
    g("s_lshl_b32 s%d, s%d, 2" % (S_F, S_KVH))
    g("s_add_u32 s%d, s%d, s%d" % (S_F, S_F, S_I))
    g("s_sub_u32 s%d, s%d, 28" % (S_F, S_F))
    g("s_mov_b32 s%d, %d" % (S_BUD, 1 << 18))
    g("s_mov_b32 s%d, 0xC0000000" % S_LAND)
    if stamps:
        for k in range(1, 16): g("s_mov_b64 s[%d:%d], 0" % (64 + 2 * k, 65 + 2 * k))
    g("s_waitcnt lgkmcnt(0)")
    g("s_cmp_eq_u32 s%d, 0" % S_WAVE)
    g("s_cbranch_scc0 L_compute")
    loader(g)
    g("L_compute:")
    compute(g)
    g("L_exit:")
    g("s_endpgm")
    lines = hz.fix(g.l)
    name = KN + "_kernel"
    s = HDR + "; @launch grid=(256,1,1) block=(320,1,1) lds=%d\n" % LDS_BYTES
    s += '.amdgcn_target "amdgcn-amd-amdhsa--gfx950"\n.text\n.globl %s\n.p2align 8\n.type %s,@function\n%s:\n' % (name, name, name)
    s += "\n".join(lines) + "\n"
    s += '.section .rodata,"a"\n.p2align 6\n.amdhsa_kernel %s\n' % name
    s += "  .amdhsa_next_free_vgpr 256\n  .amdhsa_next_free_sgpr 102\n  .amdhsa_accum_offset 256\n"
    s += "  .amdhsa_group_segment_fixed_size 0\n  .amdhsa_kernarg_size 96\n  .amdhsa_user_sgpr_count 2\n"
    s += "  .amdhsa_user_sgpr_kernarg_segment_ptr 1\n  .amdhsa_system_sgpr_workgroup_id_x 1\n"
    s += "  .amdhsa_float_denorm_mode_32 3\n"
    s += ".end_amdhsa_kernel\n"
    return s

if __name__ == "__main__":
    ap = argparse.ArgumentParser()
    ap.add_argument("-o", default="k.s")
    ap.add_argument("--W", type=int, default=24)
    ap.add_argument("--stamps", action="store_true")
    ap.add_argument("--sleep", type=int, default=2)
    ap.add_argument("--sleept", type=int, default=0)
    a = ap.parse_args()
    open(a.o, "w").write(build(W=a.W, stamps=a.stamps, sleep_mid=a.sleep, sleep_tail=a.sleept))
```

```python
import sys, argparse
from asmlib import HDR, KN
import hz

KV = 0
AUX = 131072
WQ_T = 0; GU_T = 14336; WD_T = 0; WO_T = 8192
MISC = 159744
XN = MISC; PB = MISC
QB = MISC + 1792; OB = QB
HB = MISC + 2816
WM = MISC + 3072; WL = MISC + 3104
PROG = MISC + 3136
LAND = MISC + 3200
JUNK = MISC + 3456
LDS_BYTES = 163840
XC = 0x3F000
QP = 0x1000; GP = 0x21000; ST = 0x3D000; YP = 0x40000; SP = 0x60000; OP = 0x80000
STAMP = 512 << 20
TAGMASK = 0x3FF; TAGMID = 0x200

class G:
    def __init__(self, W=24, stamps=False, sleep_mid=2, sleep_tail=0, fast=True):
        self.l = []; self.n = 0; self.W = W; self.stamps = stamps; self.sleep_mid = sleep_mid; self.sleep_tail = sleep_tail; self.fast = fast
        self.nst = 0; self.stat_at = 12; self.pre_sleep = 0; self.q_issue_at = 3
    def __call__(self, s):
        for x in s.split("\n"): self.l.append("  " + x.strip() if not x.strip().endswith(":") else x.strip())
    def lab(self, b="L"):
        self.n += 1; return "%s_%d" % (b, self.n)
    def c(self, s): self.l.append("  ; " + s)
    def stamp(self, k):
        if self.stamps:
            self("s_memrealtime s[%d:%d]" % (64 + 2 * k, 65 + 2 * k))

S_X, S_K, S_V, S_WQ, S_WO, S_WG, S_WU, S_WD, S_OUT, S_WS = 4, 6, 8, 10, 12, 16, 18, 20, 22, 24
S_KVH, S_I, S_B, S_J, S_WAVE, S_CW = 26, 27, 28, 29, 30, 31
S_E = 32
S_G, S_D, S_O = 34, 35, 36
S_BK, S_BV = 37, 38
S_MASK = 39
S_BUD = 40
S_T0 = 41
S_RBL, S_CB, S_F = 50, 51, 52
S_EX = 54
S_C = 56
S_HI = 57
S_XCC = 53; S_FAST = 59
S_LAND = 60

def sp(r): return "s[%d:%d]" % (r, r + 1)
def vr(r, n=1): return "v%d" % r if n == 1 else "v[%d:%d]" % (r, r + n - 1)

def budget_exit(g, lab):
    g("s_cmp_eq_u32 s%d, 0" % S_BUD)
    g("s_cbranch_scc1 %s" % lab)
    g("s_sub_u32 s%d, s%d, 1" % (S_BUD, S_BUD))

def loader(g):
    W = g.W
    g.c("================= loader wave =================")
    g("s_setprio 3")
    g("v_lshlrev_b32 v16, 2, v0")
    g("v_add_u32 v16, %d, v16" % LAND)
    g("v_mov_b32 v5, 0xC0000000")
    g("ds_write_b32 v16, v5")
    g("v_mov_b32 v17, %d" % PROG)
    g("v_mov_b32 v6, 0"); g("v_mov_b32 v7, 0"); g("v_mov_b32 v8, 0"); g("v_mov_b32 v9, 0")
    g("ds_write_b128 v17, v[6:9]")
    g("s_waitcnt lgkmcnt(0)")
    g("s_barrier")
    g("v_lshrrev_b32 v2, 3, v0")
    g("v_and_b32 v3, 7, v0")
    g("v_lshrrev_b32 v4, 4, v0")
    g("v_lshlrev_b32 v4, 1, v4")
    g("v_xor_b32 v3, v3, v4")
    g("v_lshlrev_b32 v3, 4, v3")
    g("v_lshl_add_u32 v5, v2, 13, v3")
    g("v_mul_u32_u24 v6, 3584, v2")
    g("v_add_u32 v6, v6, v3")
    g("v_mul_u32_u24 v7, 896, v2")
    g("v_add_u32 v7, v7, v3")
    g("s_lshr_b32 s41, s%d, 3" % S_I)
    g("s_mul_i32 s41, s41, %d" % (112 * 8192))
    g("s_lshl_b32 s42, s%d, 10" % S_KVH)
    g("s_add_u32 s41, s41, s42")
    g("s_and_b32 s42, s%d, 7" % S_I)
    g("s_lshl_b32 s42, s42, 7")
    g("s_add_u32 s41, s41, s42")
    g("s_add_u32 s44, s%d, s41" % S_WQ)
    g("s_addc_u32 s45, s%d, 0" % (S_WQ + 1))
    g("s_mov_b32 m0, %d" % (AUX + WQ_T))
    g("s_mov_b32 s46, 14")
    lp = g.lab("WQ")
    g(lp + ":")
    g("global_load_lds_dwordx4 v5, s[44:45] nt")
    g("s_add_u32 s44, s44, 65536")
    g("s_addc_u32 s45, s45, 0")
    g("s_add_u32 m0, m0, 1024")
    g("s_sub_u32 s46, s46, 1")
    g("s_cmp_lg_u32 s46, 0")
    g("s_cbranch_scc1 " + lp)
    g("v_lshrrev_b32 v8, 5, v0")
    g("v_and_b32 v9, 31, v0")
    g("v_lshlrev_b32 v10, 1, v8")
    g("v_xor_b32 v9, v9, v10")
    g("v_lshlrev_b32 v9, 4, v9")
    g("v_lshlrev_b32 v8, 9, v8")
    for u in range(4):
        g("v_xor_b32 v%d, %d, v9" % (12 + u, u * 64))
        g("v_add_u32 v%d, v%d, v8" % (12 + u, 12 + u))
    sk = g.lab("NOGU")
    g("s_cmp_eq_u32 s%d, 0" % S_G)
    g("s_cbranch_scc1 " + sk)
    g("s_and_b32 s41, s%d, 1" % S_KVH)
    g("s_cmp_eq_u32 s41, 0")
    g("s_cselect_b32 s44, s%d, s%d" % (S_WG, S_WU))
    g("s_cselect_b32 s45, s%d, s%d" % (S_WG + 1, S_WU + 1))
    g("s_lshr_b32 s41, s%d, 1" % S_KVH)
    g("s_mul_i32 s41, s41, %d" % (112 * 3584))
    g("s_lshl_b32 s42, s%d, 7" % S_I)
    g("s_add_u32 s41, s41, s42")
    g("s_add_u32 s44, s44, s41")
    g("s_addc_u32 s45, s45, 0")
    g("s_mov_b32 m0, %d" % (AUX + GU_T))
    g("s_mov_b32 s46, 14")
    lp = g.lab("GU")
    g(lp + ":")
    g("global_load_lds_dwordx4 v6, s[44:45] nt")
    g("s_add_u32 s44, s44, %d" % (8 * 3584))
    g("s_addc_u32 s45, s45, 0")
    g("s_add_u32 m0, m0, 1024")
    g("s_sub_u32 s46, s46, 1")
    g("s_cmp_lg_u32 s46, 0")
    g("s_cbranch_scc1 " + lp)
    g(sk + ":")
    g("s_lshl_b32 s41, s%d, 3" % S_B)
    g("s_add_u32 s41, s41, s%d" % S_KVH)
    g("s_lshl_b32 s41, s41, 24")
    g("s_add_u32 s41, s41, %d" % (28672 * 512))
    g("s_lshl_b32 s42, s%d, 13" % S_J)
    g("s_add_u32 s41, s41, s42")
    g("s_add_u32 s44, s%d, s41" % S_K)
    g("s_addc_u32 s45, s%d, 0" % (S_K + 1))
    g("s_add_u32 s48, s%d, s41" % S_V)
    g("s_addc_u32 s49, s%d, 0" % (S_V + 1))
    g("s_add_u32 s47, s%d, 14" % S_G)
    g("s_mov_b32 m0, %d" % KV)
    def tile(sb):
        for u in range(8):
            if u == 4:
                g("s_add_u32 s%d, s%d, 4096" % (sb, sb)); g("s_addc_u32 s%d, s%d, 0" % (sb + 1, sb + 1)); g("s_add_u32 m0, m0, 4096"); g("s_nop 0")
            g("global_load_lds_dwordx4 v%d, s[%d:%d] offset:%d nt" % (12 + (u & 3), sb, sb + 1, (u & 3) * 1024))
        g("s_add_u32 s%d, s%d, %d" % (sb, sb, 131072 - 4096)); g("s_addc_u32 s%d, s%d, 0" % (sb + 1, sb + 1)); g("s_add_u32 m0, m0, 4096")
        g("s_add_u32 s47, s47, 8")
    def flag(n):
        g("s_waitcnt vmcnt(%d)" % n)
        g("s_sub_u32 s46, s47, %d" % n)
        g("v_mov_b32 v18, s46")
        g("ds_write_b32 v16, v18")
    tile(44)
    g.c("wq landed when only (G + 8) remain outstanding")
    has = g.lab("HASGU"); j2 = g.lab("J")
    g("s_cmp_eq_u32 s%d, 0" % S_G)
    g("s_cbranch_scc0 " + has)
    flag(8)
    tile(44)
    g("s_branch " + j2)
    g(has + ":")
    flag(22)
    tile(44)
    flag(16)
    g(j2 + ":")
    lp = g.lab("KL")
    g("s_mov_b32 s43, 14")
    g(lp + ":")
    tile(44)
    flag(W)
    g("s_sub_u32 s43, s43, 1")
    g("s_cmp_lg_u32 s43, 0")
    g("s_cbranch_scc1 " + lp)
    g.stamp(1)
    def wait_prog(sthr):
        lp = g.lab("WP"); ex = g.lab("WPX")
        g("s_cmp_ge_i32 s%d, %s" % (S_LAND, sthr))
        g("s_cbranch_scc1 " + ex)
        g(lp + ":")
        g("ds_read_b128 v[20:23], v17")
        g("s_waitcnt lgkmcnt(0)")
        g("v_min3_i32 v20, v20, v21, v22")
        g("v_min_i32 v20, v20, v23")
        g("v_readfirstlane_b32 s%d, v20" % S_LAND)
        g("s_cmp_ge_i32 s%d, %s" % (S_LAND, sthr))
        g("s_cbranch_scc1 " + ex)
        budget_exit(g, ex)
        g("s_branch " + lp)
        g(ex + ":")
    sk = g.lab("NOWD")
    g("s_cmp_eq_u32 s%d, 0" % S_D)
    g("s_cbranch_scc1 " + sk)
    wait_prog("1")
    g("s_mul_i32 s41, s%d, %d" % (S_I, 64 * 896))
    g("s_lshl_b32 s42, s%d, 7" % S_KVH)
    g("s_add_u32 s41, s41, s42")
    g("s_add_u32 s58, s%d, s41" % S_WD)
    g("s_addc_u32 s59, s%d, 0" % (S_WD + 1))
    g("s_mov_b32 m0, %d" % (AUX + WD_T))
    g("s_mov_b32 s46, 8")
    lp = g.lab("WD")
    g(lp + ":")
    g("global_load_lds_dwordx4 v7, s[58:59] nt")
    g("s_add_u32 s58, s58, 7168")
    g("s_addc_u32 s59, s59, 0")
    g("s_add_u32 m0, m0, 1024")
    g("s_sub_u32 s46, s46, 1")
    g("s_cmp_lg_u32 s46, 0")
    g("s_cbranch_scc1 " + lp)
    g("s_add_u32 s47, s47, 8")
    flag(W)
    g(sk + ":")
    g("s_mov_b32 m0, %d" % KV)
    lp = g.lab("VL")
    g("s_mov_b32 s43, 0")
    g(lp + ":")
    g("s_lshr_b32 s41, s43, 2")
    g("s_add_u32 s41, s41, 2")
    wait_prog("s41")
    tile(48)
    flag(W)
    g("s_add_u32 s43, s43, 1")
    g("s_cmp_lg_u32 s43, 16")
    g("s_cbranch_scc1 " + lp)
    g.stamp(2)
    sk = g.lab("NOWO"); dn = g.lab("LDONE")
    g("s_cmp_eq_u32 s%d, 0" % S_O)
    g("s_cbranch_scc1 " + sk)
    g("s_lshl_b32 s41, s%d, 2" % S_KVH)
    g("s_add_u32 s41, s41, s%d" % S_RBL)
    g("s_mul_i32 s41, s41, %d" % (128 * 896))
    g("s_lshl_b32 s42, s%d, 7" % S_CB)
    g("s_add_u32 s41, s41, s42")
    g("s_add_u32 s58, s%d, s41" % S_WO)
    g("s_addc_u32 s59, s%d, 0" % (S_WO + 1))
    g("s_mov_b32 m0, %d" % (AUX + WO_T))
    g("s_mov_b32 s46, 16")
    lp = g.lab("WO")
    g(lp + ":")
    g("global_load_lds_dwordx4 v7, s[58:59] nt")
    g("s_add_u32 s58, s58, 7168")
    g("s_addc_u32 s59, s59, 0")
    g("s_add_u32 m0, m0, 1024")
    g("s_sub_u32 s46, s46, 1")
    g("s_cmp_lg_u32 s46, 0")
    g("s_cbranch_scc1 " + lp)
    g("s_add_u32 s47, s47, 16")
    for n in range(W - 8 + 16, 15, -8): flag(n)
    g("s_waitcnt vmcnt(0)")
    g("s_branch " + dn)
    g(sk + ":")
    for n in range(W - 8, -1, -8): flag(n)
    g(dn + ":")
    g.stamp(3)
    g("s_waitcnt lgkmcnt(0)")
    if g.stamps: write_stamps(g, 0)
    g("s_endpgm")

def write_stamps(g, vtmp):
    g("s_waitcnt lgkmcnt(0)")
    g("s_mul_i32 s41, s2, 5")
    g("s_add_u32 s41, s41, s%d" % S_WAVE)
    g("s_lshl_b32 s41, s41, 7")
    g("s_add_u32 s41, s41, %d" % STAMP)
    g("v_mov_b32 v100, s41")
    for q in range(8):
        for k in range(4): g("v_mov_b32 v%d, s%d" % (104 + k, 64 + 4 * q + k))
        g("s_mov_b64 exec, 1")
        g("global_store_dwordx4 v100, v[104:107], s[%d:%d] offset:%d" % (S_WS, S_WS + 1, 16 * q))
        g("s_mov_b64 exec, -1")
        g("s_nop 1")

V_N, V_KG = 1, 2
V_T = 12
V_MID = 16
V_PW = 17
V_PR = 18
V_LR = 19
V_TR = 20
V_F = 21
V_TMP = 24
V_Q = 64
V_S = 96
V_ACC = 112
V_K = 128
V_X = 56
V_ST = 40
V_G = 44
V_C = 52

def wait_landed(g, sthr):
    lp = g.lab("WL"); ex = g.lab("WLX")
    g("s_cmp_ge_i32 s%d, %s" % (S_LAND, sthr))
    g("s_cbranch_scc1 " + ex)
    g(lp + ":")
    g("ds_read_b32 v%d, v%d" % (V_F, V_LR))
    g("s_waitcnt lgkmcnt(0)")
    g("v_readfirstlane_b32 s%d, v%d" % (S_LAND, V_F))
    g("s_cmp_ge_i32 s%d, %s" % (S_LAND, sthr))
    g("s_cbranch_scc1 " + ex)
    budget_exit(g, ex)
    g("s_branch " + lp)
    g(ex + ":")
def prog_set(g, val):
    g("v_mov_b32 v%d, %s" % (V_F, val))
    g("ds_write_b32 v%d, v%d" % (V_PW, V_F))
def wait_prog_c(g, val):
    lp = g.lab("WP"); ex = g.lab("WPX")
    t = V_TMP + 36
    g(lp + ":")
    g("ds_read_b128 v[%d:%d], v%d" % (t, t + 3, V_PR))
    g("s_waitcnt lgkmcnt(0)")
    g("v_min3_i32 v%d, v%d, v%d, v%d" % (t, t, t + 1, t + 2))
    g("v_min_i32 v%d, v%d, v%d" % (t, t, t + 3))
    g("v_cmp_gt_i32 vcc, %s, v%d" % (val, t))
    g("s_cbranch_vccz " + ex)
    budget_exit(g, ex)
    g("s_branch " + lp)
    g(ex + ":")
def tag4(g, r):
    for k in range(4): g("v_bfi_b32 v%d, s%d, v%d, v%d" % (r + k, S_MASK, V_T + k, r + k))
def strip(g, r, n):
    for k in range(n): g("v_bfi_b32 v%d, s%d, v%d, v%d" % (r + k, S_MASK, V_MID, r + k))
def poll(g, emit_loads, regs, sleep, acc, masked_last=None, diag=False, pre=False):
    lp = g.lab("PL"); ex = g.lab("PX"); ck = g.lab("PC")
    if diag and g.stamps: g("s_mov_b32 s63, 0")
    if pre: g("s_branch " + ck)
    g(lp + ":")
    emit_loads()
    g(ck + ":")
    g("s_waitcnt vmcnt(0)")
    if diag and g.stamps:
        sk = g.lab("DG")
        g("s_add_u32 s63, s63, 1")
    first = True
    for idx, r in enumerate(regs):
        if masked_last and idx == len(regs) - 1: g("s_mov_b32 exec_hi, 0")
        for k in range(4):
            if first:
                g("v_xor_b32 v%d, v%d, v%d" % (acc, r + k, V_T + k)); first = False
            else:
                g("v_bitop3_b32 v%d, v%d, v%d, v%d bitop3:0xBE" % (acc, r + k, V_T + k, acc))
    if masked_last: g("s_mov_b64 exec, -1")
    g("v_and_b32 v%d, s%d, v%d" % (acc, S_MASK, acc))
    g("v_cmp_ne_u32 vcc, 0, v%d" % acc)
    g("s_cbranch_vccz " + ex)
    budget_exit(g, ex)
    if sleep: g("s_sleep %d" % sleep)
    g("s_branch " + lp)
    g(ex + ":")
    if diag and g.stamps:
        g("s_waitcnt lgkmcnt(0)")
        g("s_mul_i32 s94, s63, 100"); g("s_add_u32 s94, s94, s64"); g("s_addc_u32 s95, s65, 0")
def T4(g, r):
    g("v_permlane16_swap_b32 v%d, v%d" % (r, r + 1))
    g("v_permlane16_swap_b32 v%d, v%d" % (r + 2, r + 3))
    g("v_add_f32 v%d, v%d, v%d" % (r, r, r + 1))
    g("v_add_f32 v%d, v%d, v%d" % (r + 2, r + 2, r + 3))
    g("v_permlane32_swap_b32 v%d, v%d" % (r, r + 2))
    g("v_add_f32 v%d, v%d, v%d" % (r, r, r + 2))
def rnd_bf16(g, dst, src, tmp=None):
    g("v_cvt_pk_bf16_f32 v%d, v%d, v%d" % (dst, src, src))
    g("v_and_b32 v%d, s%d, v%d" % (dst, S_HI, dst))
def allreduce16(g, op, regs, tmp):
    for sh in (8, 4, 2, 1):
        for r in regs: g("%s_dpp v%d, v%d, v%d row_ror:%d row_mask:0xf bank_mask:0xf" % (op, r, r, r, sh))
def xrow(g, op, regs, tmp, which=(16, 32)):
    for w in which:
        for i, r in enumerate(regs): g("v_mov_b32 v%d, v%d" % (tmp + i, r))
        for i, r in enumerate(regs): g("v_permlane%d_swap_b32 v%d, v%d" % (w, r, tmp + i))
        for i, r in enumerate(regs): g("%s v%d, v%d, v%d" % (op, r, r, tmp + i))

def thin_tile16(g, nsteps, tr_off, vb, b_off, acc, tmp):
    for s in range(nsteps):
        g("ds_read_b64_tr_b16 v[%d:%d], v%d offset:%d" % (tmp + 4 * s, tmp + 4 * s + 1, V_TR, tr_off + s * 2048))
        g("ds_read_b64 v[%d:%d], v%d offset:%d" % (tmp + 4 * s + 2, tmp + 4 * s + 3, vb, b_off + s * 32))
    for s in range(nsteps):
        g("s_waitcnt lgkmcnt(%d)" % (2 * (nsteps - 1 - s)))
        g("v_mfma_f32_16x16x16_bf16 v[%d:%d], v[%d:%d], v[%d:%d], %s" % (acc, acc + 3, tmp + 4 * s, tmp + 4 * s + 1, tmp + 4 * s + 2, tmp + 4 * s + 3, "0" if s == 0 else "v[%d:%d]" % (acc, acc + 3)))
def store_n2(g, vaddr, r, off=0):
    g("s_mov_b64 exec, s[%d:%d]" % (S_EX, S_EX + 1))
    g("global_store_dwordx4 v%d, v[%d:%d], s[%d:%d] offset:%d sc1" % (vaddr, r, r + 3, S_WS, S_WS + 1, off))
    g("s_mov_b64 exec, -1")

def compute(g):
    T = V_TMP
    g.c("================= compute waves =================")
    g("s_sub_u32 s%d, s%d, 1" % (S_CW, S_WAVE))
    g("v_min_u32 v3, 55, v0")
    g("v_lshlrev_b32 v3, 4, v3")
    g("global_load_dwordx4 v[%d:%d], v3, s[%d:%d]" % (T, T + 3, S_X, S_X + 1))
    g("global_load_dwordx4 v[%d:%d], v3, s[%d:%d] offset:896" % (T + 4, T + 7, S_X, S_X + 1))
    g("v_and_b32 v%d, 15, v0" % V_N)
    g("v_lshrrev_b32 v%d, 4, v0" % V_KG)
    g("s_barrier")
    g("s_load_dwordx2 s[%d:%d], s[%d:%d], 0" % (S_E, S_E + 1, S_WS, S_WS + 1))
    g("s_mov_b32 s%d, %d" % (S_MASK, TAGMASK))
    g("s_mov_b32 s%d, 0xffff0000" % S_HI)
    g("s_mov_b32 s%d, 0x00030003" % S_EX); g("s_mov_b32 s%d, 0x00030003" % (S_EX + 1))
    g("v_mov_b32 v22, 0"); g("v_mov_b32 v23, 0")
    g("v_mov_b32 v%d, %d" % (V_MID, TAGMID))
    g("v_mov_b32 v%d, %d" % (V_PR, PROG))
    g("v_mov_b32 v%d, %d" % (V_LR, LAND))
    g("v_lshlrev_b32 v4, 2, v0")
    g("v_add_u32 v4, %d, v4" % JUNK)
    g("s_lshl_b32 s41, s%d, 2" % S_CW)
    g("s_add_u32 s41, s41, %d" % PROG)
    g("v_mov_b32 v5, s41")
    g("v_cmp_eq_u32 vcc, 0, v0")
    g("v_cndmask_b32 v%d, v4, v5, vcc" % V_PW)
    g("v_lshrrev_b32 v4, 2, v%d" % V_N)
    g("v_lshl_add_u32 v4, v%d, 2, v4" % V_KG)
    g("v_lshrrev_b32 v5, 1, v4")
    g("v_and_b32 v5, 3, v5")
    g("v_xor_b32 v5, s%d, v5" % S_CW)
    g("v_lshlrev_b32 v5, 5, v5")
    g("v_lshl_add_u32 v5, v4, 7, v5")
    g("v_and_b32 v6, 3, v%d" % V_N)
    g("v_lshl_add_u32 v5, v6, 3, v5")
    g("v_add_u32 v%d, %d, v5" % (V_TR, AUX))
    g.stamp(1)
    g.c("layernorm")
    F = T + 8
    g("v_cmp_gt_u32 vcc, 56, v0")
    g("s_waitcnt vmcnt(0)")
    for k in range(8): g("v_cndmask_b32 v%d, 0, v%d, vcc" % (T + k, T + k))
    for b in range(2):
        for k in range(4):
            g("v_lshlrev_b32 v%d, 16, v%d" % (F + 8 * b + 2 * k, T + 4 * b + k))
            g("v_and_b32 v%d, s%d, v%d" % (F + 8 * b + 2 * k + 1, S_HI, T + 4 * b + k))
    SUM = T + 24
    for b in range(2):
        f = F + 8 * b
        g("v_add_f32 v%d, v%d, v%d" % (SUM + b, f, f + 1))
        for k in range(2, 8): g("v_add_f32 v%d, v%d, v%d" % (SUM + b, SUM + b, f + k))
    allreduce16(g, "v_add_f32", [SUM, SUM + 1], 0)
    xrow(g, "v_add_f32", [SUM, SUM + 1], SUM + 2)
    g("v_mov_b32 v4, 0x3b124925")
    for b in range(2): g("v_mul_f32 v%d, v%d, v4" % (SUM + b, SUM + b))
    VAR = T + 28
    D = T + 30
    for b in range(2):
        f = F + 8 * b
        for k in range(8):
            g("v_sub_f32 v5, v%d, v%d" % (f + k, SUM + b))
            if k == 0: g("v_mul_f32 v%d, v5, v5" % (VAR + b))
            else: g("v_fma_f32 v%d, v5, v5, v%d" % (VAR + b, VAR + b))
    for b in range(2): g("v_cndmask_b32 v%d, 0, v%d, vcc" % (VAR + b, VAR + b))
    allreduce16(g, "v_add_f32", [VAR, VAR + 1], 0)
    xrow(g, "v_add_f32", [VAR, VAR + 1], VAR + 2)
    for b in range(2):
        g("v_mul_f32 v%d, v%d, v4" % (VAR + b, VAR + b))
        rnd_bf16(g, VAR + b, VAR + b)
        g("v_add_f32 v%d, 0x3727c5ac, v%d" % (VAR + b, VAR + b))
        rnd_bf16(g, VAR + b, VAR + b)
        g("v_sqrt_f32 v%d, v%d" % (VAR + b, VAR + b))
        rnd_bf16(g, VAR + b, VAR + b)
        g("v_rcp_f32 v%d, v%d" % (VAR + b, VAR + b))
        rnd_bf16(g, SUM + b, SUM + b)
    for b in range(2):
        f = F + 8 * b
        for k in range(0, 8, 2):
            g("v_sub_f32 v%d, v%d, v%d" % (f + k, f + k, SUM + b))
            g("v_sub_f32 v%d, v%d, v%d" % (f + k + 1, f + k + 1, SUM + b))
            g("v_cvt_pk_bf16_f32 v5, v%d, v%d" % (f + k, f + k + 1))
            g("v_lshlrev_b32 v%d, 16, v5" % (f + k))
            g("v_and_b32 v%d, s%d, v5" % (f + k + 1, S_HI))
            g("v_mul_f32 v%d, v%d, v%d" % (f + k, f + k, VAR + b))
            g("v_mul_f32 v%d, v%d, v%d" % (f + k + 1, f + k + 1, VAR + b))
            g("v_cvt_pk_bf16_f32 v%d, v%d, v%d" % (T + 4 * b + k // 2, f + k, f + k + 1))
    g("v_lshlrev_b32 v4, 4, v0")
    g("v_add_u32 v4, %d, v4" % XN)
    g("s_mov_b32 exec_hi, 0x00ffffff")
    g("ds_write_b128 v4, v[%d:%d]" % (T, T + 3))
    g("ds_write_b128 v4, v[%d:%d] offset:896" % (T + 4, T + 7))
    g("s_mov_b64 exec, -1")
    g("s_waitcnt lgkmcnt(0)")
    g("s_add_u32 s%d, s%d, 1" % (S_E, S_E))
    g("s_and_b32 s41, s%d, s%d" % (S_E, S_MASK)); g("v_mov_b32 v%d, s41" % V_T)
    g("s_lshr_b32 s41, s%d, 10" % S_E); g("s_and_b32 s41, s41, s%d" % S_MASK); g("v_mov_b32 v%d, s41" % (V_T + 1))
    g("s_lshr_b32 s41, s%d, 20" % S_E); g("s_and_b32 s41, s41, s%d" % S_MASK); g("v_mov_b32 v%d, s41" % (V_T + 2))
    g("s_lshr_b32 s41, s%d, 30" % S_E); g("s_lshl_b32 s42, s%d, 2" % (S_E + 1)); g("s_or_b32 s41, s41, s42"); g("s_and_b32 s41, s41, s%d" % S_MASK); g("v_mov_b32 v%d, s41" % (V_T + 3))
    g("s_getreg_b32 s%d, hwreg(HW_REG_XCC_ID)" % S_XCC)
    g("s_and_b32 s%d, s%d, 15" % (S_XCC, S_XCC))
    sk = g.lab("NOXC")
    g("s_cmp_lg_u32 s%d, 0" % S_CW)
    g("s_cbranch_scc1 " + sk)
    g("s_lshl_b32 s41, s%d, 16" % S_XCC)
    for k in range(4): g("v_mov_b32 v%d, s41" % (V_X + k))
    tag4(g, V_X)
    g("s_lshl_b32 s41, s%d, 9" % S_KVH); g("s_lshl_b32 s42, s%d, 4" % S_I); g("s_add_u32 s41, s41, s42"); g("s_add_u32 s41, s41, %d" % XC)
    g("v_mov_b32 v4, s41")
    g("s_mov_b64 exec, 1")
    g("global_store_dwordx4 v4, v[%d:%d], s[%d:%d] sc1" % (V_X, V_X + 3, S_WS, S_WS + 1))
    g("s_mov_b64 exec, -1")
    g(sk + ":")
    g.stamp(2)
    g.c("q partial")
    g("v_and_b32 v4, 1, v%d" % V_N)
    g("v_mul_u32_u24 v4, 896, v4")
    g("v_lshl_add_u32 v4, v%d, 3, v4" % V_KG)
    g("v_add_u32 v3, %d, v4" % XN)
    g("s_lshr_b32 s41, s%d, 3" % S_I)
    g("s_mul_i32 s41, s41, 224")
    g("v_add_u32 v4, s41, v3")
    g("v_lshlrev_b32 v5, 8, v%d" % V_N)
    g("v_lshl_add_u32 v5, v%d, 4, v5" % V_KG)
    g("s_lshl_b32 s41, s%d, 6" % S_CW)
    g("v_add_u32 v5, s41, v5")
    wait_landed(g, "14")
    thin_tile16(g, 7, WQ_T, 4, 0, T + 32, T)
    g("s_lshl_b32 s41, s%d, 14" % S_KVH)
    g("s_lshl_b32 s42, s%d, 9" % S_I)
    g("s_add_u32 s41, s41, s42")
    g("s_add_u32 s41, s41, %d" % QP)
    g("v_add_u32 v6, s41, v5")
    tag4(g, T + 32)
    store_n2(g, 6, T + 32)
    g.stamp(3)
    g.c("gate/up partial")
    sk = g.lab("NOGU")
    g("s_cmp_eq_u32 s%d, 0" % S_G)
    g("s_cbranch_scc1 " + sk)
    g("s_lshr_b32 s41, s%d, 1" % S_KVH)
    g("s_mul_i32 s41, s41, 224")
    g("v_add_u32 v4, s41, v3")
    wait_landed(g, "28")
    thin_tile16(g, 7, GU_T, 4, 0, T + 32, T)
    g("s_lshl_b32 s41, s%d, 12" % S_I)
    g("s_lshl_b32 s42, s%d, 9" % S_KVH)
    g("s_add_u32 s41, s41, s42")
    g("s_add_u32 s41, s41, %d" % GP)
    g("v_add_u32 v6, s41, v5")
    tag4(g, T + 32)
    store_n2(g, 6, T + 32)
    g(sk + ":")
    prog_set(g, "1")
    g.c("K tiles to registers")
    g("v_and_b32 v8, 7, v%d" % V_N)
    g("v_lshlrev_b32 v8, 1, v8")
    g("s_lshl_b32 s41, s%d, 13" % S_CW)
    g("v_lshlrev_b32 v9, 9, v%d" % V_N)
    g("v_add_u32 v9, s41, v9")
    for s3 in range(4):
        g("v_add_u32 v%d, %d, v%d" % (4 + s3, 4 * s3, V_KG))
        g("v_xor_b32 v%d, v%d, v8" % (4 + s3, 4 + s3))
        g("v_lshl_add_u32 v%d, v%d, 4, v9" % (4 + s3, 4 + s3))
    g("s_lshl_b32 s41, s%d, 14" % S_KVH)
    g("s_lshl_b32 s42, s%d, 10" % S_CW)
    g("s_add_u32 s41, s41, s42")
    g("s_lshl_b32 s42, s%d, 8" % S_B)
    g("s_add_u32 s41, s41, s42")
    g("s_add_u32 s41, s41, %d" % QP)
    g("v_lshlrev_b32 v10, 12, v%d" % V_KG)
    g("v_lshl_add_u32 v10, v%d, 4, v10" % V_N)
    g("v_add_u32 v10, s41, v10")
    g("s_min_u32 s41, s%d, 27" % S_I)
    g("s_lshl_b32 s41, s41, 12")
    g("s_and_b32 s42, s%d, 1" % S_CW)
    g("s_lshl_b32 s42, s42, 8")
    g("s_add_u32 s41, s41, s42"); g("s_add_u32 s41, s41, %d" % GP)
    g("v_lshlrev_b32 v11, 10, v%d" % V_KG)
    g("v_lshl_add_u32 v11, v%d, 4, v11" % V_N)
    g("v_add_u32 v11, s41, v11")
    g("s_lshl_b32 s41, s%d, 9" % S_KVH); g("s_add_u32 s41, s41, %d" % XC)
    g("v_and_b32 v22, 31, v0"); g("v_lshlrev_b32 v22, 4, v22"); g("v_add_u32 v22, s41, v22")
    def ldq():
        g("global_load_dwordx4 v[%d:%d], v10, s[%d:%d] sc1" % (T, T + 3, S_WS, S_WS + 1))
        g("global_load_dwordx4 v[%d:%d], v10, s[%d:%d] offset:512 sc1" % (T + 4, T + 7, S_WS, S_WS + 1))
        g("global_load_dwordx4 v[%d:%d], v22, s[%d:%d] sc1" % (V_X, V_X + 3, S_WS, S_WS + 1))
    def ldg():
        g("global_load_dwordx4 v[%d:%d], v11, s[%d:%d] sc1" % (V_G, V_G + 3, S_WS, S_WS + 1))
        g("global_load_dwordx4 v[%d:%d], v11, s[%d:%d] offset:512 sc1" % (V_G + 4, V_G + 7, S_WS, S_WS + 1))
    for r in range(4):
        if r == g.q_issue_at:
            ldq()
        g("s_lshl_b32 s41, s%d, 3" % S_CW)
        g("s_add_u32 s41, s41, s%d" % S_BK)
        g("s_add_u32 s41, s41, %d" % (8 + 32 * r))
        wait_landed(g, "s41")
        for s in range(8):
            g("ds_read_b128 v[%d:%d], v%d offset:%d" % (V_K + 32 * r + 4 * s, V_K + 32 * r + 4 * s + 3, 4 + (s & 3), (s >> 2) * 256 + (r & 1) * 32768))
        if r == 1:
            for s3 in range(4): g("v_add_u32 v%d, 0x10000, v%d" % (4 + s3, 4 + s3))
        g("s_waitcnt lgkmcnt(0)")
        prog_set(g, str(2 + r))
    g.stamp(4)
    g.c("gather q")
    poll(g, ldq, [T, T + 4, V_X], g.sleep_mid, T + 8, pre=True)
    g.stamp(14)
    sk = g.lab("NOGL")
    g("s_cmp_eq_u32 s%d, 0" % S_D); g("s_cbranch_scc1 " + sk)
    g("s_cmp_ge_u32 s%d, 2" % S_CW); g("s_cbranch_scc1 " + sk)
    ldg()
    g(sk + ":")
    g("v_lshrrev_b32 v%d, 16, v%d" % (V_X, V_X))
    g("v_cmp_eq_u32 vcc, s%d, v%d" % (S_XCC, V_X))
    g("s_nop 0")
    g("s_cmp_eq_u64 vcc, exec")
    g("s_cselect_b32 s%d, %d, 0" % (S_FAST, 1 if g.fast else 0))
    strip(g, T, 8)
    T4(g, T); T4(g, T + 4)
    g("v_cvt_pk_bf16_f32 v%d, v%d, v%d" % (T, T, T + 4))
    g("s_lshr_b32 s41, s%d, 1" % S_CW); g("s_lshl_b32 s41, s41, 9")
    g("s_and_b32 s42, s%d, 1" % S_CW); g("s_lshl_b32 s42, s42, 8")
    g("s_add_u32 s41, s41, s42"); g("s_add_u32 s41, s41, %d" % QB)
    g("v_lshlrev_b32 v4, 3, v%d" % V_N)
    g("v_lshl_add_u32 v4, v%d, 1, v4" % V_KG)
    g("v_add_u32 v4, s41, v4")
    g("ds_write_b16 v4, v%d" % T)
    g("ds_write_b16_d16_hi v4, v%d offset:128" % T)
    prog_set(g, "6")
    wait_prog_c(g, "6")
    g("v_and_b32 v4, 1, v%d" % V_N)
    g("v_lshlrev_b32 v4, 9, v4")
    g("v_lshl_add_u32 v4, v%d, 4, v4" % V_KG)
    g("v_add_u32 v4, %d, v4" % QB)
    for s in range(8): g("ds_read_b128 v[%d:%d], v4 offset:%d" % (V_Q + 4 * s, V_Q + 4 * s + 3, s * 64))
    g.c("QK")
    for s in range(8):
        g("s_waitcnt lgkmcnt(%d)" % (7 - s))
        for r in range(4):
            g("v_mfma_f32_16x16x32_bf16 v[%d:%d], v[%d:%d], v[%d:%d], %s" % (V_S + 4 * r, V_S + 4 * r + 3, V_K + 32 * r + 4 * s, V_K + 32 * r + 4 * s + 3, V_Q + 4 * s, V_Q + 4 * s + 3, "0" if s == 0 else "v[%d:%d]" % (V_S + 4 * r, V_S + 4 * r + 3)))
    g.stamp(5)
    g.c("softmax")
    for k in range(0, 16, 2):
        g("v_cvt_pk_bf16_f32 v4, v%d, v%d" % (V_S + k, V_S + k + 1))
        g("v_lshlrev_b32 v%d, 16, v4" % (V_S + k))
        g("v_and_b32 v%d, s%d, v4" % (V_S + k + 1, S_HI))
    g("v_max3_f32 v4, v%d, v%d, v%d" % (V_S, V_S + 1, V_S + 2))
    for k in range(3, 15, 2): g("v_max3_f32 v4, v4, v%d, v%d" % (V_S + k, V_S + k + 1))
    g("v_max_f32 v4, v4, v%d" % (V_S + 15))
    xrow(g, "v_max_f32", [4], 5)
    g("v_and_b32 v6, 1, v%d" % V_N)
    g("v_lshlrev_b32 v6, 4, v6")
    g("v_add_u32 v6, %d, v6" % WM)
    g("s_lshl_b32 s41, s%d, 2" % S_CW)
    g("v_add_u32 v7, s41, v6")
    g("ds_write_b32 v7, v4")
    prog_set(g, "7")
    wait_prog_c(g, "7")
    g("ds_read_b128 v[%d:%d], v6" % (T, T + 3))
    g("s_waitcnt lgkmcnt(0)")
    g("v_max3_f32 v4, v%d, v%d, v%d" % (T, T + 1, T + 2))
    g("v_max_f32 v4, v4, v%d" % (T + 3))
    g("s_mov_b32 s%d, 0x3db8aa3b" % S_C)
    g("v_mul_f32 v5, s%d, v4" % S_C)
    for k in range(16):
        g("v_fma_f32 v%d, v%d, s%d, -v5" % (V_S + k, V_S + k, S_C))
    for k in range(16): g("v_exp_f32 v%d, v%d" % (V_S + k, V_S + k))
    g("v_add_f32 v8, v%d, v%d" % (V_S, V_S + 1))
    for k in range(2, 16): g("v_add_f32 v8, v8, v%d" % (V_S + k))
    xrow(g, "v_add_f32", [8], 9)
    g("ds_write_b32 v7, v8 offset:%d" % (WL - WM))
    g("v_and_b32 v9, 1, v%d" % V_N)
    g("v_lshlrev_b32 v9, 5, v9")
    g("v_lshl_add_u32 v9, v%d, 3, v9" % V_KG)
    g("v_add_u32 v9, %d, v9" % PB)
    g("s_lshl_b32 s41, s%d, 6" % S_CW)
    g("v_add_u32 v10, s41, v9")
    for r in range(4):
        g("v_cvt_pk_bf16_f32 v%d, v%d, v%d" % (T + 2 * r, V_S + 4 * r, V_S + 4 * r + 1))
        g("v_cvt_pk_bf16_f32 v%d, v%d, v%d" % (T + 2 * r + 1, V_S + 4 * r + 2, V_S + 4 * r + 3))
        g("ds_write_b64 v10, v[%d:%d] offset:%d" % (T + 2 * r, T + 2 * r + 1, r * 256))
    g("v_mov_b32 v3, v9")
    prog_set(g, "8")
    wait_prog_c(g, "8")
    sk = g.lab("NOST")
    g("s_cmp_lg_u32 s%d, 0" % S_CW)
    g("s_cbranch_scc1 " + sk)
    g("ds_read_b128 v[%d:%d], v6 offset:%d" % (T, T + 3, WL - WM))
    g("s_waitcnt lgkmcnt(0)")
    g("v_add_f32 v%d, v%d, v%d" % (T, T, T + 1))
    g("v_add_f32 v%d, v%d, v%d" % (T + 2, T + 2, T + 3))
    g("v_add_f32 v%d, v%d, v%d" % (T + 1, T, T + 2))
    g("v_mov_b32 v%d, v4" % T)
    g("v_mov_b32 v%d, v4" % (T + 2))
    g("v_mov_b32 v%d, v%d" % (T + 3, T + 1))
    tag4(g, T)
    g("s_lshl_b32 s41, s%d, 1" % S_KVH); g("s_add_u32 s41, s41, s%d" % S_B); g("s_lshl_b32 s41, s41, 4"); g("s_add_u32 s41, s41, s%d" % S_J)
    g("s_lshl_b32 s41, s41, 5"); g("s_add_u32 s41, s41, %d" % ST)
    g("v_lshlrev_b32 v5, 4, v0")
    g("v_add_u32 v5, s41, v5")
    g("s_mov_b64 exec, 3")
    g("global_store_dwordx4 v5, v[%d:%d], s[%d:%d] sc1" % (T, T + 3, S_WS, S_WS + 1))
    g("s_mov_b64 exec, -1")
    g(sk + ":")
    g.stamp(6)
    g.c("ffn down partial")
    sk = g.lab("NOFFN")
    g("s_cmp_eq_u32 s%d, 0" % S_D)
    g("s_cbranch_scc1 " + sk)
    sk2 = g.lab("NOH")
    g("s_cmp_ge_u32 s%d, 2" % S_CW)
    g("s_cbranch_scc1 " + sk2)
    poll(g, ldg, [V_G, V_G + 4], g.sleep_mid, T + 8, pre=True)
    strip(g, V_G, 8)
    T4(g, V_G); T4(g, V_G + 4)
    rnd_bf16(g, T, V_G); rnd_bf16(g, T + 4, V_G + 4)
    g("v_mul_f32 v5, v%d, v%d" % (T, T))
    g("v_mov_b32 v6, 0x3d372713")
    g("v_fma_f32 v5, v5, v6, 1.0")
    g("v_mul_f32 v5, v5, v%d" % T)
    g("v_mul_f32 v5, 0xc0135761, v5")
    g("v_exp_f32 v5, v5")
    g("v_add_f32 v5, 1.0, v5")
    g("v_rcp_f32 v5, v5")
    g("v_mul_f32 v5, v5, v%d" % T)
    rnd_bf16(g, 5, 5)
    g("v_mul_f32 v5, v5, v%d" % (T + 4))
    g("v_cvt_pk_bf16_f32 v5, v5, v5")
    g("s_lshl_b32 s41, s%d, 7" % S_CW); g("s_add_u32 s41, s41, %d" % HB)
    g("v_lshlrev_b32 v4, 3, v%d" % V_N)
    g("v_lshl_add_u32 v4, v%d, 1, v4" % V_KG)
    g("v_add_u32 v4, s41, v4")
    g("ds_write_b16 v4, v5")
    g(sk2 + ":")
    prog_set(g, "9")
    wait_prog_c(g, "9")
    g("s_add_u32 s41, s%d, 136" % S_BK)
    wait_landed(g, "s41")
    g("v_and_b32 v4, 1, v%d" % V_N)
    g("v_lshlrev_b32 v4, 7, v4")
    g("v_lshl_add_u32 v4, v%d, 3, v4" % V_KG)
    g("v_add_u32 v4, %d, v4" % HB)
    thin_tile16(g, 4, WD_T, 4, 0, T + 32, T)
    def part_addr(base, s_cb, s_row):
        g("s_lshl_b32 s41, s%d, 14" % s_cb)
        g("s_lshr_b32 s42, s%d, 1" % S_CW); g("s_lshl_b32 s42, s42, 12"); g("s_add_u32 s41, s41, s42")
        g("s_lshl_b32 s42, %s, 7" % s_row); g("s_add_u32 s41, s41, s42")
        g("s_and_b32 s42, s%d, 1" % S_CW); g("s_lshl_b32 s42, s42, 6"); g("s_add_u32 s41, s41, s42")
        g("s_add_u32 s41, s41, %d" % base)
        g("v_lshlrev_b32 v6, 13, v%d" % V_N)
        g("v_lshl_add_u32 v6, v%d, 4, v6" % V_KG)
        g("v_add_u32 v6, s41, v6")
    part_addr(YP, S_KVH, "s%d" % S_I)
    tag4(g, T + 32)
    store_n2(g, 6, T + 32)
    g(sk + ":")
    g.stamp(7)
    g.c("PV")
    g("v_lshrrev_b32 v8, 2, v%d" % V_N)
    g("v_lshl_add_u32 v8, v%d, 2, v8" % V_KG)
    g("v_and_b32 v9, 7, v8")
    g("v_lshlrev_b32 v8, 9, v8")
    g("v_and_b32 v%d, 3, v%d" % (T + 20, V_N))
    g("v_lshl_add_u32 v8, v%d, 3, v8" % (T + 20))
    g("s_lshl_b32 s41, s%d, 2" % S_CW)
    for mt in range(4):
        g("s_add_u32 s42, s41, %d" % mt)
        g("v_xor_b32 v%d, s42, v9" % (4 + mt))
        g("v_lshl_add_u32 v%d, v%d, 5, v8" % (4 + mt, 4 + mt))
    for k in range(16): g("v_mov_b32 v%d, 0" % (V_ACC + k))
    g("s_add_u32 s61, s%d, 8" % S_BV)
    def pv_loop(n):
        g("s_mov_b32 s62, %d" % n)
        lp = g.lab("PV")
        g(lp + ":")
        wait_landed(g, "s61")
        g("ds_read_b64 v[%d:%d], v3" % (T, T + 1))
        for mt in range(4): g("ds_read_b64_tr_b16 v[%d:%d], v%d" % (T + 2 + 2 * mt, T + 3 + 2 * mt, 4 + mt))
        for mt in range(4): g("v_add_u32 v%d, 8192, v%d" % (4 + mt, 4 + mt))
        g("v_add_u32 v3, 64, v3")
        g("s_add_u32 s61, s61, 8")
        g("s_sub_u32 s62, s62, 1")
        for mt in range(4):
            g("s_waitcnt lgkmcnt(%d)" % (3 - mt))
            g("v_mfma_f32_16x16x16_bf16 v[%d:%d], v[%d:%d], v[%d:%d], v[%d:%d]" % (V_ACC + 4 * mt, V_ACC + 4 * mt + 3, T + 2 + 2 * mt, T + 3 + 2 * mt, T, T + 1, V_ACC + 4 * mt, V_ACC + 4 * mt + 3))
        g("s_cmp_lg_u32 s62, 0")
        g("s_cbranch_scc1 " + lp)
    pv_loop(g.stat_at)
    fin = g.lab("PFIN"); jn = g.lab("PJN")
    g("s_cmp_eq_u32 s%d, 0" % S_O)
    g("s_cbranch_scc1 " + fin)
    g("s_lshl_b32 s41, s%d, 10" % S_KVH)
    g("s_lshr_b32 s42, s%d, 1" % S_RBL); g("s_lshl_b32 s42, s42, 4"); g("s_add_u32 s41, s41, s42")
    g("s_add_u32 s41, s41, %d" % ST)
    g("v_and_b32 v22, 31, v0")
    g("v_lshlrev_b32 v22, 5, v22")
    g("v_add_u32 v22, s41, v22")
    g("global_load_dwordx4 v[%d:%d], v22, s[%d:%d] sc1" % (V_ST, V_ST + 3, S_WS, S_WS + 1))
    g(fin + ":")
    g("s_lshl_b32 s41, s%d, 1" % S_KVH); g("s_add_u32 s41, s41, s%d" % S_B); g("s_lshl_b32 s41, s41, 4"); g("s_add_u32 s41, s41, s%d" % S_J)
    g("s_lshl_b32 s41, s41, 11")
    g("s_lshl_b32 s42, s%d, 8" % S_CW); g("s_add_u32 s41, s41, s42"); g("s_add_u32 s41, s41, %d" % OP)
    g("v_bfe_u32 v23, v0, 4, 1"); g("v_lshlrev_b32 v23, 10, v23"); g("v_lshl_add_u32 v23, v%d, 4, v23" % V_N); g("v_add_u32 v23, s41, v23")
    g("global_load_dwordx4 v[%d:%d], v23, s[%d:%d] sc1" % (V_G, V_G + 3, S_WS, S_WS + 1))
    g.stamp(8)
    pv_loop(16 - g.stat_at)
    g.stamp(9)
    g.c("publish o")
    g("s_lshl_b32 s41, s%d, 1" % S_KVH); g("s_add_u32 s41, s41, s%d" % S_B); g("s_lshl_b32 s41, s41, 4"); g("s_add_u32 s41, s41, s%d" % S_J)
    g("s_lshl_b32 s41, s41, 11")
    g("s_lshl_b32 s42, s%d, 8" % S_CW); g("s_add_u32 s41, s41, s42"); g("s_add_u32 s41, s41, %d" % OP)
    g("v_lshlrev_b32 v4, 10, v%d" % V_N)
    g("v_lshl_add_u32 v4, v%d, 4, v4" % V_KG)
    g("v_add_u32 v4, s41, v4")
    for mt in range(4): tag4(g, V_ACC + 4 * mt)
    g("s_mov_b64 exec, s[%d:%d]" % (S_EX, S_EX + 1))
    slow = g.lab("OSLOW"); dn = g.lab("ODONE")
    g("s_cmp_eq_u32 s%d, 0" % S_FAST)
    g("s_cbranch_scc1 " + slow)
    for mt in range(4):
        g("global_store_dwordx4 v4, v[%d:%d], s[%d:%d] offset:%d" % (V_ACC + 4 * mt, V_ACC + 4 * mt + 3, S_WS, S_WS + 1, mt * 64))
    g("s_branch " + dn)
    g(slow + ":")
    for mt in range(4):
        g("global_store_dwordx4 v4, v[%d:%d], s[%d:%d] offset:%d sc1" % (V_ACC + 4 * mt, V_ACC + 4 * mt + 3, S_WS, S_WS + 1, mt * 64))
    g(dn + ":")
    g("s_mov_b64 exec, -1")
    g.stamp(10)
    fin = g.lab("FIN2"); end = g.lab("CEND")
    g("s_cmp_eq_u32 s%d, 0" % S_O)
    g("s_cbranch_scc1 " + fin)
    g.c("gather o")
    g("s_lshl_b32 s41, s%d, 1" % S_KVH); g("s_lshr_b32 s42, s%d, 1" % S_CW); g("s_add_u32 s41, s41, s42"); g("s_lshl_b32 s41, s41, 15")
    g("s_lshl_b32 s42, s%d, 9" % S_RBL); g("s_add_u32 s41, s41, s42")
    g("s_and_b32 s42, s%d, 1" % S_CW); g("s_lshl_b32 s42, s42, 8"); g("s_add_u32 s41, s41, s42")
    g("s_add_u32 s41, s41, %d" % OP)
    g("v_lshlrev_b32 v4, 11, v%d" % V_KG)
    g("v_lshl_add_u32 v4, v%d, 4, v4" % V_N)
    g("v_add_u32 v4, s41, v4")
    for u in range(1, 4): g("v_add_u32 v%d, %d, v4" % (4 + u, 8192 * u))
    g("v_lshrrev_b32 v8, 3, v%d" % V_N); g("v_lshlrev_b32 v8, 5, v8")
    g("v_and_b32 v9, 3, v%d" % V_N); g("v_lshl_add_u32 v8, v9, 3, v8")
    g("v_bfe_u32 v9, v%d, 2, 1" % V_N); g("v_lshl_add_u32 v8, v9, 2, v8")
    g("v_add_u32 v8, v8, v%d" % V_KG); g("v_lshlrev_b32 v8, 1, v8")
    g("s_lshr_b32 s41, s%d, 1" % S_CW); g("s_lshl_b32 s41, s41, 8")
    g("s_and_b32 s42, s%d, 1" % S_CW); g("s_lshl_b32 s42, s42, 7"); g("s_add_u32 s41, s41, s42"); g("s_add_u32 s41, s41, %d" % OB)
    g("v_add_u32 v8, s41, v8")
    g("v_and_b32 v9, 1, v%d" % V_N); g("v_lshlrev_b32 v9, 8, v9"); g("v_lshl_add_u32 v9, v%d, 4, v9" % V_KG); g("v_add_u32 v9, %d, v9" % OB)
    g("v_mov_b32 v56, v22")
    g("s_lshl_b32 s45, s%d, 2" % S_KVH); g("s_add_u32 s45, s45, s%d" % S_RBL)
    def part_addr2():
        g("s_lshl_b32 s41, s%d, 14" % S_CB)
        g("s_lshr_b32 s42, s%d, 1" % S_CW); g("s_lshl_b32 s42, s42, 12"); g("s_add_u32 s41, s41, s42")
        g("s_lshl_b32 s42, s45, 7"); g("s_add_u32 s41, s41, s42")
        g("s_and_b32 s42, s%d, 1" % S_CW); g("s_lshl_b32 s42, s42, 6"); g("s_add_u32 s41, s41, s42")
        g("s_add_u32 s41, s41, %d" % SP)
        g("v_lshlrev_b32 v22, 13, v%d" % V_N)
        g("v_lshl_add_u32 v22, v%d, 4, v22" % V_KG)
        g("v_add_u32 v22, s41, v22")
    part_addr2()
    def ldo():
        for u in range(4): g("global_load_dwordx4 v[%d:%d], v%d, s[%d:%d] sc1" % (T + 4 * u, T + 4 * u + 3, 4 + u, S_WS, S_WS + 1))
    g.c("stats")
    def ld1(): g("global_load_dwordx4 v[%d:%d], v56, s[%d:%d] sc1" % (V_ST, V_ST + 3, S_WS, S_WS + 1))
    lp = g.lab("SL"); ex = g.lab("SX")
    g("s_waitcnt vmcnt(4)")
    g(lp + ":")
    g("v_xor_b32 v57, v%d, v%d" % (V_ST, V_T))
    for k in range(1, 4): g("v_bitop3_b32 v57, v%d, v%d, v57 bitop3:0xBE" % (V_ST + k, V_T + k))
    g("v_and_b32 v57, s%d, v57" % S_MASK)
    g("v_cmp_ne_u32 vcc, 0, v57")
    g("s_cbranch_vccz " + ex)
    budget_exit(g, ex)
    ld1()
    g("s_waitcnt vmcnt(0)")
    g("s_branch " + lp)
    g(ex + ":")
    Z = V_ST
    strip(g, Z, 2)
    g("v_and_b32 v%d, s%d, v%d" % (Z, S_HI, Z))
    g("v_mov_b32 v57, v%d" % Z)
    allreduce16(g, "v_max_f32", [57], 0)
    g("v_sub_f32 v57, v%d, v57" % Z)
    g("v_mul_f32 v57, s%d, v57" % S_C)
    g("v_exp_f32 v57, v57")
    g("v_mul_f32 v58, v57, v%d" % (Z + 1))
    allreduce16(g, "v_add_f32", [58], 0)
    g("v_rcp_f32 v58, v58")
    g("v_mul_f32 v57, v57, v58")
    g("s_lshr_b32 s41, s%d, 1" % S_CW); g("s_lshl_b32 s41, s41, 6")
    g("v_lshlrev_b32 v58, 2, v%d" % V_KG)
    g("v_add_u32 v58, s41, v58")
    for u in range(4):
        g("v_add_u32 v59, %d, v58" % (16 * u))
        g("ds_bpermute_b32 v%d, v59, v57" % (V_C + u))
    if g.pre_sleep: g("s_sleep %d" % g.pre_sleep)
    poll(g, ldo, [T, T + 4, T + 8, T + 12], g.sleep_tail, T + 16, diag=True)
    g("s_waitcnt lgkmcnt(0)")
    g.stamp(12)
    strip(g, T, 16)
    for k in range(4): g("v_mul_f32 v%d, v%d, v%d" % (T + k, T + k, V_C))
    for u in range(1, 4):
        for k in range(4): g("v_fma_f32 v%d, v%d, v%d, v%d" % (T + k, T + 4 * u + k, V_C + u, T + k))
    T4(g, T)
    g("v_cvt_pk_bf16_f32 v%d, v%d, v%d" % (T, T, T))
    g("ds_write_b16 v8, v%d" % T)
    g("s_waitcnt lgkmcnt(0)")
    g("s_barrier")
    g.stamp(13)
    A = V_Q
    for s in range(4):
        g("ds_read_b64_tr_b16 v[%d:%d], v%d offset:%d" % (A + 8 * s, A + 8 * s + 1, V_TR, WO_T + s * 4096))
        g("ds_read_b64_tr_b16 v[%d:%d], v%d offset:%d" % (A + 8 * s + 2, A + 8 * s + 3, V_TR, WO_T + s * 4096 + 2048))
        g("ds_read_b128 v[%d:%d], v9 offset:%d" % (A + 8 * s + 4, A + 8 * s + 7, s * 64))
    for s in range(4):
        g("s_waitcnt lgkmcnt(%d)" % (3 * (3 - s)))
        g("v_mfma_f32_16x16x32_bf16 v[%d:%d], v[%d:%d], v[%d:%d], %s" % (T, T + 3, A + 8 * s, A + 8 * s + 3, A + 8 * s + 4, A + 8 * s + 7, "0" if s == 0 else "v[%d:%d]" % (T, T + 3)))
    tag4(g, T)
    store_n2(g, 22, T)
    g.stamp(11)
    g("s_branch " + end)
    g(fin + ":")
    g("s_cmp_lg_u32 s%d, 0" % S_CW); g("s_cbranch_scc1 " + end)
    g("s_cmp_ge_u32 s%d, 28" % S_F); g("s_cbranch_scc1 " + end)
    g("s_cmp_ge_u32 s%d, 14" % S_F); g("s_cselect_b32 s42, 1, 0")
    g("s_mul_i32 s43, s42, 14"); g("s_sub_u32 s43, s%d, s43" % S_F)
    g("s_lshr_b32 s44, s43, 1")
    g("s_and_b32 s43, s43, 1")
    g("s_lshl_b32 s41, s44, 1"); g("s_add_u32 s41, s41, s42"); g("s_lshl_b32 s41, s41, 1"); g("s_add_u32 s41, s41, s43"); g("s_lshl_b32 s41, s41, 12")
    g("v_lshlrev_b32 v22, 4, v0")
    g("v_add_u32 v22, s41, v22")
    g("s_mul_i32 s42, s42, 448"); g("s_lshl_b32 s44, s44, 6"); g("s_add_u32 s42, s42, s44"); g("s_lshl_b32 s43, s43, 5"); g("s_add_u32 s42, s42, s43")
    g("v_and_b32 v23, 7, v0")
    g("v_lshl_add_u32 v23, v23, 2, v%d" % V_KG)
    g("v_add_u32 v23, s42, v23")
    g("v_lshlrev_b32 v23, 1, v23")
    g("global_load_ushort v11, v23, s[%d:%d]" % (S_X, S_X + 1))
    g("v_add_u32 v4, %d, v22" % YP)
    for k in range(4): g("v_mov_b32 v%d, 0" % (T + 12 + k))
    def ld4(last_mask):
        def f():
            for u in range(3): g("global_load_dwordx4 v[%d:%d], v4, s[%d:%d] offset:%d sc1" % (T + 4 * u, T + 4 * u + 3, S_WS, S_WS + 1, 1024 * u))
            if last_mask: g("s_mov_b32 exec_hi, 0")
            g("global_load_dwordx4 v[%d:%d], v4, s[%d:%d] offset:3072 sc1" % (T + 12, T + 15, S_WS, S_WS + 1))
            if last_mask: g("s_mov_b64 exec, -1")
        return f
    def red32(dst):
        strip(g, T, 16)
        for k in range(4):
            g("v_add_f32 v%d, v%d, v%d" % (T + k, T + k, T + 4 + k))
            g("v_add_f32 v%d, v%d, v%d" % (T + 8 + k, T + 8 + k, T + 12 + k))
        for k in range(4): g("v_add_f32 v%d, v%d, v%d" % (T + k, T + k, T + 8 + k))
        for k in range(4): g("v_add_f32_dpp v%d, v%d, v%d row_ror:8 row_mask:0xf bank_mask:0xf" % (T + k, T + k, T + k))
        T4(g, T)
        rnd_bf16(g, dst, T)
    poll(g, ld4("0xffffffff"), [T, T + 4, T + 8, T + 12], g.sleep_mid, T + 16, masked_last="0xffffffff")
    red32(10)
    g("v_mul_f32 v5, 0xbfb8aa3b, v10")
    g("v_exp_f32 v5, v5")
    g("v_add_f32 v5, 1.0, v5")
    g("v_rcp_f32 v5, v5")
    g("v_mul_f32 v10, v10, v5")
    rnd_bf16(g, 10, 10)
    g("v_lshlrev_b32 v11, 16, v11")
    g("v_add_u32 v4, %d, v22" % SP)
    poll(g, ld4(None), [T, T + 4, T + 8, T + 12], g.sleep_tail, T + 16, diag=True)
    g.stamp(12)
    red32(5)
    g("v_mul_f32 v5, v5, v10")
    rnd_bf16(g, 5, 5)
    g("v_add_f32 v5, v5, v11")
    g("v_cvt_pk_bf16_f32 v5, v5, v5")
    g("s_mov_b32 s42, 0x00ff00ff"); g("s_mov_b32 s43, 0x00ff00ff")
    g("s_mov_b64 exec, s[42:43]")
    g("global_store_short v23, v5, s[%d:%d]" % (S_OUT, S_OUT + 1))
    g("s_mov_b64 exec, -1")
    g.stamp(11)
    g("s_cmp_lg_u32 s%d, 0" % S_F); g("s_cbranch_scc1 " + end)
    g("v_mov_b32 v4, 0"); g("v_mov_b32 v5, s%d" % S_E)
    g("s_mov_b64 exec, 1")
    g("global_store_dword v4, v5, s[%d:%d] sc1" % (S_WS, S_WS + 1))
    g("s_mov_b64 exec, -1")
    g(end + ":")
    if g.stamps: write_stamps(g, 0)
    g("s_endpgm")

def build(W=24, stamps=False, sleep_mid=2, sleep_tail=0, fast=True, **kw):
    g = G(W=W, stamps=stamps, sleep_mid=sleep_mid, sleep_tail=sleep_tail, fast=fast)
    for k_, v_ in kw.items(): setattr(g, k_, v_)
    g("s_cmp_ge_u32 s2, 256")
    g("s_cbranch_scc1 L_exit")
    g.stamp(0)
    g("s_load_dwordx8 s[4:11], s[0:1], 0")
    g("s_load_dwordx2 s[12:13], s[0:1], 32")
    g("s_load_dwordx4 s[16:19], s[0:1], 48")
    g("s_load_dwordx4 s[20:23], s[0:1], 64")
    g("s_load_dwordx2 s[24:25], s[0:1], 88")
    g("v_lshrrev_b32 v1, 6, v0")
    g("v_and_b32 v0, 63, v0")
    g("s_and_b32 s%d, s2, 7" % S_KVH)
    g("v_readfirstlane_b32 s%d, v1" % S_WAVE)
    g("s_lshr_b32 s%d, s2, 3" % S_I)
    g("s_lshr_b32 s%d, s%d, 4" % (S_B, S_I))
    g("s_and_b32 s%d, s%d, 15" % (S_J, S_I))
    g("s_cmp_lt_u32 s%d, 28" % S_I)
    g("s_cselect_b32 s%d, 14, 0" % S_G)
    g("s_cselect_b32 s%d, 16, 0" % S_O)
    g("s_cselect_b32 s%d, 8, 0" % S_D)
    g("s_cmp_lt_u32 s%d, 7" % S_KVH)
    g("s_cselect_b32 s%d, s%d, 0" % (S_D, S_D))
    g("s_add_u32 s%d, s%d, 14" % (S_BK, S_G))
    g("s_add_u32 s%d, s%d, s%d" % (S_BV, S_BK, S_D))
    g("s_add_u32 s%d, s%d, 128" % (S_BV, S_BV))
    g("s_mul_i32 s%d, s%d, 37" % (S_RBL, S_I))
    g("s_lshr_b32 s%d, s%d, 8" % (S_RBL, S_RBL))
    g("s_mul_i32 s41, s%d, 7" % S_RBL)
    g("s_sub_u32 s%d, s%d, s41" % (S_CB, S_I))
    g("s_lshl_b32 s%d, s%d, 2" % (S_F, S_KVH))
    g("s_add_u32 s%d, s%d, s%d" % (S_F, S_F, S_I))
    g("s_sub_u32 s%d, s%d, 28" % (S_F, S_F))
    g("s_mov_b32 s%d, %d" % (S_BUD, 1 << 18))
    g("s_mov_b32 s%d, 0xC0000000" % S_LAND)
    if stamps:
        for k in range(1, 16): g("s_mov_b64 s[%d:%d], 0" % (64 + 2 * k, 65 + 2 * k))
    g("s_waitcnt lgkmcnt(0)")
    g("s_cmp_eq_u32 s%d, 0" % S_WAVE)
    g("s_cbranch_scc0 L_compute")
    loader(g)
    g("L_compute:")
    compute(g)
    g("L_exit:")
    g("s_endpgm")
    lines = hz.fix(g.l)
    name = KN + "_kernel"
    s = HDR + "; @launch grid=(256,1,1) block=(320,1,1) lds=%d\n" % LDS_BYTES
    s += '.amdgcn_target "amdgcn-amd-amdhsa--gfx950"\n.text\n.globl %s\n.p2align 8\n.type %s,@function\n%s:\n' % (name, name, name)
    s += "\n".join(lines) + "\n"
    s += '.section .rodata,"a"\n.p2align 6\n.amdhsa_kernel %s\n' % name
    s += "  .amdhsa_next_free_vgpr 256\n  .amdhsa_next_free_sgpr 102\n  .amdhsa_accum_offset 256\n"
    s += "  .amdhsa_group_segment_fixed_size 0\n  .amdhsa_kernarg_size 96\n  .amdhsa_user_sgpr_count 2\n"
    s += "  .amdhsa_user_sgpr_kernarg_segment_ptr 1\n  .amdhsa_system_sgpr_workgroup_id_x 1\n"
    s += "  .amdhsa_float_denorm_mode_32 3\n"
    s += ".end_amdhsa_kernel\n"
    return s

if __name__ == "__main__":
    ap = argparse.ArgumentParser()
    ap.add_argument("-o", default="k.s")
    ap.add_argument("--W", type=int, default=24)
    ap.add_argument("--stamps", action="store_true")
    ap.add_argument("--sleep", type=int, default=2)
    ap.add_argument("--sleept", type=int, default=0)
    ap.add_argument("--nofast", action="store_true")
    ap.add_argument("--set", action="append", default=[])
    a = ap.parse_args()
    kw = {x.split("=")[0]: int(x.split("=")[1]) for x in a.set}
    open(a.o, "w").write(build(W=a.W, stamps=a.stamps, sleep_mid=a.sleep, sleep_tail=a.sleept, fast=not a.nofast, **kw))
```

```python
import sys, argparse
from asmlib import HDR, KN
import hz

KV = 0
AUX = 131072
WQ_T = 0; GU_T = 14336; WD_T = 0; WO_T = 8192
MISC = 159744
XN = MISC; PB = MISC
QB = MISC + 1792; OB = QB
HB = MISC + 2816
WM = MISC + 3072; WL = MISC + 3104
PROG = MISC + 3136
LAND = MISC + 3200
JUNK = MISC + 3456
LDS_BYTES = 163840
QP = 0x1000; GP = 0x21000; ST = 0x3D000; XC = 0x3F000; YP = 0x40000; SP = 0x60000; OP = 0x80000
STAMP = 512 << 20
TAGMASK = 0x3FF; TAGMID = 0x200

S_X, S_K, S_V, S_WQ, S_WO, S_WG, S_WU, S_WD, S_OUT, S_WS = 4, 6, 8, 10, 12, 16, 18, 20, 22, 24
S_KVH, S_I, S_B, S_J, S_WAVE, S_CW = 26, 27, 28, 29, 30, 31
S_E = 32
S_G, S_D, S_O = 34, 35, 36
S_BK, S_BV = 37, 38
S_MASK = 39; S_BUD = 40
S_RBL, S_CB, S_F, S_XCC = 50, 51, 52, 53
S_EX = 54
S_C = 56; S_HI = 57; S_FAST = 59; S_LAND = 60
S_THR, S_CNT = 61, 62
V_N, V_KG = 1, 2
V_T = 12
V_MID, V_PW, V_PR, V_LR, V_TR, V_F = 16, 17, 18, 19, 20, 21
T = 24
V_ST = 40
V_G = 44
V_C = 52
V_X = 56
V_W = 60
V_Q = 64
V_S = 96
V_ACC = 112
V_K = 128
A_PUB, A_G0, A_OBW, A_OBR, A_SP, A_STA, A_OUT, A_PART = 128, 129, 133, 134, 135, 136, 137, 138

class G:
    def __init__(self, **kw):
        self.l = []; self.n = 0
        self.W = 32; self.stamps = False; self.sleep_mid = 8; self.sleep_tail = 2; self.sleep_fin = 0
        self.fast = 1; self.stat_at = 12; self.q_issue_at = 2; self.dbgspan = 0; self.lastbar = 1; self.wbl2 = 0; self.ldpre = -1; self.selpoll = 1; self.sleep_lds = 0; self.nostrip = 1
        for k, v in kw.items(): setattr(self, k, v)
    def __call__(self, s):
        for x in s.split("\n"):
            x = x.strip()
            if x.startswith("global_") and getattr(self, "cat", None): x += " ; cat=" + self.cat
            self.l.append(x if x.endswith(":") else "  " + x)
    def lab(self, b="L"):
        self.n += 1; return "%s_%d" % (b, self.n)
    def c(self, s): self.l.append("  ; " + s)
    def stamp(self, k):
        if self.stamps: self("s_memrealtime s[%d:%d]" % (64 + 2 * k, 65 + 2 * k))

def budget_exit(g, lab):
    g("s_cmp_eq_u32 s%d, 0" % S_BUD)
    g("s_cbranch_scc1 %s" % lab)
    g("s_sub_u32 s%d, s%d, 1" % (S_BUD, S_BUD))

def write_stamps(g):
    g("s_waitcnt lgkmcnt(0)")
    g("s_mul_i32 s41, s2, 5")
    g("s_add_u32 s41, s41, s%d" % S_WAVE)
    g("s_lshl_b32 s41, s41, 7")
    g("s_add_u32 s41, s41, %d" % STAMP)
    g("v_mov_b32 v100, s41")
    for q in range(8):
        for k in range(4): g("v_mov_b32 v%d, s%d" % (104 + k, 64 + 4 * q + k))
        g("s_mov_b64 exec, 1")
        g("global_store_dwordx4 v100, v[104:107], s[%d:%d] offset:%d" % (S_WS, S_WS + 1, 16 * q))
        g("s_mov_b64 exec, -1")
        g("s_nop 1")

def loader(g):
    W = g.W
    g.c("================= loader wave =================")
    g("s_setprio 3")
    g("v_lshlrev_b32 v16, 2, v0")
    g("v_add_u32 v16, %d, v16" % LAND)
    g("v_mov_b32 v5, 0xC0000000")
    g("ds_write_b32 v16, v5")
    g("v_mov_b32 v17, %d" % PROG)
    g("v_mov_b32 v6, 0"); g("v_mov_b32 v7, 0"); g("v_mov_b32 v8, 0"); g("v_mov_b32 v9, 0")
    g("ds_write_b128 v17, v[6:9]")
    g("v_lshrrev_b32 v2, 3, v0")
    g("v_and_b32 v3, 7, v0")
    g("v_lshrrev_b32 v4, 4, v0")
    g("v_lshlrev_b32 v4, 1, v4")
    g("v_xor_b32 v3, v3, v4")
    g("v_lshlrev_b32 v3, 4, v3")
    g("v_lshl_add_u32 v5, v2, 13, v3")
    g("s_lshr_b32 s41, s%d, 3" % S_I)
    g("s_mul_i32 s41, s41, %d" % (112 * 8192))
    g("s_lshl_b32 s42, s%d, 10" % S_KVH)
    g("s_add_u32 s41, s41, s42")
    g("s_and_b32 s42, s%d, 7" % S_I)
    g("s_lshl_b32 s42, s42, 7")
    g("s_add_u32 s41, s41, s42")
    g("s_mov_b32 m0, %d" % (AUX + WQ_T))
    g("s_mov_b32 s46, 14")
    g("s_waitcnt lgkmcnt(0)")
    g("s_add_u32 s44, s%d, s41" % S_WQ)
    g("s_addc_u32 s45, s%d, 0" % (S_WQ + 1))
    lp = g.lab("WQ")
    g(lp + ":")
    g("global_load_lds_dwordx4 v5, s[44:45] nt")
    g("s_add_u32 s44, s44, 65536")
    g("s_addc_u32 s45, s45, 0")
    g("s_add_u32 m0, m0, 1024")
    g("s_sub_u32 s46, s46, 1")
    g("s_cmp_lg_u32 s46, 0")
    g("s_cbranch_scc1 " + lp)
    g("s_barrier")
    g("v_mul_u32_u24 v6, 3584, v2")
    g("v_add_u32 v6, v6, v3")
    g("v_mul_u32_u24 v7, 896, v2")
    g("v_add_u32 v7, v7, v3")
    sk = g.lab("NOGU")
    g("s_cmp_eq_u32 s%d, 0" % S_G)
    g("s_cbranch_scc1 " + sk)
    g("s_and_b32 s41, s%d, 1" % S_KVH)
    g("s_cmp_eq_u32 s41, 0")
    g("s_cselect_b32 s44, s%d, s%d" % (S_WG, S_WU))
    g("s_cselect_b32 s45, s%d, s%d" % (S_WG + 1, S_WU + 1))
    g("s_lshr_b32 s41, s%d, 1" % S_KVH)
    g("s_mul_i32 s41, s41, %d" % (112 * 3584))
    g("s_lshl_b32 s42, s%d, 7" % S_I)
    g("s_add_u32 s41, s41, s42")
    g("s_add_u32 s44, s44, s41")
    g("s_addc_u32 s45, s45, 0")
    g("s_mov_b32 m0, %d" % (AUX + GU_T))
    g("s_mov_b32 s46, 14")
    lp = g.lab("GU")
    g(lp + ":")
    g("global_load_lds_dwordx4 v6, s[44:45] nt")
    g("s_add_u32 s44, s44, %d" % (8 * 3584))
    g("s_addc_u32 s45, s45, 0")
    g("s_add_u32 m0, m0, 1024")
    g("s_sub_u32 s46, s46, 1")
    g("s_cmp_lg_u32 s46, 0")
    g("s_cbranch_scc1 " + lp)
    g(sk + ":")
    g("v_lshrrev_b32 v8, 5, v0")
    g("v_and_b32 v9, 31, v0")
    g("v_lshlrev_b32 v10, 1, v8")
    g("v_xor_b32 v9, v9, v10")
    g("v_lshlrev_b32 v9, 4, v9")
    g("v_lshlrev_b32 v8, 9, v8")
    for u in range(4):
        g("v_xor_b32 v%d, %d, v9" % (12 + u, u * 64))
        g("v_add_u32 v%d, v%d, v8" % (12 + u, 12 + u))
    g("s_lshl_b32 s41, s%d, 3" % S_B)
    g("s_add_u32 s41, s41, s%d" % S_KVH)
    g("s_lshl_b32 s41, s41, 24")
    g("s_add_u32 s41, s41, %d" % (28672 * 512))
    g("s_lshl_b32 s42, s%d, 13" % S_J)
    g("s_add_u32 s41, s41, s42")
    g("s_add_u32 s44, s%d, s41" % S_K)
    g("s_addc_u32 s45, s%d, 0" % (S_K + 1))
    g("s_add_u32 s48, s%d, s41" % S_V)
    g("s_addc_u32 s49, s%d, 0" % (S_V + 1))
    g("s_add_u32 s47, s%d, 14" % S_G)
    g("s_mov_b32 m0, %d" % KV)
    def tile(sb):
        for u in range(8):
            if u == 4:
                g("s_add_u32 s%d, s%d, 4096" % (sb, sb)); g("s_addc_u32 s%d, s%d, 0" % (sb + 1, sb + 1)); g("s_add_u32 m0, m0, 4096"); g("s_nop 0")
            g("global_load_lds_dwordx4 v%d, s[%d:%d] offset:%d nt" % (12 + (u & 3), sb, sb + 1, (u & 3) * 1024))
        g("s_add_u32 s%d, s%d, %d" % (sb, sb, 131072 - 4096)); g("s_addc_u32 s%d, s%d, 0" % (sb + 1, sb + 1)); g("s_add_u32 m0, m0, 4096")
        g("s_add_u32 s47, s47, 8")
    def flag(n):
        g("s_waitcnt vmcnt(%d)" % n)
        g("s_sub_u32 s46, s47, %d" % n)
        g("v_mov_b32 v18, s46")
        g("ds_write_b32 v16, v18")
    tile(44)
    has = g.lab("HASGU"); j2 = g.lab("J")
    g("s_cmp_eq_u32 s%d, 0" % S_G)
    g("s_cbranch_scc0 " + has)
    flag(8)
    tile(44)
    g("s_branch " + j2)
    g(has + ":")
    flag(22)
    tile(44)
    flag(16)
    g(j2 + ":")
    lp = g.lab("KL")
    g("s_mov_b32 s43, 14")
    g(lp + ":")
    tile(44)
    flag(W)
    g("s_sub_u32 s43, s43, 1")
    g("s_cmp_lg_u32 s43, 0")
    g("s_cbranch_scc1 " + lp)
    g.stamp(1)
    def wait_prog(sthr):
        lp = g.lab("WP"); ex = g.lab("WPX")
        g("s_cmp_ge_i32 s%d, %s" % (S_LAND, sthr))
        g("s_cbranch_scc1 " + ex)
        g(lp + ":")
        g("ds_read_b128 v[20:23], v17")
        g("s_waitcnt lgkmcnt(0)")
        g("v_min3_i32 v20, v20, v21, v22")
        g("v_min_i32 v20, v20, v23")
        g("v_readfirstlane_b32 s%d, v20" % S_LAND)
        g("s_cmp_ge_i32 s%d, %s" % (S_LAND, sthr))
        g("s_cbranch_scc1 " + ex)
        budget_exit(g, ex)
        g("s_branch " + lp)
        g(ex + ":")
    def rows896(n, ptr, lds):
        g("s_add_u32 s58, s%d, s41" % ptr)
        g("s_addc_u32 s59, s%d, 0" % (ptr + 1))
        g("s_mov_b32 m0, %d" % lds)
        g("s_mov_b32 s46, %d" % n)
        lp = g.lab("RW")
        g(lp + ":")
        g("global_load_lds_dwordx4 v7, s[58:59] nt")
        g("s_add_u32 s58, s58, 7168")
        g("s_addc_u32 s59, s59, 0")
        g("s_add_u32 m0, m0, 1024")
        g("s_sub_u32 s46, s46, 1")
        g("s_cmp_lg_u32 s46, 0")
        g("s_cbranch_scc1 " + lp)
        g("s_add_u32 s47, s47, %d" % n)
    sk = g.lab("NOWD")
    g("s_cmp_eq_u32 s%d, 0" % S_D)
    g("s_cbranch_scc1 " + sk)
    wait_prog("1")
    g("s_mul_i32 s41, s%d, %d" % (S_I, 64 * 896))
    g("s_lshl_b32 s42, s%d, 7" % S_KVH)
    g("s_add_u32 s41, s41, s42")
    rows896(8, S_WD, AUX + WD_T)
    flag(W)
    g(sk + ":")
    g("s_mov_b32 m0, %d" % KV)
    lp = g.lab("VL")
    g("s_mov_b32 s43, 0")
    g(lp + ":")
    g("s_lshr_b32 s41, s43, 2")
    g("s_add_u32 s41, s41, 2")
    wait_prog("s41")
    tile(48)
    if g.ldpre >= 0:
        sk = g.lab("NPT")
        g("s_cmp_lg_u32 s43, %d" % g.ldpre)
        g("s_cbranch_scc1 " + sk)
        g("s_lshl_b32 s41, s%d, 1" % S_KVH); g("s_add_u32 s41, s41, s%d" % S_B); g("s_lshl_b32 s41, s41, 4"); g("s_add_u32 s41, s41, s%d" % S_J)
        g("s_lshl_b32 s41, s41, 11"); g("s_add_u32 s41, s41, %d" % OP)
        g("v_lshlrev_b32 v19, 4, v0"); g("v_add_u32 v19, s41, v19")
        g("global_load_dwordx4 v[24:27], v19, s[%d:%d]" % (S_WS, S_WS + 1))
        g("global_load_dwordx4 v[28:31], v19, s[%d:%d] offset:1024" % (S_WS, S_WS + 1))
        g(sk + ":")
    flag(W)
    g("s_add_u32 s43, s43, 1")
    g("s_cmp_lg_u32 s43, 16")
    g("s_cbranch_scc1 " + lp)
    g.stamp(2)
    sk = g.lab("NOWO"); dn = g.lab("LDONE")
    g("s_cmp_eq_u32 s%d, 0" % S_O)
    g("s_cbranch_scc1 " + sk)
    g("s_lshl_b32 s41, s%d, 2" % S_KVH)
    g("s_add_u32 s41, s41, s%d" % S_RBL)
    g("s_mul_i32 s41, s41, %d" % (128 * 896))
    g("s_lshl_b32 s42, s%d, 7" % S_CB)
    g("s_add_u32 s41, s41, s42")
    rows896(16, S_WO, AUX + WO_T)
    last = 8 if g.lastbar else 0
    for n in range(W - 8 + 16, 15 + last, -8): flag(n)
    if g.lastbar:
        g("s_waitcnt vmcnt(16)")
        g("s_barrier")
    flag(0)
    g("s_branch " + dn)
    g(sk + ":")
    for n in range(W - 8, last - 1, -8): flag(n)
    if g.lastbar:
        g("s_waitcnt vmcnt(0)")
        g("s_barrier")
    g(dn + ":")
    g.stamp(3)
    g("s_waitcnt lgkmcnt(0)")
    if g.stamps: write_stamps(g)
    g("s_endpgm")

def wait_landed(g, sthr):
    lp = g.lab("WL"); ex = g.lab("WLX")
    g("s_cmp_ge_i32 s%d, %s" % (S_LAND, sthr))
    g("s_cbranch_scc1 " + ex)
    g(lp + ":")
    g("ds_read_b32 v%d, v%d" % (V_F, V_LR))
    g("s_waitcnt lgkmcnt(0)")
    g("v_readfirstlane_b32 s%d, v%d" % (S_LAND, V_F))
    g("s_cmp_ge_i32 s%d, %s" % (S_LAND, sthr))
    g("s_cbranch_scc1 " + ex)
    budget_exit(g, ex)
    if g.sleep_lds: g("s_sleep %d" % g.sleep_lds)
    g("s_branch " + lp)
    g(ex + ":")
def prog_set(g, val):
    g("v_mov_b32 v%d, %s" % (V_F, val))
    g("ds_write_b32 v%d, v%d" % (V_PW, V_F))
def wait_prog_c(g, val):
    lp = g.lab("WP"); ex = g.lab("WPX")
    t = V_W
    g(lp + ":")
    g("ds_read_b128 v[%d:%d], v%d" % (t, t + 3, V_PR))
    g("s_waitcnt lgkmcnt(0)")
    g("v_min3_i32 v%d, v%d, v%d, v%d" % (t, t, t + 1, t + 2))
    g("v_min_i32 v%d, v%d, v%d" % (t, t, t + 3))
    g("v_cmp_gt_i32 vcc, %s, v%d" % (val, t))
    g("s_cbranch_vccz " + ex)
    budget_exit(g, ex)
    g("s_branch " + lp)
    g(ex + ":")
def tag4(g, r):
    for k in range(4): g("v_bfi_b32 v%d, s%d, v%d, v%d" % (r + k, S_MASK, V_T + k, r + k))
def strip(g, r, n):
    for k in range(n): g("v_bfi_b32 v%d, s%d, v%d, v%d" % (r + k, S_MASK, V_MID, r + k))
def poll(g, emit_loads, regs, sleep, acc, masked_last=False, pre=False, count=False):
    lp = g.lab("PL"); ex = g.lab("PX"); ck = g.lab("PC")
    if count and g.stamps: g("s_mov_b32 s63, 0")
    if pre: g("s_branch " + ck)
    g(lp + ":")
    emit_loads()
    g(ck + ":")
    g("s_waitcnt vmcnt(0)")
    if count and g.stamps: g("s_add_u32 s63, s63, 1")
    first = True
    for idx, r in enumerate(regs):
        if masked_last and idx == len(regs) - 1: g("s_mov_b32 exec_hi, 0")
        for k in range(4):
            if first:
                g("v_xor_b32 v%d, v%d, v%d" % (acc, r + k, V_T + k)); first = False
            else:
                g("v_bitop3_b32 v%d, v%d, v%d, v%d bitop3:0xBE" % (acc, r + k, V_T + k, acc))
    if masked_last: g("s_mov_b64 exec, -1")
    g("v_and_b32 v%d, s%d, v%d" % (acc, S_MASK, acc))
    g("v_cmp_ne_u32 vcc, 0, v%d" % acc)
    g("s_cbranch_vccz " + ex)
    budget_exit(g, ex)
    if sleep: g("s_sleep %d" % sleep)
    g("s_branch " + lp)
    g(ex + ":")
    if count and g.stamps:
        g("s_waitcnt lgkmcnt(0)")
        g("s_mul_i32 s94, s63, 100"); g("s_add_u32 s94, s94, s64"); g("s_addc_u32 s95, s65, 0")
def poll_sel(g, loads, sleep, acc, count=False):
    lp = g.lab("QL"); ex = g.lab("QX")
    if count and g.stamps: g("s_mov_b32 s63, 0")
    g(lp + ":")
    g("s_waitcnt vmcnt(0)")
    if count and g.stamps: g("s_add_u32 s63, s63, 1")
    for u, (r, emit) in enumerate(loads):
        g("v_xor_b32 v%d, v%d, v%d" % (acc + u, r, V_T))
        for k in range(1, 4): g("v_bitop3_b32 v%d, v%d, v%d, v%d bitop3:0xBE" % (acc + u, r + k, V_T + k, acc + u))
    g("v_or3_b32 v%d, v%d, v%d, v%d" % (V_F, acc, acc + 1, acc + 2))
    g("v_or_b32 v%d, v%d, v%d" % (V_F, V_F, acc + 3))
    g("v_and_b32 v%d, s%d, v%d" % (V_F, S_MASK, V_F))
    g("v_cmp_ne_u32 vcc, 0, v%d" % V_F)
    g("s_cbranch_vccz " + ex)
    g("s_mov_b32 s46, 0")
    for u, (r, emit) in enumerate(loads):
        g("v_and_b32 v%d, s%d, v%d" % (acc + u, S_MASK, acc + u))
        g("v_cmp_ne_u32 vcc, 0, v%d" % (acc + u))
        g("s_cmp_lg_u64 vcc, 0")
        g("s_cselect_b32 s47, %d, 0" % (1 << u))
        g("s_or_b32 s46, s46, s47")
    budget_exit(g, ex)
    if sleep: g("s_sleep %d" % sleep)
    for u, (r, emit) in enumerate(loads):
        sk = g.lab("QS")
        g("s_bitcmp1_b32 s46, %d" % u)
        g("s_cbranch_scc0 " + sk)
        emit()
        g(sk + ":")
    g("s_branch " + lp)
    g(ex + ":")
    if count and g.stamps:
        g("s_waitcnt lgkmcnt(0)")
        g("s_mul_i32 s94, s63, 100"); g("s_add_u32 s94, s94, s64"); g("s_addc_u32 s95, s65, 0")
def T4(g, r):
    g("v_permlane16_swap_b32 v%d, v%d" % (r, r + 1))
    g("v_permlane16_swap_b32 v%d, v%d" % (r + 2, r + 3))
    g("v_add_f32 v%d, v%d, v%d" % (r, r, r + 1))
    g("v_add_f32 v%d, v%d, v%d" % (r + 2, r + 2, r + 3))
    g("v_permlane32_swap_b32 v%d, v%d" % (r, r + 2))
    g("v_add_f32 v%d, v%d, v%d" % (r, r, r + 2))
def rnd_bf16(g, dst, src):
    g("v_cvt_pk_bf16_f32 v%d, v%d, v%d" % (dst, src, src))
    g("v_and_b32 v%d, s%d, v%d" % (dst, S_HI, dst))
def allreduce16(g, op, regs):
    for sh in (8, 4, 2, 1):
        for r in regs: g("%s_dpp v%d, v%d, v%d row_ror:%d row_mask:0xf bank_mask:0xf" % (op, r, r, r, sh))
def xrow(g, op, regs, tmp):
    for w in (16, 32):
        for i, r in enumerate(regs): g("v_mov_b32 v%d, v%d" % (tmp + i, r))
        for i, r in enumerate(regs): g("v_permlane%d_swap_b32 v%d, v%d" % (w, r, tmp + i))
        for i, r in enumerate(regs): g("%s v%d, v%d, v%d" % (op, r, r, tmp + i))
def thin_tile16(g, nsteps, tr_off, vb, acc, tmp):
    for s in range(nsteps):
        g("ds_read_b64_tr_b16 v[%d:%d], v%d offset:%d" % (tmp + 4 * s, tmp + 4 * s + 1, V_TR, tr_off + s * 2048))
        g("ds_read_b64 v[%d:%d], v%d offset:%d" % (tmp + 4 * s + 2, tmp + 4 * s + 3, vb, s * 32))
    for s in range(nsteps):
        g("s_waitcnt lgkmcnt(%d)" % (2 * (nsteps - 1 - s)))
        g("v_mfma_f32_16x16x16_bf16 v[%d:%d], v[%d:%d], v[%d:%d], %s" % (acc, acc + 3, tmp + 4 * s, tmp + 4 * s + 1, tmp + 4 * s + 2, tmp + 4 * s + 3, "0" if s == 0 else "v[%d:%d]" % (acc, acc + 3)))
def store_n2(g, vaddr, r):
    g("s_mov_b64 exec, s[%d:%d]" % (S_EX, S_EX + 1))
    g("global_store_dwordx4 v%d, v[%d:%d], s[%d:%d] sc1" % (vaddr, r, r + 3, S_WS, S_WS + 1))
    g("s_mov_b64 exec, -1")
def gld(g, dst, vaddr, off=0, flags="sc1"):
    g("global_load_dwordx4 v[%d:%d], v%d, s[%d:%d]%s %s" % (dst, dst + 3, vaddr, S_WS, S_WS + 1, (" offset:%d" % off) if off else "", flags))
def part_addr(g, dst, base, s_cb, s_row):
    g("s_lshl_b32 s41, s%d, 14" % s_cb)
    g("s_lshr_b32 s42, s%d, 1" % S_CW); g("s_lshl_b32 s42, s42, 12"); g("s_add_u32 s41, s41, s42")
    g("s_lshl_b32 s42, s%d, 7" % s_row); g("s_add_u32 s41, s41, s42")
    g("s_and_b32 s42, s%d, 1" % S_CW); g("s_lshl_b32 s42, s42, 6"); g("s_add_u32 s41, s41, s42")
    g("s_add_u32 s41, s41, %d" % base)
    g("v_lshlrev_b32 v%d, 13, v%d" % (dst, V_N))
    g("v_lshl_add_u32 v%d, v%d, 4, v%d" % (dst, V_KG, dst))
    g("v_add_u32 v%d, s41, v%d" % (dst, dst))

def compute(g):
    g.c("================= compute waves =================")
    if getattr(g, "loaderonly", 0):
        g("s_waitcnt lgkmcnt(0)")
        g("s_barrier")
        g("v_mov_b32 v4, %d" % PROG); g("v_mov_b32 v8, 100"); g("v_mov_b32 v9, 100"); g("v_mov_b32 v10, 100"); g("v_mov_b32 v11, 100")
        g("ds_write_b128 v4, v[8:11]")
        g("s_waitcnt lgkmcnt(0)")
        if g.lastbar: g("s_barrier")
        if g.stamps: write_stamps(g)
        g("s_endpgm")
        return
    g("s_sub_u32 s%d, s%d, 1" % (S_CW, S_WAVE))
    g("v_min_u32 v3, 55, v0")
    g("v_lshlrev_b32 v3, 4, v3")
    g("v_and_b32 v%d, 15, v0" % V_N)
    g("v_lshrrev_b32 v%d, 4, v0" % V_KG)
    g("s_mov_b32 s%d, %d" % (S_MASK, TAGMASK))
    g("s_mov_b32 s%d, 0xffff0000" % S_HI)
    g("s_mov_b32 s%d, 0x00030003" % S_EX); g("s_mov_b32 s%d, 0x00030003" % (S_EX + 1))
    g("s_mov_b32 s%d, 0x3db8aa3b" % S_C)
    g("s_waitcnt lgkmcnt(0)")
    g("global_load_dwordx4 v[%d:%d], v3, s[%d:%d]" % (T, T + 3, S_X, S_X + 1))
    g("global_load_dwordx4 v[%d:%d], v3, s[%d:%d] offset:896" % (T + 4, T + 7, S_X, S_X + 1))
    g("s_load_dwordx2 s[%d:%d], s[%d:%d], 0" % (S_E, S_E + 1, S_WS, S_WS + 1))
    g("v_mov_b32 v%d, %d" % (V_MID, TAGMID))
    g("v_mov_b32 v%d, %d" % (V_PR, PROG))
    g("v_mov_b32 v%d, %d" % (V_LR, LAND))
    g("v_lshlrev_b32 v4, 2, v0")
    g("v_add_u32 v4, %d, v4" % JUNK)
    g("s_lshl_b32 s41, s%d, 2" % S_CW)
    g("s_add_u32 s41, s41, %d" % PROG)
    g("v_mov_b32 v5, s41")
    g("v_cmp_eq_u32 vcc, 0, v0")
    g("v_cndmask_b32 v%d, v4, v5, vcc" % V_PW)
    g("v_lshrrev_b32 v4, 2, v%d" % V_N)
    g("v_lshl_add_u32 v4, v%d, 2, v4" % V_KG)
    g("v_lshrrev_b32 v5, 1, v4")
    g("v_and_b32 v5, 3, v5")
    g("v_xor_b32 v5, s%d, v5" % S_CW)
    g("v_lshlrev_b32 v5, 5, v5")
    g("v_lshl_add_u32 v5, v4, 7, v5")
    g("v_and_b32 v6, 3, v%d" % V_N)
    g("v_lshl_add_u32 v5, v6, 3, v5")
    g("v_add_u32 v%d, %d, v5" % (V_TR, AUX))
    g("s_barrier")
    g.stamp(1)
    g.c("layernorm")
    F = T + 8
    g("v_cmp_gt_u32 vcc, 56, v0")
    g("s_waitcnt vmcnt(0)")
    for k in range(8): g("v_cndmask_b32 v%d, 0, v%d, vcc" % (T + k, T + k))
    for b in range(2):
        for k in range(4):
            g("v_lshlrev_b32 v%d, 16, v%d" % (F + 8 * b + 2 * k, T + 4 * b + k))
            g("v_and_b32 v%d, s%d, v%d" % (F + 8 * b + 2 * k + 1, S_HI, T + 4 * b + k))
    SUM = T + 24
    for b in range(2):
        f = F + 8 * b
        g("v_add_f32 v%d, v%d, v%d" % (SUM + b, f, f + 1))
        for k in range(2, 8): g("v_add_f32 v%d, v%d, v%d" % (SUM + b, SUM + b, f + k))
    allreduce16(g, "v_add_f32", [SUM, SUM + 1])
    xrow(g, "v_add_f32", [SUM, SUM + 1], SUM + 2)
    g("v_mov_b32 v4, 0x3b124925")
    for b in range(2): g("v_mul_f32 v%d, v%d, v4" % (SUM + b, SUM + b))
    VAR = T + 28
    for b in range(2):
        f = F + 8 * b
        for k in range(8):
            g("v_sub_f32 v5, v%d, v%d" % (f + k, SUM + b))
            if k == 0: g("v_mul_f32 v%d, v5, v5" % (VAR + b))
            else: g("v_fma_f32 v%d, v5, v5, v%d" % (VAR + b, VAR + b))
    for b in range(2): g("v_cndmask_b32 v%d, 0, v%d, vcc" % (VAR + b, VAR + b))
    allreduce16(g, "v_add_f32", [VAR, VAR + 1])
    xrow(g, "v_add_f32", [VAR, VAR + 1], VAR + 2)
    for b in range(2):
        g("v_mul_f32 v%d, v%d, v4" % (VAR + b, VAR + b))
        rnd_bf16(g, VAR + b, VAR + b)
        g("v_add_f32 v%d, 0x3727c5ac, v%d" % (VAR + b, VAR + b))
        rnd_bf16(g, VAR + b, VAR + b)
        g("v_sqrt_f32 v%d, v%d" % (VAR + b, VAR + b))
        rnd_bf16(g, VAR + b, VAR + b)
        g("v_rcp_f32 v%d, v%d" % (VAR + b, VAR + b))
        rnd_bf16(g, SUM + b, SUM + b)
    for b in range(2):
        f = F + 8 * b
        for k in range(0, 8, 2):
            g("v_sub_f32 v%d, v%d, v%d" % (f + k, f + k, SUM + b))
            g("v_sub_f32 v%d, v%d, v%d" % (f + k + 1, f + k + 1, SUM + b))
            g("v_cvt_pk_bf16_f32 v5, v%d, v%d" % (f + k, f + k + 1))
            g("v_lshlrev_b32 v%d, 16, v5" % (f + k))
            g("v_and_b32 v%d, s%d, v5" % (f + k + 1, S_HI))
            g("v_mul_f32 v%d, v%d, v%d" % (f + k, f + k, VAR + b))
            g("v_mul_f32 v%d, v%d, v%d" % (f + k + 1, f + k + 1, VAR + b))
            g("v_cvt_pk_bf16_f32 v%d, v%d, v%d" % (T + 4 * b + k // 2, f + k, f + k + 1))
    g("v_lshlrev_b32 v4, 4, v0")
    g("v_add_u32 v4, %d, v4" % XN)
    g("s_mov_b32 exec_hi, 0x00ffffff")
    g("ds_write_b128 v4, v[%d:%d]" % (T, T + 3))
    g("ds_write_b128 v4, v[%d:%d] offset:896" % (T + 4, T + 7))
    g("s_mov_b64 exec, -1")
    g("s_waitcnt lgkmcnt(0)")
    g("s_add_u32 s%d, s%d, 1" % (S_E, S_E))
    g("s_and_b32 s41, s%d, s%d" % (S_E, S_MASK)); g("v_mov_b32 v%d, s41" % V_T)
    g("s_lshr_b32 s41, s%d, 10" % S_E); g("s_and_b32 s41, s41, s%d" % S_MASK); g("v_mov_b32 v%d, s41" % (V_T + 1))
    g("s_lshr_b32 s41, s%d, 20" % S_E); g("s_and_b32 s41, s41, s%d" % S_MASK); g("v_mov_b32 v%d, s41" % (V_T + 2))
    g("s_lshr_b32 s41, s%d, 30" % S_E); g("s_lshl_b32 s42, s%d, 2" % (S_E + 1)); g("s_or_b32 s41, s41, s42"); g("s_and_b32 s41, s41, s%d" % S_MASK); g("v_mov_b32 v%d, s41" % (V_T + 3))
    g.stamp(2)
    g.cat = "qp"
    g.c("q partial")
    g("v_and_b32 v4, 1, v%d" % V_N)
    g("v_mul_u32_u24 v4, 896, v4")
    g("v_lshl_add_u32 v4, v%d, 3, v4" % V_KG)
    g("v_add_u32 v3, %d, v4" % XN)
    g("s_lshr_b32 s41, s%d, 3" % S_I)
    g("s_mul_i32 s41, s41, 224")
    g("v_add_u32 v4, s41, v3")
    g("v_lshlrev_b32 v5, 8, v%d" % V_N)
    g("v_lshl_add_u32 v5, v%d, 4, v5" % V_KG)
    g("s_lshl_b32 s41, s%d, 6" % S_CW)
    g("v_add_u32 v5, s41, v5")
    g("s_lshl_b32 s41, s%d, 14" % S_KVH)
    g("s_lshl_b32 s42, s%d, 9" % S_I)
    g("s_add_u32 s41, s41, s42")
    g("s_add_u32 s41, s41, %d" % QP)
    g("v_add_u32 v6, s41, v5")
    wait_landed(g, "14")
    thin_tile16(g, 7, WQ_T, 4, T + 32, T)
    tag4(g, T + 32)
    store_n2(g, 6, T + 32)
    g.stamp(3)
    g.cat = "xc"
    g("s_getreg_b32 s%d, hwreg(HW_REG_XCC_ID)" % S_XCC)
    g("s_and_b32 s%d, s%d, 15" % (S_XCC, S_XCC))
    sk = g.lab("NOXC")
    g("s_cmp_lg_u32 s%d, 0" % S_CW)
    g("s_cbranch_scc1 " + sk)
    g("s_lshl_b32 s41, s%d, 16" % S_XCC)
    for k in range(4): g("v_mov_b32 v%d, s41" % (V_X + k))
    tag4(g, V_X)
    g("s_lshl_b32 s41, s%d, 9" % S_KVH); g("s_lshl_b32 s42, s%d, 4" % S_I); g("s_add_u32 s41, s41, s42"); g("s_add_u32 s41, s41, %d" % XC)
    g("v_mov_b32 v7, s41")
    g("s_mov_b64 exec, 1")
    g("global_store_dwordx4 v7, v[%d:%d], s[%d:%d] sc1" % (V_X, V_X + 3, S_WS, S_WS + 1))
    g("s_mov_b64 exec, -1")
    g(sk + ":")
    g.cat = "gp"
    g.c("gate/up partial")
    sk = g.lab("NOGU")
    g("s_cmp_eq_u32 s%d, 0" % S_G)
    g("s_cbranch_scc1 " + sk)
    g("s_lshr_b32 s41, s%d, 1" % S_KVH)
    g("s_mul_i32 s41, s41, 224")
    g("v_add_u32 v4, s41, v3")
    g("s_lshl_b32 s41, s%d, 12" % S_I)
    g("s_lshl_b32 s42, s%d, 9" % S_KVH)
    g("s_add_u32 s41, s41, s42")
    g("s_add_u32 s41, s41, %d" % GP)
    g("v_add_u32 v6, s41, v5")
    wait_landed(g, "28")
    thin_tile16(g, 7, GU_T, 4, V_S, T)
    tag4(g, V_S)
    store_n2(g, 6, V_S)
    g(sk + ":")
    prog_set(g, "1")
    g.cat = "ldq"
    g.c("K tiles to registers")
    g("v_and_b32 v8, 7, v%d" % V_N)
    g("v_lshlrev_b32 v8, 1, v8")
    g("s_lshl_b32 s41, s%d, 13" % S_CW)
    g("v_lshlrev_b32 v9, 9, v%d" % V_N)
    g("v_add_u32 v9, s41, v9")
    for s3 in range(4):
        g("v_add_u32 v%d, %d, v%d" % (4 + s3, 4 * s3, V_KG))
        g("v_xor_b32 v%d, v%d, v8" % (4 + s3, 4 + s3))
        g("v_lshl_add_u32 v%d, v%d, 4, v9" % (4 + s3, 4 + s3))
    g("s_lshl_b32 s41, s%d, 14" % S_KVH)
    g("s_lshl_b32 s42, s%d, 10" % S_CW)
    g("s_add_u32 s41, s41, s42")
    g("s_lshl_b32 s42, s%d, 8" % S_B)
    g("s_add_u32 s41, s41, s42")
    g("s_add_u32 s41, s41, %d" % QP)
    g("v_lshlrev_b32 v10, 12, v%d" % V_KG)
    g("v_lshl_add_u32 v10, v%d, 4, v10" % V_N)
    g("v_add_u32 v10, s41, v10")
    g("s_min_u32 s41, s%d, 27" % S_I)
    g("s_lshl_b32 s41, s41, 12")
    g("s_and_b32 s42, s%d, 1" % S_CW)
    g("s_lshl_b32 s42, s42, 8")
    g("s_add_u32 s41, s41, s42"); g("s_add_u32 s41, s41, %d" % GP)
    g("v_lshlrev_b32 v11, 10, v%d" % V_KG)
    g("v_lshl_add_u32 v11, v%d, 4, v11" % V_N)
    g("v_add_u32 v11, s41, v11")
    g("s_lshl_b32 s41, s%d, 9" % S_KVH); g("s_add_u32 s41, s41, %d" % XC)
    g("v_and_b32 v22, 31, v0"); g("v_lshlrev_b32 v22, 4, v22"); g("v_add_u32 v22, s41, v22")
    def ldq():
        gld(g, T, 10); gld(g, T + 4, 10, 512); gld(g, V_X, 22)
    def ldg():
        gld(g, V_G, 11); gld(g, V_G + 4, 11, 512)
    for r in range(4):
        if r == g.q_issue_at: ldq()
        g("s_lshl_b32 s41, s%d, 3" % S_CW)
        g("s_add_u32 s41, s41, s%d" % S_BK)
        g("s_add_u32 s41, s41, %d" % (8 + 32 * r))
        wait_landed(g, "s41")
        for s in range(8):
            g("ds_read_b128 v[%d:%d], v%d offset:%d" % (V_K + 32 * r + 4 * s, V_K + 32 * r + 4 * s + 3, 4 + (s & 3), (s >> 2) * 256 + (r & 1) * 32768))
        if r == 1:
            for s3 in range(4): g("v_add_u32 v%d, 0x10000, v%d" % (4 + s3, 4 + s3))
        g("s_waitcnt lgkmcnt(0)")
        prog_set(g, str(2 + r))
    g.stamp(4)
    g.c("gather q")
    poll(g, ldq, [T, T + 4, V_X], g.sleep_mid, T + 8, pre=True)
    sk = g.lab("NOGL")
    g("s_cmp_eq_u32 s%d, 0" % S_D); g("s_cbranch_scc1 " + sk)
    g("s_cmp_ge_u32 s%d, 2" % S_CW); g("s_cbranch_scc1 " + sk)
    ldg()
    g(sk + ":")
    g("v_lshrrev_b32 v%d, 16, v%d" % (V_X, V_X))
    g("v_cmp_eq_u32 vcc, s%d, v%d" % (S_XCC, V_X))
    g("s_nop 0")
    g("s_cmp_eq_u64 vcc, exec")
    g("s_cselect_b32 s%d, %d, 0" % (S_FAST, 1 if g.fast else 0))
    strip(g, T, 8)
    T4(g, T); T4(g, T + 4)
    g("v_cvt_pk_bf16_f32 v%d, v%d, v%d" % (T, T, T + 4))
    g("s_lshr_b32 s41, s%d, 1" % S_CW); g("s_lshl_b32 s41, s41, 9")
    g("s_and_b32 s42, s%d, 1" % S_CW); g("s_lshl_b32 s42, s42, 8")
    g("s_add_u32 s41, s41, s42"); g("s_add_u32 s41, s41, %d" % QB)
    g("v_lshlrev_b32 v4, 3, v%d" % V_N)
    g("v_lshl_add_u32 v4, v%d, 1, v4" % V_KG)
    g("v_add_u32 v4, s41, v4")
    g("ds_write_b16 v4, v%d" % T)
    g("ds_write_b16_d16_hi v4, v%d offset:128" % T)
    prog_set(g, "6")
    wait_prog_c(g, "6")
    g("v_and_b32 v4, 1, v%d" % V_N)
    g("v_lshlrev_b32 v4, 9, v4")
    g("v_lshl_add_u32 v4, v%d, 4, v4" % V_KG)
    g("v_add_u32 v4, %d, v4" % QB)
    for s in range(8): g("ds_read_b128 v[%d:%d], v4 offset:%d" % (V_Q + 4 * s, V_Q + 4 * s + 3, s * 64))
    g.c("QK")
    for s in range(8):
        g("s_waitcnt lgkmcnt(%d)" % (7 - s))
        for r in range(4):
            g("v_mfma_f32_16x16x32_bf16 v[%d:%d], v[%d:%d], v[%d:%d], %s" % (V_S + 4 * r, V_S + 4 * r + 3, V_K + 32 * r + 4 * s, V_K + 32 * r + 4 * s + 3, V_Q + 4 * s, V_Q + 4 * s + 3, "0" if s == 0 else "v[%d:%d]" % (V_S + 4 * r, V_S + 4 * r + 3)))
    g.stamp(5)
    g.cat = "st"
    g.c("softmax")
    for k in range(0, 16, 2):
        g("v_cvt_pk_bf16_f32 v4, v%d, v%d" % (V_S + k, V_S + k + 1))
        g("v_lshlrev_b32 v%d, 16, v4" % (V_S + k))
        g("v_and_b32 v%d, s%d, v4" % (V_S + k + 1, S_HI))
    g("v_max3_f32 v4, v%d, v%d, v%d" % (V_S, V_S + 1, V_S + 2))
    for k in range(3, 15, 2): g("v_max3_f32 v4, v4, v%d, v%d" % (V_S + k, V_S + k + 1))
    g("v_max_f32 v4, v4, v%d" % (V_S + 15))
    xrow(g, "v_max_f32", [4], 5)
    g("v_and_b32 v6, 1, v%d" % V_N)
    g("v_lshlrev_b32 v6, 4, v6")
    g("v_add_u32 v6, %d, v6" % WM)
    g("s_lshl_b32 s41, s%d, 2" % S_CW)
    g("v_add_u32 v7, s41, v6")
    g("ds_write_b32 v7, v4")
    prog_set(g, "7")
    wait_prog_c(g, "7")
    g("ds_read_b128 v[%d:%d], v6" % (T, T + 3))
    g("s_waitcnt lgkmcnt(0)")
    g("v_max3_f32 v4, v%d, v%d, v%d" % (T, T + 1, T + 2))
    g("v_max_f32 v4, v4, v%d" % (T + 3))
    g("v_mul_f32 v5, s%d, v4" % S_C)
    for k in range(16):
        g("v_fma_f32 v%d, v%d, s%d, -v5" % (V_S + k, V_S + k, S_C))
    for k in range(16): g("v_exp_f32 v%d, v%d" % (V_S + k, V_S + k))
    g("v_add_f32 v8, v%d, v%d" % (V_S, V_S + 1))
    for k in range(2, 16): g("v_add_f32 v8, v8, v%d" % (V_S + k))
    xrow(g, "v_add_f32", [8], 9)
    g("ds_write_b32 v7, v8 offset:%d" % (WL - WM))
    g("v_and_b32 v9, 1, v%d" % V_N)
    g("v_lshlrev_b32 v9, 5, v9")
    g("v_lshl_add_u32 v9, v%d, 3, v9" % V_KG)
    g("v_add_u32 v3, %d, v9" % PB)
    g("s_lshl_b32 s41, s%d, 6" % S_CW)
    g("v_add_u32 v10, s41, v3")
    for r in range(4):
        g("v_cvt_pk_bf16_f32 v%d, v%d, v%d" % (T + 2 * r, V_S + 4 * r, V_S + 4 * r + 1))
        g("v_cvt_pk_bf16_f32 v%d, v%d, v%d" % (T + 2 * r + 1, V_S + 4 * r + 2, V_S + 4 * r + 3))
        g("ds_write_b64 v10, v[%d:%d] offset:%d" % (T + 2 * r, T + 2 * r + 1, r * 256))
    prog_set(g, "8")
    wait_prog_c(g, "8")
    sk = g.lab("NOST")
    g("s_cmp_lg_u32 s%d, 0" % S_CW)
    g("s_cbranch_scc1 " + sk)
    g("ds_read_b128 v[%d:%d], v6 offset:%d" % (T, T + 3, WL - WM))
    g("s_waitcnt lgkmcnt(0)")
    g("v_add_f32 v%d, v%d, v%d" % (T, T, T + 1))
    g("v_add_f32 v%d, v%d, v%d" % (T + 2, T + 2, T + 3))
    g("v_add_f32 v%d, v%d, v%d" % (T + 1, T, T + 2))
    g("v_mov_b32 v%d, v4" % T)
    g("v_mov_b32 v%d, v4" % (T + 2))
    g("v_mov_b32 v%d, v%d" % (T + 3, T + 1))
    tag4(g, T)
    g("s_lshl_b32 s41, s%d, 1" % S_KVH); g("s_add_u32 s41, s41, s%d" % S_B); g("s_lshl_b32 s41, s41, 4"); g("s_add_u32 s41, s41, s%d" % S_J)
    g("s_lshl_b32 s41, s41, 5"); g("s_add_u32 s41, s41, %d" % ST)
    g("v_lshlrev_b32 v5, 4, v0")
    g("v_add_u32 v5, s41, v5")
    g("s_mov_b64 exec, 3")
    g("global_store_dwordx4 v5, v[%d:%d], s[%d:%d] sc1" % (T, T + 3, S_WS, S_WS + 1))
    g("s_mov_b64 exec, -1")
    g(sk + ":")
    g.stamp(6)
    g.cat = "ffn"
    g.c("ffn down partial")
    sk = g.lab("NOFFN")
    g("s_cmp_eq_u32 s%d, 0" % S_D)
    g("s_cbranch_scc1 " + sk)
    sk2 = g.lab("NOH")
    g("s_cmp_ge_u32 s%d, 2" % S_CW)
    g("s_cbranch_scc1 " + sk2)
    poll(g, ldg, [V_G, V_G + 4], g.sleep_mid, T + 8, pre=True)
    strip(g, V_G, 8)
    T4(g, V_G); T4(g, V_G + 4)
    rnd_bf16(g, T, V_G); rnd_bf16(g, T + 4, V_G + 4)
    g("v_mul_f32 v5, v%d, v%d" % (T, T))
    g("v_mov_b32 v6, 0x3d372713")
    g("v_fma_f32 v5, v5, v6, 1.0")
    g("v_mul_f32 v5, v5, v%d" % T)
    g("v_mul_f32 v5, 0xc0135761, v5")
    g("v_exp_f32 v5, v5")
    g("v_add_f32 v5, 1.0, v5")
    g("v_rcp_f32 v5, v5")
    g("v_mul_f32 v5, v5, v%d" % T)
    rnd_bf16(g, 5, 5)
    g("v_mul_f32 v5, v5, v%d" % (T + 4))
    g("v_cvt_pk_bf16_f32 v5, v5, v5")
    g("s_lshl_b32 s41, s%d, 7" % S_CW); g("s_add_u32 s41, s41, %d" % HB)
    g("v_lshlrev_b32 v4, 3, v%d" % V_N)
    g("v_lshl_add_u32 v4, v%d, 1, v4" % V_KG)
    g("v_add_u32 v4, s41, v4")
    g("ds_write_b16 v4, v5")
    g(sk2 + ":")
    prog_set(g, "9")
    part_addr(g, 6, YP, S_KVH, S_I)
    g("v_and_b32 v4, 1, v%d" % V_N)
    g("v_lshlrev_b32 v4, 7, v4")
    g("v_lshl_add_u32 v4, v%d, 3, v4" % V_KG)
    g("v_add_u32 v4, %d, v4" % HB)
    wait_prog_c(g, "9")
    g("s_add_u32 s41, s%d, 136" % S_BK)
    wait_landed(g, "s41")
    thin_tile16(g, 4, WD_T, 4, T + 16, T)
    tag4(g, T + 16)
    store_n2(g, 6, T + 16)
    g(sk + ":")
    g.stamp(7)
    g.c("tail addresses")
    g("s_lshl_b32 s41, s%d, 1" % S_KVH); g("s_add_u32 s41, s41, s%d" % S_B); g("s_lshl_b32 s41, s41, 4"); g("s_add_u32 s41, s41, s%d" % S_J)
    g("s_lshl_b32 s41, s41, 11")
    g("s_lshl_b32 s42, s%d, 8" % S_CW); g("s_add_u32 s41, s41, s42"); g("s_add_u32 s41, s41, %d" % OP)
    g("v_lshlrev_b32 v%d, 10, v%d" % (A_PUB, V_N))
    g("v_lshl_add_u32 v%d, v%d, 4, v%d" % (A_PUB, V_KG, A_PUB))
    g("v_add_u32 v%d, s41, v%d" % (A_PUB, A_PUB))
    g("v_bfe_u32 v23, v0, 4, 1"); g("v_lshlrev_b32 v23, 10, v23"); g("v_lshl_add_u32 v23, v%d, 4, v23" % V_N); g("v_add_u32 v23, s41, v23")
    g("s_lshl_b32 s41, s%d, 1" % S_KVH); g("s_lshr_b32 s42, s%d, 1" % S_CW); g("s_add_u32 s41, s41, s42"); g("s_lshl_b32 s41, s41, 15")
    g("s_and_b32 s42, s%d, 3" % S_RBL); g("s_lshl_b32 s42, s42, 9"); g("s_add_u32 s41, s41, s42")
    g("s_and_b32 s42, s%d, 1" % S_CW); g("s_lshl_b32 s42, s42, 8"); g("s_add_u32 s41, s41, s42")
    g("s_add_u32 s41, s41, %d" % OP)
    g("v_lshlrev_b32 v%d, 11, v%d" % (A_G0, V_KG))
    g("v_lshl_add_u32 v%d, v%d, 4, v%d" % (A_G0, V_N, A_G0))
    g("v_add_u32 v%d, s41, v%d" % (A_G0, A_G0))
    for u in range(1, 4): g("v_add_u32 v%d, %d, v%d" % (A_G0 + u, 8192 * u, A_G0))
    g("v_lshrrev_b32 v8, 3, v%d" % V_N); g("v_lshlrev_b32 v8, 5, v8")
    g("v_and_b32 v9, 3, v%d" % V_N); g("v_lshl_add_u32 v8, v9, 3, v8")
    g("v_bfe_u32 v9, v%d, 2, 1" % V_N); g("v_lshl_add_u32 v8, v9, 2, v8")
    g("v_add_u32 v8, v8, v%d" % V_KG); g("v_lshlrev_b32 v8, 1, v8")
    g("s_lshr_b32 s41, s%d, 1" % S_CW); g("s_lshl_b32 s41, s41, 8")
    g("s_and_b32 s42, s%d, 1" % S_CW); g("s_lshl_b32 s42, s42, 7"); g("s_add_u32 s41, s41, s42"); g("s_add_u32 s41, s41, %d" % OB)
    g("v_add_u32 v%d, s41, v8" % A_OBW)
    g("v_and_b32 v9, 1, v%d" % V_N); g("v_lshlrev_b32 v9, 8, v9"); g("v_lshl_add_u32 v9, v%d, 4, v9" % V_KG); g("v_add_u32 v%d, %d, v9" % (A_OBR, OB))
    g("s_lshl_b32 s45, s%d, 2" % S_KVH); g("s_add_u32 s45, s45, s%d" % S_RBL); g("s_and_b32 s45, s45, 31")
    g("s_min_u32 s46, s%d, 6" % S_CB)
    part_addr(g, A_SP, SP, 46, 45)
    g("s_lshl_b32 s41, s%d, 10" % S_KVH)
    g("s_lshr_b32 s42, s%d, 1" % S_RBL); g("s_and_b32 s42, s42, 1"); g("s_lshl_b32 s42, s42, 4"); g("s_add_u32 s41, s41, s42")
    g("s_add_u32 s41, s41, %d" % ST)
    g("v_and_b32 v%d, 31, v0" % A_STA)
    g("v_lshlrev_b32 v%d, 5, v%d" % (A_STA, A_STA))
    g("v_add_u32 v%d, s41, v%d" % (A_STA, A_STA))
    g("s_min_u32 s47, s%d, 27" % S_F)
    g("s_cmp_ge_u32 s47, 14"); g("s_cselect_b32 s42, 1, 0")
    g("s_mul_i32 s43, s42, 14"); g("s_sub_u32 s43, s47, s43")
    g("s_lshr_b32 s44, s43, 1")
    g("s_and_b32 s43, s43, 1")
    g("s_lshl_b32 s41, s44, 1"); g("s_add_u32 s41, s41, s42"); g("s_lshl_b32 s41, s41, 1"); g("s_add_u32 s41, s41, s43"); g("s_lshl_b32 s41, s41, 12")
    g("v_lshlrev_b32 v%d, 4, v0" % A_PART)
    g("v_add_u32 v%d, s41, v%d" % (A_PART, A_PART))
    g("s_mul_i32 s42, s42, 448"); g("s_lshl_b32 s44, s44, 6"); g("s_add_u32 s42, s42, s44"); g("s_lshl_b32 s43, s43, 5"); g("s_add_u32 s42, s42, s43")
    g("v_and_b32 v%d, 7, v0" % A_OUT)
    g("v_lshl_add_u32 v%d, v%d, 2, v%d" % (A_OUT, A_OUT, V_KG))
    g("v_add_u32 v%d, s42, v%d" % (A_OUT, A_OUT))
    g("v_lshlrev_b32 v%d, 1, v%d" % (A_OUT, A_OUT))
    g.cat = "pre"
    g.c("PV")
    g("v_lshrrev_b32 v8, 2, v%d" % V_N)
    g("v_lshl_add_u32 v8, v%d, 2, v8" % V_KG)
    g("v_and_b32 v9, 7, v8")
    g("v_lshlrev_b32 v8, 9, v8")
    g("v_and_b32 v10, 3, v%d" % V_N)
    g("v_lshl_add_u32 v8, v10, 3, v8")
    g("s_lshl_b32 s41, s%d, 2" % S_CW)
    for mt in range(4):
        g("s_add_u32 s42, s41, %d" % mt)
        g("v_xor_b32 v%d, s42, v9" % (4 + mt))
        g("v_lshl_add_u32 v%d, v%d, 5, v8" % (4 + mt, 4 + mt))
    for k in range(16): g("v_mov_b32 v%d, 0" % (V_ACC + k))
    g("s_add_u32 s%d, s%d, 8" % (S_THR, S_BV))
    def pv_body():
        for mt in range(4): g("ds_read_b64_tr_b16 v[%d:%d], v%d" % (T + 2 + 2 * mt, T + 3 + 2 * mt, 4 + mt))
    def pv_mfma():
        for mt in range(4):
            g("s_waitcnt lgkmcnt(%d)" % (3 - mt))
            g("v_mfma_f32_16x16x16_bf16 v[%d:%d], v[%d:%d], v[%d:%d], v[%d:%d]" % (V_ACC + 4 * mt, V_ACC + 4 * mt + 3, T + 2 + 2 * mt, T + 3 + 2 * mt, T, T + 1, V_ACC + 4 * mt, V_ACC + 4 * mt + 3))
    def pv_loop(n):
        g("s_mov_b32 s%d, %d" % (S_CNT, n))
        lp = g.lab("PV")
        g(lp + ":")
        wait_landed(g, "s%d" % S_THR)
        g("ds_read_b64 v[%d:%d], v3" % (T, T + 1))
        pv_body()
        for mt in range(4): g("v_add_u32 v%d, 8192, v%d" % (4 + mt, 4 + mt))
        g("v_add_u32 v3, 64, v3")
        g("s_add_u32 s%d, s%d, 8" % (S_THR, S_THR))
        g("s_sub_u32 s%d, s%d, 1" % (S_CNT, S_CNT))
        pv_mfma()
        g("s_cmp_lg_u32 s%d, 0" % S_CNT)
        g("s_cbranch_scc1 " + lp)
    pv_loop(g.stat_at)
    fin = g.lab("PFIN"); jn = g.lab("PJN")
    g("s_cmp_eq_u32 s%d, 0" % S_O)
    g("s_cbranch_scc1 " + fin)
    gld(g, V_ST, A_STA)
    g(fin + ":")
    if g.ldpre < 0: gld(g, V_G, 23)
    g.stamp(8)
    if g.lastbar:
        pv_loop(15 - g.stat_at)
        g("ds_read_b64 v[%d:%d], v3" % (T, T + 1))
        g("s_waitcnt lgkmcnt(0)")
        g("s_barrier")
        pv_body()
        pv_mfma()
    else:
        pv_loop(16 - g.stat_at)
    g.stamp(9)
    g.cat = "op"
    g.c("publish o")
    for mt in range(4): tag4(g, V_ACC + 4 * mt)
    g("s_mov_b64 exec, s[%d:%d]" % (S_EX, S_EX + 1))
    slow = g.lab("OSLOW"); dn = g.lab("ODONE")
    g("s_cmp_eq_u32 s%d, 0" % S_FAST)
    g("s_cbranch_scc1 " + slow)
    for mt in range(4):
        g("global_store_dwordx4 v%d, v[%d:%d], s[%d:%d] offset:%d" % (A_PUB, V_ACC + 4 * mt, V_ACC + 4 * mt + 3, S_WS, S_WS + 1, mt * 64))
    g("s_branch " + dn)
    g(slow + ":")
    for mt in range(4):
        g("global_store_dwordx4 v%d, v[%d:%d], s[%d:%d] offset:%d sc1" % (A_PUB, V_ACC + 4 * mt, V_ACC + 4 * mt + 3, S_WS, S_WS + 1, mt * 64))
    g(dn + ":")
    g("s_mov_b64 exec, -1")
    g.stamp(10)
    fin = g.lab("FIN2"); end = g.lab("CEND")
    g("s_cmp_eq_u32 s%d, 0" % S_O)
    g("s_cbranch_scc1 " + fin)
    g.cat = "tail"
    g.c("stats")
    lp = g.lab("SL"); ex = g.lab("SX")
    g("s_waitcnt vmcnt(4)")
    g(lp + ":")
    g("v_xor_b32 v57, v%d, v%d" % (V_ST, V_T))
    for k in range(1, 4): g("v_bitop3_b32 v57, v%d, v%d, v57 bitop3:0xBE" % (V_ST + k, V_T + k))
    g("v_and_b32 v57, s%d, v57" % S_MASK)
    g("v_cmp_ne_u32 vcc, 0, v57")
    g("s_cbranch_vccz " + ex)
    budget_exit(g, ex)
    gld(g, V_ST, A_STA)
    g("s_waitcnt vmcnt(0)")
    g("s_branch " + lp)
    g(ex + ":")
    def ldo():
        for u in range(4): gld(g, T + 4 * u, A_G0 + u)
    ldo()
    Z = V_ST
    g("v_and_b32 v%d, s%d, v%d" % (Z, S_HI, Z))
    g("v_mov_b32 v57, v%d" % Z)
    allreduce16(g, "v_max_f32", [57])
    g("v_sub_f32 v57, v%d, v57" % Z)
    g("v_mul_f32 v57, s%d, v57" % S_C)
    g("v_exp_f32 v57, v57")
    g("v_mul_f32 v58, v57, v%d" % (Z + 1))
    allreduce16(g, "v_add_f32", [58])
    g("v_rcp_f32 v58, v58")
    g("v_mul_f32 v57, v57, v58")
    g("s_lshr_b32 s41, s%d, 1" % S_CW); g("s_lshl_b32 s41, s41, 6")
    g("v_lshlrev_b32 v58, 2, v%d" % V_KG)
    g("v_add_u32 v58, s41, v58")
    for u in range(4):
        g("v_add_u32 v59, %d, v58" % (16 * u))
        g("ds_bpermute_b32 v%d, v59, v57" % (V_C + u))
    g("s_add_u32 s41, s%d, 144" % S_BV)
    wait_landed(g, "s41")
    A = V_Q
    for s in range(4):
        g("ds_read_b64_tr_b16 v[%d:%d], v%d offset:%d" % (A + 8 * s, A + 8 * s + 1, V_TR, WO_T + s * 4096))
        g("ds_read_b64_tr_b16 v[%d:%d], v%d offset:%d" % (A + 8 * s + 2, A + 8 * s + 3, V_TR, WO_T + s * 4096 + 2048))
    g.c("gather o")
    if g.selpoll:
        poll_sel(g, [(T + 4 * u, (lambda u=u: gld(g, T + 4 * u, A_G0 + u))) for u in range(4)], g.sleep_tail, T + 16, count=True)
    else:
        poll(g, ldo, [T, T + 4, T + 8, T + 12], g.sleep_tail, T + 16, pre=True, count=True)
    g.stamp(12)
    if not g.nostrip: strip(g, T, 16)
    g("s_waitcnt lgkmcnt(0)")
    for k in range(4): g("v_mul_f32 v%d, v%d, v%d" % (T + k, T + k, V_C))
    for u in range(1, 4):
        for k in range(4): g("v_fma_f32 v%d, v%d, v%d, v%d" % (T + k, T + 4 * u + k, V_C + u, T + k))
    T4(g, T)
    g("v_cvt_pk_bf16_f32 v%d, v%d, v%d" % (T, T, T))
    g("ds_write_b16 v%d, v%d" % (A_OBW, T))
    g("s_waitcnt lgkmcnt(0)")
    g("s_barrier")
    g.stamp(13)
    for s in range(4):
        g("ds_read_b128 v[%d:%d], v%d offset:%d" % (A + 8 * s + 4, A + 8 * s + 7, A_OBR, s * 64))
    for s in range(4):
        g("s_waitcnt lgkmcnt(%d)" % (3 - s))
        g("v_mfma_f32_16x16x32_bf16 v[%d:%d], v[%d:%d], v[%d:%d], %s" % (T, T + 3, A + 8 * s, A + 8 * s + 3, A + 8 * s + 4, A + 8 * s + 7, "0" if s == 0 else "v[%d:%d]" % (T, T + 3)))
    tag4(g, T)
    store_n2(g, A_SP, T)
    if g.wbl2:
        sk = g.lab("NOWB")
        g("s_cmp_lg_u32 s%d, 0" % S_CW); g("s_cbranch_scc1 " + sk)
        if g.wbl2 == 1:
            g("s_cmp_lg_u32 s%d, 0" % S_I); g("s_cbranch_scc1 " + sk)
        g("buffer_wbl2 sc1")
        g(sk + ":")
    g.stamp(11)
    g("s_branch " + end)
    g(fin + ":")
    g("s_cmp_lg_u32 s%d, 0" % S_CW); g("s_cbranch_scc1 " + end)
    g("s_cmp_ge_u32 s%d, 28" % S_F); g("s_cbranch_scc1 " + end)
    g("global_load_ushort v11, v%d, s[%d:%d]" % (A_OUT, S_X, S_X + 1))
    g("v_add_u32 v4, %d, v%d" % (YP, A_PART))
    for k in range(4): g("v_mov_b32 v%d, 0" % (T + 12 + k))
    def ld4(last_mask):
        def f():
            for u in range(3): gld(g, T + 4 * u, 4, 1024 * u)
            if last_mask: g("s_mov_b32 exec_hi, 0")
            gld(g, T + 12, 4, 3072)
            if last_mask: g("s_mov_b64 exec, -1")
        return f
    def red32(dst):
        if not g.nostrip: strip(g, T, 16)
        for k in range(4):
            g("v_add_f32 v%d, v%d, v%d" % (T + k, T + k, T + 4 + k))
            g("v_add_f32 v%d, v%d, v%d" % (T + 8 + k, T + 8 + k, T + 12 + k))
        for k in range(4): g("v_add_f32 v%d, v%d, v%d" % (T + k, T + k, T + 8 + k))
        for k in range(4): g("v_add_f32_dpp v%d, v%d, v%d row_ror:8 row_mask:0xf bank_mask:0xf" % (T + k, T + k, T + k))
        T4(g, T)
        rnd_bf16(g, dst, T)
    poll(g, ld4(True), [T, T + 4, T + 8, T + 12], g.sleep_mid, T + 16, masked_last=True)
    red32(10)
    g("v_mul_f32 v5, 0xbfb8aa3b, v10")
    g("v_exp_f32 v5, v5")
    g("v_add_f32 v5, 1.0, v5")
    g("v_rcp_f32 v5, v5")
    g("v_mul_f32 v10, v10, v5")
    rnd_bf16(g, 10, 10)
    g("v_lshlrev_b32 v11, 16, v11")
    g("v_add_u32 v4, %d, v%d" % (SP, A_PART))
    g("s_mov_b32 s42, 0x00ff00ff"); g("s_mov_b32 s43, 0x00ff00ff")
    poll(g, ld4(False), [T, T + 4, T + 8, T + 12], g.sleep_fin, T + 16, count=True)
    g.stamp(12)
    red32(5)
    g("v_mul_f32 v5, v5, v10")
    rnd_bf16(g, 5, 5)
    g("v_add_f32 v5, v5, v11")
    g("v_cvt_pk_bf16_f32 v5, v5, v5")
    g("s_mov_b64 exec, s[42:43]")
    g("global_store_short v%d, v5, s[%d:%d]" % (A_OUT, S_OUT, S_OUT + 1))
    g("s_mov_b64 exec, -1")
    g.stamp(11)
    g("s_cmp_lg_u32 s%d, 0" % S_F); g("s_cbranch_scc1 " + end)
    g("v_mov_b32 v4, 0"); g("v_mov_b32 v5, s%d" % S_E)
    g("s_mov_b64 exec, 1")
    g("global_store_dword v4, v5, s[%d:%d] sc1" % (S_WS, S_WS + 1))
    g("s_mov_b64 exec, -1")
    g(end + ":")
    if g.stamps: write_stamps(g)
    g("s_endpgm")

def diag_filter(g, lines):
    drop = getattr(g, "drop", None)
    if drop:
        out = []
        for l in lines:
            t = l.strip()
            if "cat=" in t and t.split("cat=")[1].strip() in drop: continue
            if t.startswith("v_cmp_ne_u32 vcc, 0,"):
                out.append("  s_mov_b64 vcc, 0"); continue
            out.append(l)
        return out
    if not getattr(g, "nomem", 0): return lines
    out = []; incomp = False
    for l in lines:
        if l.startswith("L_compute:"): incomp = True
        t = l.strip()
        if incomp and (t.startswith("global_load_dwordx4") and "sc1" in t):
            if g.nomem & 1: continue
        if incomp and t.startswith("global_store") and ("s[24:25]" in t) and "v100" not in t and "v[104:107]" not in t:
            if g.nomem & 2: continue
        if incomp and (g.nomem & 1) and t.startswith("v_cmp_ne_u32 vcc, 0,"):
            out.append("  s_mov_b64 vcc, 0"); continue
        out.append(l)
    return out

def build(**kw):
    g = G(**kw)
    g("s_cmp_ge_u32 s2, 256")
    g("s_cbranch_scc1 L_exit")
    g.stamp(0)
    g("s_load_dwordx8 s[4:11], s[0:1], 0")
    g("s_load_dwordx2 s[12:13], s[0:1], 32")
    g("s_load_dwordx4 s[16:19], s[0:1], 48")
    g("s_load_dwordx4 s[20:23], s[0:1], 64")
    g("s_load_dwordx2 s[24:25], s[0:1], 88")
    g("v_lshrrev_b32 v1, 6, v0")
    g("v_and_b32 v0, 63, v0")
    g("s_and_b32 s%d, s2, 7" % S_KVH)
    g("v_readfirstlane_b32 s%d, v1" % S_WAVE)
    g("s_lshr_b32 s%d, s2, 3" % S_I)
    g("s_lshr_b32 s%d, s%d, 4" % (S_B, S_I))
    g("s_and_b32 s%d, s%d, 15" % (S_J, S_I))
    g("s_cmp_lt_u32 s%d, 28" % S_I)
    g("s_cselect_b32 s%d, 14, 0" % S_G)
    g("s_cselect_b32 s%d, 16, 0" % S_O)
    g("s_cselect_b32 s%d, 8, 0" % S_D)
    g("s_cmp_lt_u32 s%d, 7" % S_KVH)
    g("s_cselect_b32 s%d, s%d, 0" % (S_D, S_D))
    g("s_add_u32 s%d, s%d, 14" % (S_BK, S_G))
    g("s_add_u32 s%d, s%d, s%d" % (S_BV, S_BK, S_D))
    g("s_add_u32 s%d, s%d, 128" % (S_BV, S_BV))
    g("s_mul_i32 s%d, s%d, 37" % (S_RBL, S_I))
    g("s_lshr_b32 s%d, s%d, 8" % (S_RBL, S_RBL))
    g("s_mul_i32 s41, s%d, 7" % S_RBL)
    g("s_sub_u32 s%d, s%d, s41" % (S_CB, S_I))
    g("s_lshl_b32 s%d, s%d, 2" % (S_F, S_KVH))
    g("s_add_u32 s%d, s%d, s%d" % (S_F, S_F, S_I))
    g("s_sub_u32 s%d, s%d, 28" % (S_F, S_F))
    g("s_mov_b32 s%d, %d" % (S_BUD, 1 << 18))
    g("s_mov_b32 s%d, 0xC0000000" % S_LAND)
    if g.stamps:
        for k in range(1, 16): g("s_mov_b64 s[%d:%d], 0" % (64 + 2 * k, 65 + 2 * k))
    g("s_cmp_eq_u32 s%d, 0" % S_WAVE)
    g("s_cbranch_scc0 L_compute")
    loader(g)
    g("L_compute:")
    compute(g)
    g("L_exit:")
    g("s_endpgm")
    lines = hz.fix(diag_filter(g, g.l))
    name = KN + "_kernel"
    s = HDR + "; @launch grid=(256,1,1) block=(320,1,1) lds=%d\n" % LDS_BYTES
    s += '.amdgcn_target "amdgcn-amd-amdhsa--gfx950"\n.text\n.globl %s\n.p2align 8\n.type %s,@function\n%s:\n' % (name, name, name)
    s += "\n".join(lines) + "\n"
    s += '.section .rodata,"a"\n.p2align 6\n.amdhsa_kernel %s\n' % name
    s += "  .amdhsa_next_free_vgpr 256\n  .amdhsa_next_free_sgpr 102\n  .amdhsa_accum_offset 256\n"
    s += "  .amdhsa_group_segment_fixed_size 0\n  .amdhsa_kernarg_size 96\n  .amdhsa_user_sgpr_count 2\n"
    s += "  .amdhsa_user_sgpr_kernarg_segment_ptr 1\n  .amdhsa_system_sgpr_workgroup_id_x 1\n"
    s += "  .amdhsa_float_denorm_mode_32 3\n"
    s += ".end_amdhsa_kernel\n"
    return s

if __name__ == "__main__":
    ap = argparse.ArgumentParser()
    ap.add_argument("-o", default="k.s")
    ap.add_argument("--stamps", action="store_true")
    ap.add_argument("--set", action="append", default=[])
    a = ap.parse_args()
    kw = {x.split("=")[0]: (int(x.split("=")[1]) if x.split("=")[1].lstrip("-").isdigit() else x.split("=")[1].split(",")) for x in a.set}
    open(a.o, "w").write(build(stamps=a.stamps, **kw))
```

```python
import sys, argparse
from asmlib import HDR, KN
import hz

KV = 0
AUX = 131072
WQ_T = 0; GU_T = 14336; WD_T = 0; WO_T = 8192
MISC = 159744
XN = MISC; PB = MISC
QB = MISC + 1792; OB = QB
HB = MISC + 2816
WM = MISC + 3072; WL = MISC + 3104
PROG = MISC + 3136
LAND = MISC + 3200
JUNK = MISC + 3456
LDS_BYTES = 163840
QP = 0x1000; GP = 0x21000; ST = 0x3D000; XC = 0x3F000; YP = 0x40000; SP = 0x60000; OP = 0x80000
STAMP = 512 << 20
TAGMASK = 0x3FF; TAGMID = 0x200

S_X, S_K, S_V, S_WQ, S_WO, S_WG, S_WU, S_WD, S_OUT, S_WS = 4, 6, 8, 10, 12, 16, 18, 20, 22, 24
S_KVH, S_I, S_B, S_J, S_WAVE, S_CW = 26, 27, 28, 29, 30, 31
S_E = 32
S_G, S_D, S_O = 34, 35, 36
S_BK, S_BV = 37, 38
S_MASK = 39; S_BUD = 40
S_RBL, S_CB, S_F, S_XCC = 50, 51, 52, 53
S_EX = 54
S_C = 56; S_HI = 57; S_FAST = 59; S_LAND = 60
S_THR, S_CNT = 61, 62
S_G2 = 58
V_N, V_KG = 1, 2
V_T = 12
V_MID, V_PW, V_PR, V_LR, V_TR, V_F = 16, 17, 18, 19, 20, 21
T = 24
V_ST = 40
V_G = 44
V_C = 52
V_X = 56
V_W = 60
V_Q = 64
V_S = 96
V_ACC = 112
V_K = 128
A_PUB, A_G0, A_OBW, A_OBR, A_SP, A_STA, A_OUT, A_PART, A_YP, A_HB = 128, 129, 133, 134, 135, 136, 137, 138, 139, 140

class G:
    def __init__(self, **kw):
        self.l = []; self.n = 0
        self.W = 16; self.stamps = False; self.sleep_mid = 8; self.sleep_tail = 2; self.sleep_fin = 0
        self.fast = 1; self.stat_at = 12; self.q_issue_at = 2; self.dbgspan = 0; self.lastbar = 1; self.WK = 40; self.selfin = 1; self.evenodd = 0; self.defer_wd = 0; self.sleep_y = 2; self.wbl2 = 0; self.ldpre = -1; self.selpoll = 1; self.sleep_lds = 0; self.nostrip = 1
        for k, v in kw.items(): setattr(self, k, v)
    def __call__(self, s):
        for x in s.split("\n"):
            x = x.strip()
            if x.startswith("global_") and getattr(self, "cat", None): x += " ; cat=" + self.cat
            self.l.append(x if x.endswith(":") else "  " + x)
    def lab(self, b="L"):
        self.n += 1; return "%s_%d" % (b, self.n)
    def c(self, s): self.l.append("  ; " + s)
    def stamp(self, k):
        if self.stamps and (not getattr(self, "light", 0) or k in (0, 3, 9, 11)):
            self("s_memrealtime s[%d:%d]" % (64 + 2 * k, 65 + 2 * k))

def budget_exit(g, lab):
    g("s_cmp_eq_u32 s%d, 0" % S_BUD)
    g("s_cbranch_scc1 %s" % lab)
    g("s_sub_u32 s%d, s%d, 1" % (S_BUD, S_BUD))

def write_stamps(g):
    g("s_waitcnt lgkmcnt(0)")
    g("s_mul_i32 s41, s2, 5")
    g("s_add_u32 s41, s41, s%d" % S_WAVE)
    g("s_lshl_b32 s41, s41, 7")
    g("s_add_u32 s41, s41, %d" % STAMP)
    g("v_mov_b32 v100, s41")
    for q in range(8):
        for k in range(4): g("v_mov_b32 v%d, s%d" % (104 + k, 64 + 4 * q + k))
        g("s_mov_b64 exec, 1")
        g("global_store_dwordx4 v100, v[104:107], s[%d:%d] offset:%d" % (S_WS, S_WS + 1, 16 * q))
        g("s_mov_b64 exec, -1")
        g("s_nop 1")

def loader(g):
    W = g.W
    g.c("================= loader wave =================")
    g("s_setprio 3")
    g("v_lshlrev_b32 v16, 2, v0")
    g("v_add_u32 v16, %d, v16" % LAND)
    g("v_mov_b32 v5, 0xC0000000")
    g("ds_write_b32 v16, v5")
    g("v_mov_b32 v17, %d" % PROG)
    g("v_mov_b32 v6, 0"); g("v_mov_b32 v7, 0"); g("v_mov_b32 v8, 0"); g("v_mov_b32 v9, 0")
    g("ds_write_b128 v17, v[6:9]")
    g("v_lshrrev_b32 v2, 3, v0")
    g("v_and_b32 v3, 7, v0")
    g("v_lshrrev_b32 v4, 4, v0")
    g("v_lshlrev_b32 v4, 1, v4")
    g("v_xor_b32 v3, v3, v4")
    g("v_lshlrev_b32 v3, 4, v3")
    g("v_lshl_add_u32 v5, v2, 13, v3")
    g("s_lshr_b32 s41, s%d, 3" % S_I)
    g("s_mul_i32 s41, s41, %d" % (112 * 8192))
    g("s_lshl_b32 s42, s%d, 10" % S_KVH)
    g("s_add_u32 s41, s41, s42")
    g("s_and_b32 s42, s%d, 7" % S_I)
    g("s_lshl_b32 s42, s42, 7")
    g("s_add_u32 s41, s41, s42")
    g("s_mov_b32 m0, %d" % (AUX + WQ_T))
    g("s_mov_b32 s46, 14")
    g("s_waitcnt lgkmcnt(0)")
    g("s_add_u32 s44, s%d, s41" % S_WQ)
    g("s_addc_u32 s45, s%d, 0" % (S_WQ + 1))
    lp = g.lab("WQ")
    g(lp + ":")
    g("global_load_lds_dwordx4 v5, s[44:45] nt")
    g("s_add_u32 s44, s44, 65536")
    g("s_addc_u32 s45, s45, 0")
    g("s_add_u32 m0, m0, 1024")
    g("s_sub_u32 s46, s46, 1")
    g("s_cmp_lg_u32 s46, 0")
    g("s_cbranch_scc1 " + lp)
    g("s_barrier")
    g("v_mul_u32_u24 v6, 3584, v2")
    g("v_add_u32 v6, v6, v3")
    g("v_mul_u32_u24 v7, 896, v2")
    g("v_add_u32 v7, v7, v3")
    sk = g.lab("NOGU")
    g("s_cmp_eq_u32 s%d, 0" % S_G)
    g("s_cbranch_scc1 " + sk)
    g("s_and_b32 s41, s%d, 1" % S_KVH)
    g("s_cmp_eq_u32 s41, 0")
    g("s_cselect_b32 s44, s%d, s%d" % (S_WG, S_WU))
    g("s_cselect_b32 s45, s%d, s%d" % (S_WG + 1, S_WU + 1))
    g("s_lshr_b32 s41, s%d, 1" % S_KVH)
    g("s_mul_i32 s41, s41, %d" % (112 * 3584))
    g("s_lshl_b32 s42, s%d, 7" % S_I)
    g("s_add_u32 s41, s41, s42")
    g("s_add_u32 s44, s44, s41")
    g("s_addc_u32 s45, s45, 0")
    g("s_mov_b32 m0, %d" % (AUX + GU_T))
    g("s_mov_b32 s46, 14")
    lp = g.lab("GU")
    g(lp + ":")
    g("global_load_lds_dwordx4 v6, s[44:45] nt")
    g("s_add_u32 s44, s44, %d" % (8 * 3584))
    g("s_addc_u32 s45, s45, 0")
    g("s_add_u32 m0, m0, 1024")
    g("s_sub_u32 s46, s46, 1")
    g("s_cmp_lg_u32 s46, 0")
    g("s_cbranch_scc1 " + lp)
    g(sk + ":")
    g("v_lshrrev_b32 v8, 5, v0")
    g("v_and_b32 v9, 31, v0")
    g("v_lshlrev_b32 v10, 1, v8")
    g("v_xor_b32 v9, v9, v10")
    g("v_lshlrev_b32 v9, 4, v9")
    g("v_lshlrev_b32 v8, 9, v8")
    for u in range(4):
        g("v_xor_b32 v%d, %d, v9" % (12 + u, u * 64))
        g("v_add_u32 v%d, v%d, v8" % (12 + u, 12 + u))
    g("s_lshl_b32 s41, s%d, 3" % S_B)
    g("s_add_u32 s41, s41, s%d" % S_KVH)
    g("s_lshl_b32 s41, s41, 24")
    g("s_add_u32 s41, s41, %d" % (28672 * 512))
    g("s_lshl_b32 s42, s%d, 13" % S_J)
    g("s_add_u32 s41, s41, s42")
    g("s_add_u32 s44, s%d, s41" % S_K)
    g("s_addc_u32 s45, s%d, 0" % (S_K + 1))
    g("s_add_u32 s48, s%d, s41" % S_V)
    g("s_addc_u32 s49, s%d, 0" % (S_V + 1))
    g("s_add_u32 s47, s%d, 14" % S_G)
    g("s_mov_b32 m0, %d" % KV)
    def tile(sb):
        for u in range(8):
            if u == 4:
                g("s_add_u32 s%d, s%d, 4096" % (sb, sb)); g("s_addc_u32 s%d, s%d, 0" % (sb + 1, sb + 1)); g("s_add_u32 m0, m0, 4096"); g("s_nop 0")
            g("global_load_lds_dwordx4 v%d, s[%d:%d] offset:%d nt" % (12 + (u & 3), sb, sb + 1, (u & 3) * 1024))
        g("s_add_u32 s%d, s%d, %d" % (sb, sb, 131072 - 4096)); g("s_addc_u32 s%d, s%d, 0" % (sb + 1, sb + 1)); g("s_add_u32 m0, m0, 4096")
        g("s_add_u32 s47, s47, 8")
    def flag(n):
        g("s_waitcnt vmcnt(%d)" % n)
        g("s_sub_u32 s46, s47, %d" % n)
        g("v_mov_b32 v18, s46")
        g("ds_write_b32 v16, v18")
    tile(44)
    has = g.lab("HASGU"); j2 = g.lab("J")
    g("s_cmp_eq_u32 s%d, 0" % S_G)
    g("s_cbranch_scc0 " + has)
    flag(8)
    tile(44)
    g("s_branch " + j2)
    g(has + ":")
    flag(22)
    tile(44)
    flag(16)
    g(j2 + ":")
    def kloop(n):
        lp = g.lab("KL")
        g("s_mov_b32 s43, %d" % n)
        g(lp + ":")
        tile(44)
        flag(g.WK or W)
        g("s_sub_u32 s43, s43, 1")
        g("s_cmp_lg_u32 s43, 0")
        g("s_cbranch_scc1 " + lp)
    def wait_prog(sthr):
        lp = g.lab("WP"); ex = g.lab("WPX")
        g("s_cmp_ge_i32 s%d, %s" % (S_LAND, sthr))
        g("s_cbranch_scc1 " + ex)
        g(lp + ":")
        g("ds_read_b128 v[20:23], v17")
        g("s_waitcnt lgkmcnt(0)")
        g("v_min3_i32 v20, v20, v21, v22")
        g("v_min_i32 v20, v20, v23")
        g("v_readfirstlane_b32 s%d, v20" % S_LAND)
        g("s_cmp_ge_i32 s%d, %s" % (S_LAND, sthr))
        g("s_cbranch_scc1 " + ex)
        budget_exit(g, ex)
        g("s_branch " + lp)
        g(ex + ":")
    kloop(6)
    sk = g.lab("NOG2")
    g("s_cmp_eq_u32 s%d, 0" % S_G2)
    g("s_cbranch_scc1 " + sk)
    wait_prog("1")
    g("s_mov_b32 s42, m0")
    g("s_lshr_b32 s41, s%d, 1" % S_KVH)
    g("s_mul_i32 s41, s41, %d" % (112 * 3584))
    g("s_lshl_b32 s46, s%d, 7" % S_I)
    g("s_add_u32 s41, s41, s46")
    g("s_add_u32 s62, s%d, s41" % S_WU)
    g("s_addc_u32 s63, s%d, 0" % (S_WU + 1))
    g("s_mov_b32 m0, %d" % (AUX + WQ_T))
    g("s_mov_b32 s46, 14")
    lp = g.lab("G2")
    g(lp + ":")
    g("global_load_lds_dwordx4 v6, s[62:63] nt")
    g("s_add_u32 s62, s62, %d" % (8 * 3584))
    g("s_addc_u32 s63, s63, 0")
    g("s_add_u32 m0, m0, 1024")
    g("s_sub_u32 s46, s46, 1")
    g("s_cmp_lg_u32 s46, 0")
    g("s_cbranch_scc1 " + lp)
    g("s_mov_b32 m0, s42")
    g("s_add_u32 s47, s47, 14")
    flag(W)
    g(sk + ":")
    kloop(8)
    g.stamp(1)
    def rows896(n, ptr, lds):
        g("s_add_u32 s62, s%d, s41" % ptr)
        g("s_addc_u32 s63, s%d, 0" % (ptr + 1))
        g("s_mov_b32 m0, %d" % lds)
        g("s_mov_b32 s46, %d" % n)
        lp = g.lab("RW")
        g(lp + ":")
        g("global_load_lds_dwordx4 v7, s[62:63] nt")
        g("s_add_u32 s62, s62, 7168")
        g("s_addc_u32 s63, s63, 0")
        g("s_add_u32 m0, m0, 1024")
        g("s_sub_u32 s46, s46, 1")
        g("s_cmp_lg_u32 s46, 0")
        g("s_cbranch_scc1 " + lp)
        g("s_add_u32 s47, s47, %d" % n)
    def wd_tile():
        g("s_mul_i32 s41, s%d, %d" % (S_I, 64 * 896))
        g("s_lshl_b32 s42, s%d, 7" % S_KVH)
        g("s_add_u32 s41, s41, s42")
        rows896(8, S_WD, AUX + WD_T)
    if not g.defer_wd:
        sk = g.lab("NOWD")
        g("s_cmp_eq_u32 s%d, 0" % S_D)
        g("s_cbranch_scc1 " + sk)
        wait_prog("4")
        wd_tile()
        flag(W)
        g(sk + ":")
    g("s_mov_b32 m0, %d" % KV)
    lp = g.lab("VL")
    g("s_mov_b32 s43, 0")
    g(lp + ":")
    g("s_lshr_b32 s41, s43, 2")
    g("s_lshr_b32 s42, s43, 3")
    g("s_add_u32 s41, s41, s42")
    g("s_add_u32 s41, s41, 2")
    wait_prog("s41")
    tile(48)
    if g.ldpre >= 0:
        sk = g.lab("NPT")
        g("s_cmp_lg_u32 s43, %d" % g.ldpre)
        g("s_cbranch_scc1 " + sk)
        g("s_lshl_b32 s41, s%d, 1" % S_KVH); g("s_add_u32 s41, s41, s%d" % S_B); g("s_lshl_b32 s41, s41, 4"); g("s_add_u32 s41, s41, s%d" % S_J)
        g("s_lshl_b32 s41, s41, 11"); g("s_add_u32 s41, s41, %d" % OP)
        g("v_lshlrev_b32 v19, 4, v0"); g("v_add_u32 v19, s41, v19")
        g("global_load_dwordx4 v[24:27], v19, s[%d:%d]" % (S_WS, S_WS + 1))
        g("global_load_dwordx4 v[28:31], v19, s[%d:%d] offset:1024" % (S_WS, S_WS + 1))
        g(sk + ":")
    flag(W)
    g("s_add_u32 s43, s43, 1")
    g("s_cmp_lg_u32 s43, 16")
    g("s_cbranch_scc1 " + lp)
    g.stamp(2)
    sk = g.lab("NOWO"); dn = g.lab("LDONE"); nod = g.lab("NODW")
    last = 8 if g.lastbar else 0
    def wo_tile():
        g("s_lshl_b32 s41, s%d, 2" % S_KVH)
        g("s_add_u32 s41, s41, s%d" % S_RBL)
        g("s_mul_i32 s41, s41, %d" % (128 * 896))
        g("s_lshl_b32 s42, s%d, 7" % S_CB)
        g("s_add_u32 s41, s41, s42")
        rows896(16, S_WO, AUX + WO_T)
    def drain(extra):
        for n in range(W - 8 + extra, extra - 1 + last, -8): flag(n)
        if g.lastbar:
            g("s_waitcnt vmcnt(%d)" % extra)
            g("s_barrier")
    g("s_cmp_eq_u32 s%d, 0" % S_O)
    g("s_cbranch_scc1 " + sk)
    if g.defer_wd:
        g("s_cmp_eq_u32 s%d, 0" % S_D)
        g("s_cbranch_scc1 " + nod)
        wd_tile()
        wo_tile()
        drain(24)
        flag(16)
        flag(0)
        g("s_branch " + dn)
        g(nod + ":")
    wo_tile()
    drain(16)
    flag(0)
    g("s_branch " + dn)
    g(sk + ":")
    drain(0)
    g(dn + ":")
    g.stamp(3)
    g("s_waitcnt lgkmcnt(0)")
    if g.stamps: write_stamps(g)
    g("s_endpgm")

def wait_landed(g, sthr):
    lp = g.lab("WL"); ex = g.lab("WLX")
    g("s_cmp_ge_i32 s%d, %s" % (S_LAND, sthr))
    g("s_cbranch_scc1 " + ex)
    g(lp + ":")
    g("ds_read_b32 v%d, v%d" % (V_F, V_LR))
    g("s_waitcnt lgkmcnt(0)")
    g("v_readfirstlane_b32 s%d, v%d" % (S_LAND, V_F))
    g("s_cmp_ge_i32 s%d, %s" % (S_LAND, sthr))
    g("s_cbranch_scc1 " + ex)
    budget_exit(g, ex)
    if g.sleep_lds: g("s_sleep %d" % g.sleep_lds)
    g("s_branch " + lp)
    g(ex + ":")
def prog_set(g, val):
    g("v_mov_b32 v%d, %s" % (V_F, val))
    g("ds_write_b32 v%d, v%d" % (V_PW, V_F))
def wait_prog_c(g, val):
    lp = g.lab("WP"); ex = g.lab("WPX")
    t = V_W
    g(lp + ":")
    g("ds_read_b128 v[%d:%d], v%d" % (t, t + 3, V_PR))
    g("s_waitcnt lgkmcnt(0)")
    g("v_min3_i32 v%d, v%d, v%d, v%d" % (t, t, t + 1, t + 2))
    g("v_min_i32 v%d, v%d, v%d" % (t, t, t + 3))
    g("v_cmp_gt_i32 vcc, %s, v%d" % (val, t))
    g("s_cbranch_vccz " + ex)
    budget_exit(g, ex)
    g("s_branch " + lp)
    g(ex + ":")
def tag4(g, r):
    for k in range(4): g("v_bfi_b32 v%d, s%d, v%d, v%d" % (r + k, S_MASK, V_T + k, r + k))
def strip(g, r, n):
    for k in range(n): g("v_bfi_b32 v%d, s%d, v%d, v%d" % (r + k, S_MASK, V_MID, r + k))
def poll(g, emit_loads, regs, sleep, acc, masked_last=False, pre=False, count=False):
    lp = g.lab("PL"); ex = g.lab("PX"); ck = g.lab("PC")
    if count and g.stamps and not getattr(g, 'light', 0): g("s_mov_b32 s63, 0")
    if pre: g("s_branch " + ck)
    g(lp + ":")
    emit_loads()
    g(ck + ":")
    g("s_waitcnt vmcnt(0)")
    if count and g.stamps and not getattr(g, 'light', 0): g("s_add_u32 s63, s63, 1")
    first = True
    for idx, r in enumerate(regs):
        if masked_last and idx == len(regs) - 1: g("s_mov_b32 exec_hi, 0")
        for k in range(4):
            if first:
                g("v_xor_b32 v%d, v%d, v%d" % (acc, r + k, V_T + k)); first = False
            else:
                g("v_bitop3_b32 v%d, v%d, v%d, v%d bitop3:0xBE" % (acc, r + k, V_T + k, acc))
    if masked_last: g("s_mov_b64 exec, -1")
    g("v_and_b32 v%d, s%d, v%d" % (acc, S_MASK, acc))
    g("v_cmp_ne_u32 vcc, 0, v%d" % acc)
    g("s_cbranch_vccz " + ex)
    budget_exit(g, ex)
    if sleep: g("s_sleep %d" % sleep)
    g("s_branch " + lp)
    g(ex + ":")
    if count and g.stamps and not getattr(g, 'light', 0):
        g("s_waitcnt lgkmcnt(0)")
        g("s_mul_i32 s94, s63, 100"); g("s_add_u32 s94, s94, s64"); g("s_addc_u32 s95, s65, 0")
def poll_sel(g, loads, sleep, acc, count=False, first_allow=0):
    lp = g.lab("QL"); ex = g.lab("QX")
    if count and g.stamps and not getattr(g, 'light', 0): g("s_mov_b32 s63, 0")
    if first_allow:
        ck = g.lab("QC")
        g("s_cmp_eq_u32 s%d, 0" % S_D)
        g("s_cbranch_scc1 " + lp)
        g("s_waitcnt vmcnt(%d)" % first_allow)
        g("s_branch " + ck)
    g(lp + ":")
    g("s_waitcnt vmcnt(0)")
    if first_allow: g(ck + ":")
    if count and g.stamps and not getattr(g, 'light', 0): g("s_add_u32 s63, s63, 1")
    for u, (r, emit) in enumerate(loads):
        g("v_xor_b32 v%d, v%d, v%d" % (acc + u, r, V_T))
        for k in range(1, 4): g("v_bitop3_b32 v%d, v%d, v%d, v%d bitop3:0xBE" % (acc + u, r + k, V_T + k, acc + u))
    g("v_or3_b32 v%d, v%d, v%d, v%d" % (V_F, acc, acc + 1, acc + 2))
    g("v_or_b32 v%d, v%d, v%d" % (V_F, V_F, acc + 3))
    g("v_and_b32 v%d, s%d, v%d" % (V_F, S_MASK, V_F))
    g("v_cmp_ne_u32 vcc, 0, v%d" % V_F)
    g("s_cbranch_vccz " + ex)
    g("s_mov_b32 s46, 0")
    for u, (r, emit) in enumerate(loads):
        g("v_and_b32 v%d, s%d, v%d" % (acc + u, S_MASK, acc + u))
        g("v_cmp_ne_u32 vcc, 0, v%d" % (acc + u))
        g("s_cmp_lg_u64 vcc, 0")
        g("s_cselect_b32 s47, %d, 0" % (1 << u))
        g("s_or_b32 s46, s46, s47")
    budget_exit(g, ex)
    if sleep: g("s_sleep %d" % sleep)
    for u, (r, emit) in enumerate(loads):
        sk = g.lab("QS")
        g("s_bitcmp1_b32 s46, %d" % u)
        g("s_cbranch_scc0 " + sk)
        emit()
        g(sk + ":")
    g("s_branch " + lp)
    g(ex + ":")
    if count and g.stamps and not getattr(g, 'light', 0):
        g("s_waitcnt lgkmcnt(0)")
        g("s_mul_i32 s94, s63, 100"); g("s_add_u32 s94, s94, s64"); g("s_addc_u32 s95, s65, 0")
def T4(g, r):
    g("v_permlane16_swap_b32 v%d, v%d" % (r, r + 1))
    g("v_permlane16_swap_b32 v%d, v%d" % (r + 2, r + 3))
    g("v_add_f32 v%d, v%d, v%d" % (r, r, r + 1))
    g("v_add_f32 v%d, v%d, v%d" % (r + 2, r + 2, r + 3))
    g("v_permlane32_swap_b32 v%d, v%d" % (r, r + 2))
    g("v_add_f32 v%d, v%d, v%d" % (r, r, r + 2))
def rnd_bf16(g, dst, src):
    g("v_cvt_pk_bf16_f32 v%d, v%d, v%d" % (dst, src, src))
    g("v_and_b32 v%d, s%d, v%d" % (dst, S_HI, dst))
def allreduce16(g, op, regs):
    for sh in (8, 4, 2, 1):
        for r in regs: g("%s_dpp v%d, v%d, v%d row_ror:%d row_mask:0xf bank_mask:0xf" % (op, r, r, r, sh))
def xrow(g, op, regs, tmp):
    for w in (16, 32):
        for i, r in enumerate(regs): g("v_mov_b32 v%d, v%d" % (tmp + i, r))
        for i, r in enumerate(regs): g("v_permlane%d_swap_b32 v%d, v%d" % (w, r, tmp + i))
        for i, r in enumerate(regs): g("%s v%d, v%d, v%d" % (op, r, r, tmp + i))
def thin_tile16(g, nsteps, tr_off, vb, acc, tmp):
    for s in range(nsteps):
        g("ds_read_b64_tr_b16 v[%d:%d], v%d offset:%d" % (tmp + 4 * s, tmp + 4 * s + 1, V_TR, tr_off + s * 2048))
        g("ds_read_b64 v[%d:%d], v%d offset:%d" % (tmp + 4 * s + 2, tmp + 4 * s + 3, vb, s * 32))
    for s in range(nsteps):
        g("s_waitcnt lgkmcnt(%d)" % (2 * (nsteps - 1 - s)))
        g("v_mfma_f32_16x16x16_bf16 v[%d:%d], v[%d:%d], v[%d:%d], %s" % (acc, acc + 3, tmp + 4 * s, tmp + 4 * s + 1, tmp + 4 * s + 2, tmp + 4 * s + 3, "0" if s == 0 else "v[%d:%d]" % (acc, acc + 3)))
def store_n2(g, vaddr, r):
    g("s_mov_b64 exec, s[%d:%d]" % (S_EX, S_EX + 1))
    g("global_store_dwordx4 v%d, v[%d:%d], s[%d:%d] sc1" % (vaddr, r, r + 3, S_WS, S_WS + 1))
    g("s_mov_b64 exec, -1")
def gld(g, dst, vaddr, off=0, flags="sc1"):
    g("global_load_dwordx4 v[%d:%d], v%d, s[%d:%d]%s %s" % (dst, dst + 3, vaddr, S_WS, S_WS + 1, (" offset:%d" % off) if off else "", flags))
def part_addr(g, dst, base, s_cb, s_row):
    g("s_lshl_b32 s41, s%d, 14" % s_cb)
    g("s_lshr_b32 s42, s%d, 1" % S_CW); g("s_lshl_b32 s42, s42, 12"); g("s_add_u32 s41, s41, s42")
    g("s_lshl_b32 s42, s%d, 7" % s_row); g("s_add_u32 s41, s41, s42")
    g("s_and_b32 s42, s%d, 1" % S_CW); g("s_lshl_b32 s42, s42, 6"); g("s_add_u32 s41, s41, s42")
    g("s_add_u32 s41, s41, %d" % base)
    g("v_lshlrev_b32 v%d, 13, v%d" % (dst, V_N))
    g("v_lshl_add_u32 v%d, v%d, 4, v%d" % (dst, V_KG, dst))
    g("v_add_u32 v%d, s41, v%d" % (dst, dst))

def compute(g):
    g.c("================= compute waves =================")
    if getattr(g, "loaderonly", 0):
        g("s_waitcnt lgkmcnt(0)")
        g("s_barrier")
        g("v_mov_b32 v4, %d" % PROG); g("v_mov_b32 v8, 100"); g("v_mov_b32 v9, 100"); g("v_mov_b32 v10, 100"); g("v_mov_b32 v11, 100")
        g("ds_write_b128 v4, v[8:11]")
        g("s_waitcnt lgkmcnt(0)")
        if g.lastbar: g("s_barrier")
        if g.stamps: write_stamps(g)
        g("s_endpgm")
        return
    g("s_sub_u32 s%d, s%d, 1" % (S_CW, S_WAVE))
    g("v_min_u32 v3, 55, v0")
    g("v_lshlrev_b32 v3, 4, v3")
    g("v_and_b32 v%d, 15, v0" % V_N)
    g("v_lshrrev_b32 v%d, 4, v0" % V_KG)
    g("s_mov_b32 s%d, %d" % (S_MASK, TAGMASK))
    g("s_mov_b32 s%d, 0xffff0000" % S_HI)
    g("s_mov_b32 s%d, 0x00030003" % S_EX); g("s_mov_b32 s%d, 0x00030003" % (S_EX + 1))
    g("s_mov_b32 s%d, 0x3db8aa3b" % S_C)
    g("s_waitcnt lgkmcnt(0)")
    g("global_load_dwordx4 v[%d:%d], v3, s[%d:%d]" % (T, T + 3, S_X, S_X + 1))
    g("global_load_dwordx4 v[%d:%d], v3, s[%d:%d] offset:896" % (T + 4, T + 7, S_X, S_X + 1))
    g("s_load_dwordx2 s[%d:%d], s[%d:%d], 0" % (S_E, S_E + 1, S_WS, S_WS + 1))
    g("v_mov_b32 v%d, %d" % (V_MID, TAGMID))
    g("v_mov_b32 v%d, %d" % (V_PR, PROG))
    g("v_mov_b32 v%d, %d" % (V_LR, LAND))
    g("v_lshlrev_b32 v4, 2, v0")
    g("v_add_u32 v4, %d, v4" % JUNK)
    g("s_lshl_b32 s41, s%d, 2" % S_CW)
    g("s_add_u32 s41, s41, %d" % PROG)
    g("v_mov_b32 v5, s41")
    g("v_cmp_eq_u32 vcc, 0, v0")
    g("v_cndmask_b32 v%d, v4, v5, vcc" % V_PW)
    g("v_lshrrev_b32 v4, 2, v%d" % V_N)
    g("v_lshl_add_u32 v4, v%d, 2, v4" % V_KG)
    g("v_lshrrev_b32 v5, 1, v4")
    g("v_and_b32 v5, 3, v5")
    g("v_xor_b32 v5, s%d, v5" % S_CW)
    g("v_lshlrev_b32 v5, 5, v5")
    g("v_lshl_add_u32 v5, v4, 7, v5")
    g("v_and_b32 v6, 3, v%d" % V_N)
    g("v_lshl_add_u32 v5, v6, 3, v5")
    g("v_add_u32 v%d, %d, v5" % (V_TR, AUX))
    g("s_barrier")
    g.stamp(1)
    g.c("layernorm")
    F = T + 8
    g("v_cmp_gt_u32 vcc, 56, v0")
    g("s_waitcnt vmcnt(0)")
    for k in range(8): g("v_cndmask_b32 v%d, 0, v%d, vcc" % (T + k, T + k))
    for b in range(2):
        for k in range(4):
            g("v_lshlrev_b32 v%d, 16, v%d" % (F + 8 * b + 2 * k, T + 4 * b + k))
            g("v_and_b32 v%d, s%d, v%d" % (F + 8 * b + 2 * k + 1, S_HI, T + 4 * b + k))
    SUM = T + 24
    for b in range(2):
        f = F + 8 * b
        g("v_add_f32 v%d, v%d, v%d" % (SUM + b, f, f + 1))
        for k in range(2, 8): g("v_add_f32 v%d, v%d, v%d" % (SUM + b, SUM + b, f + k))
    allreduce16(g, "v_add_f32", [SUM, SUM + 1])
    xrow(g, "v_add_f32", [SUM, SUM + 1], SUM + 2)
    g("v_mov_b32 v4, 0x3b124925")
    for b in range(2): g("v_mul_f32 v%d, v%d, v4" % (SUM + b, SUM + b))
    VAR = T + 28
    for b in range(2):
        f = F + 8 * b
        for k in range(8):
            g("v_sub_f32 v5, v%d, v%d" % (f + k, SUM + b))
            if k == 0: g("v_mul_f32 v%d, v5, v5" % (VAR + b))
            else: g("v_fma_f32 v%d, v5, v5, v%d" % (VAR + b, VAR + b))
    for b in range(2): g("v_cndmask_b32 v%d, 0, v%d, vcc" % (VAR + b, VAR + b))
    allreduce16(g, "v_add_f32", [VAR, VAR + 1])
    xrow(g, "v_add_f32", [VAR, VAR + 1], VAR + 2)
    for b in range(2):
        g("v_mul_f32 v%d, v%d, v4" % (VAR + b, VAR + b))
        rnd_bf16(g, VAR + b, VAR + b)
        g("v_add_f32 v%d, 0x3727c5ac, v%d" % (VAR + b, VAR + b))
        rnd_bf16(g, VAR + b, VAR + b)
        g("v_sqrt_f32 v%d, v%d" % (VAR + b, VAR + b))
        rnd_bf16(g, VAR + b, VAR + b)
        g("v_rcp_f32 v%d, v%d" % (VAR + b, VAR + b))
        rnd_bf16(g, SUM + b, SUM + b)
    for b in range(2):
        f = F + 8 * b
        for k in range(0, 8, 2):
            g("v_sub_f32 v%d, v%d, v%d" % (f + k, f + k, SUM + b))
            g("v_sub_f32 v%d, v%d, v%d" % (f + k + 1, f + k + 1, SUM + b))
            g("v_cvt_pk_bf16_f32 v5, v%d, v%d" % (f + k, f + k + 1))
            g("v_lshlrev_b32 v%d, 16, v5" % (f + k))
            g("v_and_b32 v%d, s%d, v5" % (f + k + 1, S_HI))
            g("v_mul_f32 v%d, v%d, v%d" % (f + k, f + k, VAR + b))
            g("v_mul_f32 v%d, v%d, v%d" % (f + k + 1, f + k + 1, VAR + b))
            g("v_cvt_pk_bf16_f32 v%d, v%d, v%d" % (T + 4 * b + k // 2, f + k, f + k + 1))
    g("v_lshlrev_b32 v4, 4, v0")
    g("v_add_u32 v4, %d, v4" % XN)
    g("s_mov_b32 exec_hi, 0x00ffffff")
    g("ds_write_b128 v4, v[%d:%d]" % (T, T + 3))
    g("ds_write_b128 v4, v[%d:%d] offset:896" % (T + 4, T + 7))
    g("s_mov_b64 exec, -1")
    g("s_waitcnt lgkmcnt(0)")
    g("s_add_u32 s%d, s%d, 1" % (S_E, S_E))
    g("s_and_b32 s41, s%d, s%d" % (S_E, S_MASK)); g("v_mov_b32 v%d, s41" % V_T)
    g("s_lshr_b32 s41, s%d, 10" % S_E); g("s_and_b32 s41, s41, s%d" % S_MASK); g("v_mov_b32 v%d, s41" % (V_T + 1))
    g("s_lshr_b32 s41, s%d, 20" % S_E); g("s_and_b32 s41, s41, s%d" % S_MASK); g("v_mov_b32 v%d, s41" % (V_T + 2))
    g("s_lshr_b32 s41, s%d, 30" % S_E); g("s_lshl_b32 s42, s%d, 2" % (S_E + 1)); g("s_or_b32 s41, s41, s42"); g("s_and_b32 s41, s41, s%d" % S_MASK); g("v_mov_b32 v%d, s41" % (V_T + 3))
    g.stamp(2)
    g.cat = "qp"
    g.c("q partial")
    g("v_and_b32 v4, 1, v%d" % V_N)
    g("v_mul_u32_u24 v4, 896, v4")
    g("v_lshl_add_u32 v4, v%d, 3, v4" % V_KG)
    g("v_add_u32 v3, %d, v4" % XN)
    g("s_lshr_b32 s41, s%d, 3" % S_I)
    g("s_mul_i32 s41, s41, 224")
    g("v_add_u32 v4, s41, v3")
    g("v_lshlrev_b32 v5, 8, v%d" % V_N)
    g("v_lshl_add_u32 v5, v%d, 4, v5" % V_KG)
    g("s_lshl_b32 s41, s%d, 6" % S_CW)
    g("v_add_u32 v5, s41, v5")
    g("s_lshl_b32 s41, s%d, 14" % S_KVH)
    g("s_lshl_b32 s42, s%d, 9" % S_I)
    g("s_add_u32 s41, s41, s42")
    g("s_add_u32 s41, s41, %d" % QP)
    g("v_add_u32 v6, s41, v5")
    wait_landed(g, "14")
    thin_tile16(g, 7, WQ_T, 4, T + 32, T)
    tag4(g, T + 32)
    store_n2(g, 6, T + 32)
    g.stamp(3)
    prog_set(g, "1")
    g.cat = "xc"
    g("s_getreg_b32 s%d, hwreg(HW_REG_XCC_ID)" % S_XCC)
    g("s_and_b32 s%d, s%d, 15" % (S_XCC, S_XCC))
    sk = g.lab("NOXC")
    g("s_cmp_lg_u32 s%d, 0" % S_CW)
    g("s_cbranch_scc1 " + sk)
    g("s_lshl_b32 s41, s%d, 16" % S_XCC)
    for k in range(4): g("v_mov_b32 v%d, s41" % (V_X + k))
    tag4(g, V_X)
    g("s_lshl_b32 s41, s%d, 9" % S_KVH); g("s_lshl_b32 s42, s%d, 4" % S_I); g("s_add_u32 s41, s41, s42"); g("s_add_u32 s41, s41, %d" % XC)
    g("v_mov_b32 v7, s41")
    g("s_mov_b64 exec, 1")
    g("global_store_dwordx4 v7, v[%d:%d], s[%d:%d] sc1" % (V_X, V_X + 3, S_WS, S_WS + 1))
    g("s_mov_b64 exec, -1")
    g(sk + ":")
    g.cat = "gp"
    g.c("gate/up partial")
    sk = g.lab("NOGU")
    g("s_cmp_eq_u32 s%d, 0" % S_G)
    g("s_cbranch_scc1 " + sk)
    g("s_lshr_b32 s41, s%d, 1" % S_KVH)
    g("s_mul_i32 s41, s41, 224")
    g("v_add_u32 v4, s41, v3")
    g("s_lshl_b32 s41, s%d, 12" % S_I)
    g("s_lshl_b32 s42, s%d, 9" % S_KVH)
    g("s_add_u32 s41, s41, s42")
    g("s_add_u32 s41, s41, %d" % GP)
    g("v_add_u32 v6, s41, v5")
    wait_landed(g, "28")
    thin_tile16(g, 7, GU_T, 4, V_S, T)
    tag4(g, V_S)
    store_n2(g, 6, V_S)
    g(sk + ":")
    g("v_mov_b32 v%d, v4" % (V_S + 4))
    g("v_add_u32 v%d, 512, v6" % (V_S + 5))
    g.cat = "ldq"
    g.c("K tiles to registers")
    g("v_and_b32 v8, 7, v%d" % V_N)
    g("v_lshlrev_b32 v8, 1, v8")
    g("s_lshl_b32 s41, s%d, 13" % S_CW)
    g("v_lshlrev_b32 v9, 9, v%d" % V_N)
    g("v_add_u32 v9, s41, v9")
    for s3 in range(4):
        g("v_add_u32 v%d, %d, v%d" % (4 + s3, 4 * s3, V_KG))
        g("v_xor_b32 v%d, v%d, v8" % (4 + s3, 4 + s3))
        g("v_lshl_add_u32 v%d, v%d, 4, v9" % (4 + s3, 4 + s3))
    g("s_lshl_b32 s41, s%d, 14" % S_KVH)
    g("s_lshl_b32 s42, s%d, 10" % S_CW)
    g("s_add_u32 s41, s41, s42")
    g("s_lshl_b32 s42, s%d, 8" % S_B)
    g("s_add_u32 s41, s41, s42")
    g("s_add_u32 s41, s41, %d" % QP)
    g("v_lshlrev_b32 v10, 12, v%d" % V_KG)
    g("v_lshl_add_u32 v10, v%d, 4, v10" % V_N)
    g("v_add_u32 v10, s41, v10")
    g("s_min_u32 s41, s%d, 27" % S_I)
    g("s_lshl_b32 s41, s41, 12")
    g("s_and_b32 s42, s%d, 1" % S_CW)
    g("s_lshl_b32 s42, s42, 8")
    g("s_add_u32 s41, s41, s42"); g("s_add_u32 s41, s41, %d" % GP)
    g("v_lshlrev_b32 v11, 10, v%d" % V_KG)
    g("v_lshl_add_u32 v11, v%d, 4, v11" % V_N)
    g("v_add_u32 v11, s41, v11")
    g("s_lshl_b32 s41, s%d, 9" % S_KVH); g("s_add_u32 s41, s41, %d" % XC)
    g("v_and_b32 v22, 31, v0"); g("v_lshlrev_b32 v22, 4, v22"); g("v_add_u32 v22, s41, v22")
    def ldq():
        gld(g, T, 10); gld(g, T + 4, 10, 512); gld(g, V_X, 22)
    def ldg():
        gld(g, V_G, 11); gld(g, V_G + 4, 11, 512)
    for r in range(4):
        if r == g.q_issue_at: ldq()
        g("s_lshl_b32 s41, s%d, 3" % S_CW)
        g("s_add_u32 s41, s41, s%d" % S_BK)
        g("s_add_u32 s41, s41, %d" % (8 + 32 * r))
        if r >= 2: g("s_add_u32 s41, s41, s%d" % S_G2)
        wait_landed(g, "s41")
        for s in range(8):
            g("ds_read_b128 v[%d:%d], v%d offset:%d" % (V_K + 32 * r + 4 * s, V_K + 32 * r + 4 * s + 3, 4 + (s & 3), (s >> 2) * 256 + (r & 1) * 32768))
        if r == 1:
            for s3 in range(4): g("v_add_u32 v%d, 0x10000, v%d" % (4 + s3, 4 + s3))
        g("s_waitcnt lgkmcnt(0)")
        prog_set(g, str(2 + r + (1 if r >= 2 else 0)))
        if r == 1:
            sk = g.lab("NOG2")
            g("s_cmp_eq_u32 s%d, 0" % S_G2)
            g("s_cbranch_scc1 " + sk)
            g("s_add_u32 s41, s%d, s%d" % (S_BK, S_G2)); g("s_add_u32 s41, s41, 64")
            wait_landed(g, "s41")
            thin_tile16(g, 7, WQ_T, V_S + 4, V_S, V_Q)
            tag4(g, V_S)
            store_n2(g, V_S + 5, V_S)
            g(sk + ":")
            prog_set(g, "4")
    g.stamp(4)
    g.c("gather q")
    poll(g, ldq, [T, T + 4, V_X], g.sleep_mid, T + 8, pre=True)
    sk = g.lab("NOGL")
    g("s_cmp_eq_u32 s%d, 0" % S_D); g("s_cbranch_scc1 " + sk)
    g("s_cmp_ge_u32 s%d, 2" % S_CW); g("s_cbranch_scc1 " + sk)
    ldg()
    g(sk + ":")
    g("v_lshrrev_b32 v%d, 16, v%d" % (V_X, V_X))
    g("v_cmp_eq_u32 vcc, s%d, v%d" % (S_XCC, V_X))
    g("s_nop 0")
    g("s_cmp_eq_u64 vcc, exec")
    g("s_cselect_b32 s%d, %d, 0" % (S_FAST, 1 if g.fast else 0))
    strip(g, T, 8)
    T4(g, T); T4(g, T + 4)
    g("v_cvt_pk_bf16_f32 v%d, v%d, v%d" % (T, T, T + 4))
    g("s_lshr_b32 s41, s%d, 1" % S_CW); g("s_lshl_b32 s41, s41, 9")
    g("s_and_b32 s42, s%d, 1" % S_CW); g("s_lshl_b32 s42, s42, 8")
    g("s_add_u32 s41, s41, s42"); g("s_add_u32 s41, s41, %d" % QB)
    g("v_lshlrev_b32 v4, 3, v%d" % V_N)
    g("v_lshl_add_u32 v4, v%d, 1, v4" % V_KG)
    g("v_add_u32 v4, s41, v4")
    g("ds_write_b16 v4, v%d" % T)
    g("ds_write_b16_d16_hi v4, v%d offset:128" % T)
    prog_set(g, "7")
    wait_prog_c(g, "7")
    g("v_and_b32 v4, 1, v%d" % V_N)
    g("v_lshlrev_b32 v4, 9, v4")
    g("v_lshl_add_u32 v4, v%d, 4, v4" % V_KG)
    g("v_add_u32 v4, %d, v4" % QB)
    for s in range(8): g("ds_read_b128 v[%d:%d], v4 offset:%d" % (V_Q + 4 * s, V_Q + 4 * s + 3, s * 64))
    g.c("QK")
    for s in range(8):
        g("s_waitcnt lgkmcnt(%d)" % (7 - s))
        for r in range(4):
            g("v_mfma_f32_16x16x32_bf16 v[%d:%d], v[%d:%d], v[%d:%d], %s" % (V_S + 4 * r, V_S + 4 * r + 3, V_K + 32 * r + 4 * s, V_K + 32 * r + 4 * s + 3, V_Q + 4 * s, V_Q + 4 * s + 3, "0" if s == 0 else "v[%d:%d]" % (V_S + 4 * r, V_S + 4 * r + 3)))
    g.stamp(5)
    g.cat = "st"
    g.c("softmax")
    for k in range(0, 16, 2):
        g("v_cvt_pk_bf16_f32 v4, v%d, v%d" % (V_S + k, V_S + k + 1))
        g("v_lshlrev_b32 v%d, 16, v4" % (V_S + k))
        g("v_and_b32 v%d, s%d, v4" % (V_S + k + 1, S_HI))
    g("v_max3_f32 v4, v%d, v%d, v%d" % (V_S, V_S + 1, V_S + 2))
    for k in range(3, 15, 2): g("v_max3_f32 v4, v4, v%d, v%d" % (V_S + k, V_S + k + 1))
    g("v_max_f32 v4, v4, v%d" % (V_S + 15))
    xrow(g, "v_max_f32", [4], 5)
    g("v_and_b32 v6, 1, v%d" % V_N)
    g("v_lshlrev_b32 v6, 4, v6")
    g("v_add_u32 v6, %d, v6" % WM)
    g("s_lshl_b32 s41, s%d, 2" % S_CW)
    g("v_add_u32 v7, s41, v6")
    g("ds_write_b32 v7, v4")
    prog_set(g, "8")
    wait_prog_c(g, "8")
    g("ds_read_b128 v[%d:%d], v6" % (T, T + 3))
    g("s_waitcnt lgkmcnt(0)")
    g("v_max3_f32 v4, v%d, v%d, v%d" % (T, T + 1, T + 2))
    g("v_max_f32 v4, v4, v%d" % (T + 3))
    g("v_mul_f32 v5, s%d, v4" % S_C)
    for k in range(16):
        g("v_fma_f32 v%d, v%d, s%d, -v5" % (V_S + k, V_S + k, S_C))
    for k in range(16): g("v_exp_f32 v%d, v%d" % (V_S + k, V_S + k))
    g("v_add_f32 v8, v%d, v%d" % (V_S, V_S + 1))
    for k in range(2, 16): g("v_add_f32 v8, v8, v%d" % (V_S + k))
    xrow(g, "v_add_f32", [8], 9)
    g("ds_write_b32 v7, v8 offset:%d" % (WL - WM))
    g("v_and_b32 v9, 1, v%d" % V_N)
    g("v_lshlrev_b32 v9, 5, v9")
    g("v_lshl_add_u32 v9, v%d, 3, v9" % V_KG)
    g("v_add_u32 v3, %d, v9" % PB)
    g("s_lshl_b32 s41, s%d, 6" % S_CW)
    g("v_add_u32 v10, s41, v3")
    for r in range(4):
        g("v_cvt_pk_bf16_f32 v%d, v%d, v%d" % (T + 2 * r, V_S + 4 * r, V_S + 4 * r + 1))
        g("v_cvt_pk_bf16_f32 v%d, v%d, v%d" % (T + 2 * r + 1, V_S + 4 * r + 2, V_S + 4 * r + 3))
        g("ds_write_b64 v10, v[%d:%d] offset:%d" % (T + 2 * r, T + 2 * r + 1, r * 256))
    prog_set(g, "9")
    wait_prog_c(g, "9")
    sk = g.lab("NOST")
    g("s_cmp_lg_u32 s%d, 0" % S_CW)
    g("s_cbranch_scc1 " + sk)
    g("ds_read_b128 v[%d:%d], v6 offset:%d" % (T, T + 3, WL - WM))
    g("s_waitcnt lgkmcnt(0)")
    g("v_add_f32 v%d, v%d, v%d" % (T, T, T + 1))
    g("v_add_f32 v%d, v%d, v%d" % (T + 2, T + 2, T + 3))
    g("v_add_f32 v%d, v%d, v%d" % (T + 1, T, T + 2))
    g("v_mov_b32 v%d, v4" % T)
    g("v_mov_b32 v%d, v4" % (T + 2))
    g("v_mov_b32 v%d, v%d" % (T + 3, T + 1))
    tag4(g, T)
    g("s_lshl_b32 s41, s%d, 1" % S_KVH); g("s_add_u32 s41, s41, s%d" % S_B); g("s_lshl_b32 s41, s41, 4"); g("s_add_u32 s41, s41, s%d" % S_J)
    g("s_lshl_b32 s41, s41, 5"); g("s_add_u32 s41, s41, %d" % ST)
    g("v_lshlrev_b32 v5, 4, v0")
    g("v_add_u32 v5, s41, v5")
    g("s_mov_b64 exec, 3")
    g("global_store_dwordx4 v5, v[%d:%d], s[%d:%d] sc1" % (T, T + 3, S_WS, S_WS + 1))
    g("s_mov_b64 exec, -1")
    g(sk + ":")
    g.stamp(6)
    g.cat = "ffn"
    g.c("ffn down partial")
    sk = g.lab("NOFFN")
    g("s_cmp_eq_u32 s%d, 0" % S_D)
    g("s_cbranch_scc1 " + sk)
    sk2 = g.lab("NOH")
    g("s_cmp_ge_u32 s%d, 2" % S_CW)
    g("s_cbranch_scc1 " + sk2)
    poll(g, ldg, [V_G, V_G + 4], g.sleep_mid, T + 8, pre=True)
    strip(g, V_G, 8)
    T4(g, V_G); T4(g, V_G + 4)
    rnd_bf16(g, T, V_G); rnd_bf16(g, T + 4, V_G + 4)
    g("v_mul_f32 v5, v%d, v%d" % (T, T))
    g("v_mov_b32 v6, 0x3d372713")
    g("v_fma_f32 v5, v5, v6, 1.0")
    g("v_mul_f32 v5, v5, v%d" % T)
    g("v_mul_f32 v5, 0xc0135761, v5")
    g("v_exp_f32 v5, v5")
    g("v_add_f32 v5, 1.0, v5")
    g("v_rcp_f32 v5, v5")
    g("v_mul_f32 v5, v5, v%d" % T)
    rnd_bf16(g, 5, 5)
    g("v_mul_f32 v5, v5, v%d" % (T + 4))
    g("v_cvt_pk_bf16_f32 v5, v5, v5")
    g("s_lshl_b32 s41, s%d, 7" % S_CW); g("s_add_u32 s41, s41, %d" % HB)
    g("v_lshlrev_b32 v4, 3, v%d" % V_N)
    g("v_lshl_add_u32 v4, v%d, 1, v4" % V_KG)
    g("v_add_u32 v4, s41, v4")
    g("ds_write_b16 v4, v5")
    g(sk2 + ":")
    prog_set(g, "10")
    if not g.defer_wd:
        part_addr(g, 6, YP, S_KVH, S_I)
        g("v_and_b32 v4, 1, v%d" % V_N)
        g("v_lshlrev_b32 v4, 7, v4")
        g("v_lshl_add_u32 v4, v%d, 3, v4" % V_KG)
        g("v_add_u32 v4, %d, v4" % HB)
        wait_prog_c(g, "10")
        wait_landed(g, "s%d" % S_BV)
        thin_tile16(g, 4, WD_T, 4, T + 16, T)
        tag4(g, T + 16)
        store_n2(g, 6, T + 16)
    else:
        wait_prog_c(g, "10")
    g(sk + ":")
    g.stamp(7)
    g.c("tail addresses")
    g("s_lshl_b32 s41, s%d, 1" % S_KVH); g("s_add_u32 s41, s41, s%d" % S_B); g("s_lshl_b32 s41, s41, 4"); g("s_add_u32 s41, s41, s%d" % S_J)
    g("s_lshl_b32 s41, s41, 11")
    g("s_lshl_b32 s42, s%d, 8" % S_CW); g("s_add_u32 s41, s41, s42"); g("s_add_u32 s41, s41, %d" % OP)
    g("v_lshlrev_b32 v%d, 10, v%d" % (A_PUB, V_N))
    g("v_lshl_add_u32 v%d, v%d, 4, v%d" % (A_PUB, V_KG, A_PUB))
    g("v_add_u32 v%d, s41, v%d" % (A_PUB, A_PUB))
    g("v_bfe_u32 v23, v0, 4, 1"); g("v_lshlrev_b32 v23, 10, v23"); g("v_lshl_add_u32 v23, v%d, 4, v23" % V_N); g("v_add_u32 v23, s41, v23")
    g("s_lshl_b32 s41, s%d, 1" % S_KVH); g("s_lshr_b32 s42, s%d, 1" % S_CW); g("s_add_u32 s41, s41, s42"); g("s_lshl_b32 s41, s41, 15")
    g("s_and_b32 s42, s%d, 3" % S_RBL); g("s_lshl_b32 s42, s42, 9"); g("s_add_u32 s41, s41, s42")
    g("s_and_b32 s42, s%d, 1" % S_CW); g("s_lshl_b32 s42, s42, 8"); g("s_add_u32 s41, s41, s42")
    g("s_add_u32 s41, s41, %d" % OP)
    g("v_lshlrev_b32 v%d, 11, v%d" % (A_G0, V_KG))
    g("v_lshl_add_u32 v%d, v%d, 4, v%d" % (A_G0, V_N, A_G0))
    g("v_add_u32 v%d, s41, v%d" % (A_G0, A_G0))
    for u in range(1, 4): g("v_add_u32 v%d, %d, v%d" % (A_G0 + u, 8192 * u, A_G0))
    g("v_lshrrev_b32 v8, 3, v%d" % V_N); g("v_lshlrev_b32 v8, 5, v8")
    g("v_and_b32 v9, 3, v%d" % V_N); g("v_lshl_add_u32 v8, v9, 3, v8")
    g("v_bfe_u32 v9, v%d, 2, 1" % V_N); g("v_lshl_add_u32 v8, v9, 2, v8")
    g("v_add_u32 v8, v8, v%d" % V_KG); g("v_lshlrev_b32 v8, 1, v8")
    g("s_lshr_b32 s41, s%d, 1" % S_CW); g("s_lshl_b32 s41, s41, 8")
    g("s_and_b32 s42, s%d, 1" % S_CW); g("s_lshl_b32 s42, s42, 7"); g("s_add_u32 s41, s41, s42"); g("s_add_u32 s41, s41, %d" % OB)
    g("v_add_u32 v%d, s41, v8" % A_OBW)
    g("v_and_b32 v9, 1, v%d" % V_N); g("v_lshlrev_b32 v9, 8, v9"); g("v_lshl_add_u32 v9, v%d, 4, v9" % V_KG); g("v_add_u32 v%d, %d, v9" % (A_OBR, OB))
    g("s_lshl_b32 s45, s%d, 2" % S_KVH); g("s_add_u32 s45, s45, s%d" % S_RBL); g("s_and_b32 s45, s45, 31")
    g("s_min_u32 s46, s%d, 6" % S_CB)
    part_addr(g, A_SP, SP, 46, 45)
    g("s_lshl_b32 s41, s%d, 10" % S_KVH)
    g("s_lshr_b32 s42, s%d, 1" % S_RBL); g("s_and_b32 s42, s42, 1"); g("s_lshl_b32 s42, s42, 4"); g("s_add_u32 s41, s41, s42")
    g("s_add_u32 s41, s41, %d" % ST)
    g("v_and_b32 v%d, 31, v0" % A_STA)
    g("v_lshlrev_b32 v%d, 5, v%d" % (A_STA, A_STA))
    g("v_add_u32 v%d, s41, v%d" % (A_STA, A_STA))
    g("s_min_u32 s47, s%d, 27" % S_F)
    g("s_cmp_ge_u32 s47, 14"); g("s_cselect_b32 s42, 1, 0")
    g("s_mul_i32 s43, s42, 14"); g("s_sub_u32 s43, s47, s43")
    g("s_lshr_b32 s44, s43, 1")
    g("s_and_b32 s43, s43, 1")
    g("s_lshl_b32 s41, s44, 1"); g("s_add_u32 s41, s41, s42"); g("s_lshl_b32 s41, s41, 1"); g("s_add_u32 s41, s41, s43"); g("s_lshl_b32 s41, s41, 12")
    g("v_lshlrev_b32 v%d, 4, v0" % A_PART)
    g("v_add_u32 v%d, s41, v%d" % (A_PART, A_PART))
    g("s_mul_i32 s42, s42, 448"); g("s_lshl_b32 s44, s44, 6"); g("s_add_u32 s42, s42, s44"); g("s_lshl_b32 s43, s43, 5"); g("s_add_u32 s42, s42, s43")
    g("v_and_b32 v%d, 7, v0" % A_OUT)
    g("v_lshl_add_u32 v%d, v%d, 2, v%d" % (A_OUT, A_OUT, V_KG))
    g("v_add_u32 v%d, s42, v%d" % (A_OUT, A_OUT))
    g("v_lshlrev_b32 v%d, 1, v%d" % (A_OUT, A_OUT))
    if g.defer_wd:
        part_addr(g, A_YP, YP, S_KVH, S_I)
        g("v_and_b32 v%d, 1, v%d" % (A_HB, V_N))
        g("v_lshlrev_b32 v%d, 7, v%d" % (A_HB, A_HB))
        g("v_lshl_add_u32 v%d, v%d, 3, v%d" % (A_HB, V_KG, A_HB))
        g("v_add_u32 v%d, %d, v%d" % (A_HB, HB, A_HB))
    g.cat = "pre"
    g.c("PV")
    g("v_lshrrev_b32 v8, 2, v%d" % V_N)
    g("v_lshl_add_u32 v8, v%d, 2, v8" % V_KG)
    g("v_and_b32 v9, 7, v8")
    g("v_lshlrev_b32 v8, 9, v8")
    g("v_and_b32 v10, 3, v%d" % V_N)
    g("v_lshl_add_u32 v8, v10, 3, v8")
    g("s_lshl_b32 s41, s%d, 2" % S_CW)
    for mt in range(4):
        g("s_add_u32 s42, s41, %d" % mt)
        g("v_xor_b32 v%d, s42, v9" % (4 + mt))
        g("v_lshl_add_u32 v%d, v%d, 5, v8" % (4 + mt, 4 + mt))
    for k in range(16): g("v_mov_b32 v%d, 0" % (V_ACC + k))
    g("s_add_u32 s%d, s%d, 8" % (S_THR, S_BV))
    def pv_body():
        for mt in range(4): g("ds_read_b64_tr_b16 v[%d:%d], v%d" % (T + 2 + 2 * mt, T + 3 + 2 * mt, 4 + mt))
    def pv_mfma():
        for mt in range(4):
            g("s_waitcnt lgkmcnt(%d)" % (3 - mt))
            g("v_mfma_f32_16x16x16_bf16 v[%d:%d], v[%d:%d], v[%d:%d], v[%d:%d]" % (V_ACC + 4 * mt, V_ACC + 4 * mt + 3, T + 2 + 2 * mt, T + 3 + 2 * mt, T, T + 1, V_ACC + 4 * mt, V_ACC + 4 * mt + 3))
    def pv_loop(n):
        g("s_mov_b32 s%d, %d" % (S_CNT, n))
        lp = g.lab("PV")
        g(lp + ":")
        wait_landed(g, "s%d" % S_THR)
        g("ds_read_b64 v[%d:%d], v3" % (T, T + 1))
        pv_body()
        for mt in range(4): g("v_add_u32 v%d, 8192, v%d" % (4 + mt, 4 + mt))
        g("v_add_u32 v3, 64, v3")
        g("s_add_u32 s%d, s%d, 8" % (S_THR, S_THR))
        g("s_sub_u32 s%d, s%d, 1" % (S_CNT, S_CNT))
        pv_mfma()
        g("s_cmp_lg_u32 s%d, 0" % S_CNT)
        g("s_cbranch_scc1 " + lp)
    pv_loop(g.stat_at)
    fin = g.lab("PFIN"); jn = g.lab("PJN")
    g("s_cmp_eq_u32 s%d, 0" % S_O)
    g("s_cbranch_scc1 " + fin)
    gld(g, V_ST, A_STA)
    g(fin + ":")
    if g.ldpre < 0: gld(g, V_G, 23)
    g.stamp(8)
    if g.lastbar:
        pv_loop(15 - g.stat_at)
        g("ds_read_b64 v[%d:%d], v3" % (T, T + 1))
        g("s_waitcnt lgkmcnt(0)")
        g("s_barrier")
        pv_body()
        pv_mfma()
    else:
        pv_loop(16 - g.stat_at)
    g.stamp(9)
    g.cat = "op"
    g.c("publish o")
    for mt in range(4): tag4(g, V_ACC + 4 * mt)
    g("s_mov_b64 exec, s[%d:%d]" % (S_EX, S_EX + 1))
    slow = g.lab("OSLOW"); dn = g.lab("ODONE")
    g("s_cmp_eq_u32 s%d, 0" % S_FAST)
    g("s_cbranch_scc1 " + slow)
    for mt in range(4):
        g("global_store_dwordx4 v%d, v[%d:%d], s[%d:%d] offset:%d" % (A_PUB, V_ACC + 4 * mt, V_ACC + 4 * mt + 3, S_WS, S_WS + 1, mt * 64))
    g("s_branch " + dn)
    g(slow + ":")
    for mt in range(4):
        g("global_store_dwordx4 v%d, v[%d:%d], s[%d:%d] offset:%d sc1" % (A_PUB, V_ACC + 4 * mt, V_ACC + 4 * mt + 3, S_WS, S_WS + 1, mt * 64))
    g(dn + ":")
    g("s_mov_b64 exec, -1")
    g.stamp(10)
    fin = g.lab("FIN2"); end = g.lab("CEND")
    g("s_cmp_eq_u32 s%d, 0" % S_O)
    g("s_cbranch_scc1 " + fin)
    g.cat = "tail"
    g.c("stats")
    lp = g.lab("SL"); ex = g.lab("SX")
    g("s_waitcnt vmcnt(4)")
    g(lp + ":")
    g("v_xor_b32 v57, v%d, v%d" % (V_ST, V_T))
    for k in range(1, 4): g("v_bitop3_b32 v57, v%d, v%d, v57 bitop3:0xBE" % (V_ST + k, V_T + k))
    g("v_and_b32 v57, s%d, v57" % S_MASK)
    g("v_cmp_ne_u32 vcc, 0, v57")
    g("s_cbranch_vccz " + ex)
    budget_exit(g, ex)
    gld(g, V_ST, A_STA)
    g("s_waitcnt vmcnt(0)")
    g("s_branch " + lp)
    g(ex + ":")
    def ldo():
        for u in range(4): gld(g, T + 4 * u, A_G0 + u)
    ldo()
    Z = V_ST
    g("v_and_b32 v%d, s%d, v%d" % (Z, S_HI, Z))
    g("v_mov_b32 v57, v%d" % Z)
    allreduce16(g, "v_max_f32", [57])
    g("v_sub_f32 v57, v%d, v57" % Z)
    g("v_mul_f32 v57, s%d, v57" % S_C)
    g("v_exp_f32 v57, v57")
    g("v_mul_f32 v58, v57, v%d" % (Z + 1))
    allreduce16(g, "v_add_f32", [58])
    g("v_rcp_f32 v58, v58")
    g("v_mul_f32 v57, v57, v58")
    g("s_lshr_b32 s41, s%d, 1" % S_CW); g("s_lshl_b32 s41, s41, 6")
    g("v_lshlrev_b32 v58, 2, v%d" % V_KG)
    g("v_add_u32 v58, s41, v58")
    for u in range(4):
        g("v_add_u32 v59, %d, v58" % (16 * u))
        g("ds_bpermute_b32 v%d, v59, v57" % (V_C + u))
    if g.defer_wd:
        sk = g.lab("NOYP")
        g("s_cmp_eq_u32 s%d, 0" % S_D)
        g("s_cbranch_scc1 " + sk)
        g("s_add_u32 s41, s%d, 136" % S_BV)
        wait_landed(g, "s41")
        thin_tile16(g, 4, WD_T, A_HB, 192, 160)
        tag4(g, 192)
        store_n2(g, A_YP, 192)
        g(sk + ":")
    g("s_add_u32 s41, s%d, 144" % S_BV)
    if g.defer_wd: g("s_add_u32 s41, s41, s%d" % S_D)
    wait_landed(g, "s41")
    A = V_Q
    for s in range(4):
        g("ds_read_b64_tr_b16 v[%d:%d], v%d offset:%d" % (A + 8 * s, A + 8 * s + 1, V_TR, WO_T + s * 4096))
        g("ds_read_b64_tr_b16 v[%d:%d], v%d offset:%d" % (A + 8 * s + 2, A + 8 * s + 3, V_TR, WO_T + s * 4096 + 2048))
    g.c("gather o")
    if g.selpoll:
        poll_sel(g, [(T + 4 * u, (lambda u=u: gld(g, T + 4 * u, A_G0 + u))) for u in range(4)], g.sleep_tail, T + 16, count=True, first_allow=(1 if g.defer_wd else 0))
    else:
        poll(g, ldo, [T, T + 4, T + 8, T + 12], g.sleep_tail, T + 16, pre=True, count=True)
    g.stamp(12)
    if not g.nostrip: strip(g, T, 16)
    g("s_waitcnt lgkmcnt(0)")
    for k in range(4): g("v_mul_f32 v%d, v%d, v%d" % (T + k, T + k, V_C))
    for u in range(1, 4):
        for k in range(4): g("v_fma_f32 v%d, v%d, v%d, v%d" % (T + k, T + 4 * u + k, V_C + u, T + k))
    T4(g, T)
    g("v_cvt_pk_bf16_f32 v%d, v%d, v%d" % (T, T, T))
    g("ds_write_b16 v%d, v%d" % (A_OBW, T))
    g("s_waitcnt lgkmcnt(0)")
    g("s_barrier")
    g.stamp(13)
    for s in range(4):
        g("ds_read_b128 v[%d:%d], v%d offset:%d" % (A + 8 * s + 4, A + 8 * s + 7, A_OBR, s * 64))
    for s in range(4):
        g("s_waitcnt lgkmcnt(%d)" % (3 - s))
        g("v_mfma_f32_16x16x32_bf16 v[%d:%d], v[%d:%d], v[%d:%d], %s" % (T, T + 3, A + 8 * s, A + 8 * s + 3, A + 8 * s + 4, A + 8 * s + 7, "0" if s == 0 else "v[%d:%d]" % (T, T + 3)))
    tag4(g, T)
    store_n2(g, A_SP, T)
    if g.wbl2:
        sk = g.lab("NOWB")
        g("s_cmp_lg_u32 s%d, 0" % S_CW); g("s_cbranch_scc1 " + sk)
        if g.wbl2 == 1:
            g("s_cmp_lg_u32 s%d, 0" % S_I); g("s_cbranch_scc1 " + sk)
        g("buffer_wbl2 sc1")
        g(sk + ":")
    g.stamp(11)
    g("s_branch " + end)
    g(fin + ":")
    g("s_cmp_lg_u32 s%d, 0" % S_CW); g("s_cbranch_scc1 " + end)
    g("s_cmp_ge_u32 s%d, 28" % S_F); g("s_cbranch_scc1 " + end)
    g("global_load_ushort v11, v%d, s[%d:%d]" % (A_OUT, S_X, S_X + 1))
    g("v_add_u32 v4, %d, v%d" % (YP, A_PART))
    for k in range(4): g("v_mov_b32 v%d, 0" % (T + 12 + k))
    def ld4(last_mask):
        def f():
            for u in range(3): gld(g, T + 4 * u, 4, 1024 * u)
            if last_mask: g("s_mov_b32 exec_hi, 0")
            gld(g, T + 12, 4, 3072)
            if last_mask: g("s_mov_b64 exec, -1")
        return f
    def red32(dst):
        if not g.nostrip: strip(g, T, 16)
        for k in range(4):
            g("v_add_f32 v%d, v%d, v%d" % (T + k, T + k, T + 4 + k))
            g("v_add_f32 v%d, v%d, v%d" % (T + 8 + k, T + 8 + k, T + 12 + k))
        for k in range(4): g("v_add_f32 v%d, v%d, v%d" % (T + k, T + k, T + 8 + k))
        for k in range(4): g("v_add_f32_dpp v%d, v%d, v%d row_ror:8 row_mask:0xf bank_mask:0xf" % (T + k, T + k, T + k))
        T4(g, T)
        rnd_bf16(g, dst, T)
    poll(g, ld4(True), [T, T + 4, T + 8, T + 12], (g.sleep_y if g.defer_wd else g.sleep_mid), T + 16, masked_last=True)
    red32(10)
    g("v_mul_f32 v5, 0xbfb8aa3b, v10")
    g("v_exp_f32 v5, v5")
    g("v_add_f32 v5, 1.0, v5")
    g("v_rcp_f32 v5, v5")
    g("v_mul_f32 v10, v10, v5")
    rnd_bf16(g, 10, 10)
    g("v_lshlrev_b32 v11, 16, v11")
    g("v_add_u32 v4, %d, v%d" % (SP, A_PART))
    g("s_mov_b32 s42, 0x00ff00ff"); g("s_mov_b32 s43, 0x00ff00ff")
    if g.selfin:
        ld4(False)()
        poll_sel(g, [(T + 4 * u, (lambda u=u: gld(g, T + 4 * u, 4, 1024 * u))) for u in range(4)], g.sleep_fin, T + 16, count=True)
    else:
        poll(g, ld4(False), [T, T + 4, T + 8, T + 12], g.sleep_fin, T + 16, count=True)
    g.stamp(12)
    red32(5)
    g("v_mul_f32 v5, v5, v10")
    rnd_bf16(g, 5, 5)
    g("v_add_f32 v5, v5, v11")
    g("v_cvt_pk_bf16_f32 v5, v5, v5")
    g("s_mov_b64 exec, s[42:43]")
    g("global_store_short v%d, v5, s[%d:%d]" % (A_OUT, S_OUT, S_OUT + 1))
    g("s_mov_b64 exec, -1")
    g.stamp(11)
    g("s_cmp_lg_u32 s%d, 0" % S_F); g("s_cbranch_scc1 " + end)
    g("v_mov_b32 v4, 0"); g("v_mov_b32 v5, s%d" % S_E)
    g("s_mov_b64 exec, 1")
    g("global_store_dword v4, v5, s[%d:%d] sc1" % (S_WS, S_WS + 1))
    g("s_mov_b64 exec, -1")
    g(end + ":")
    if g.stamps: write_stamps(g)
    g("s_endpgm")

def diag_filter(g, lines):
    drop = getattr(g, "drop", None)
    if drop:
        out = []
        for l in lines:
            t = l.strip()
            if "cat=" in t and t.split("cat=")[1].strip() in drop: continue
            if t.startswith("v_cmp_ne_u32 vcc, 0,"):
                out.append("  s_mov_b64 vcc, 0"); continue
            out.append(l)
        return out
    if not getattr(g, "nomem", 0): return lines
    out = []; incomp = False
    for l in lines:
        if l.startswith("L_compute:"): incomp = True
        t = l.strip()
        if incomp and (t.startswith("global_load_dwordx4") and "sc1" in t):
            if g.nomem & 1: continue
        if incomp and t.startswith("global_store") and ("s[24:25]" in t) and "v100" not in t and "v[104:107]" not in t:
            if g.nomem & 2: continue
        if incomp and (g.nomem & 1) and t.startswith("v_cmp_ne_u32 vcc, 0,"):
            out.append("  s_mov_b64 vcc, 0"); continue
        out.append(l)
    return out

def build(**kw):
    g = G(**kw)
    g("s_cmp_ge_u32 s2, 256")
    g("s_cbranch_scc1 L_exit")
    g.stamp(0)
    g("s_load_dwordx8 s[4:11], s[0:1], 0")
    g("s_load_dwordx2 s[12:13], s[0:1], 32")
    g("s_load_dwordx4 s[16:19], s[0:1], 48")
    g("s_load_dwordx4 s[20:23], s[0:1], 64")
    g("s_load_dwordx2 s[24:25], s[0:1], 88")
    g("v_lshrrev_b32 v1, 6, v0")
    g("v_and_b32 v0, 63, v0")
    g("s_and_b32 s%d, s2, 7" % S_KVH)
    g("v_readfirstlane_b32 s%d, v1" % S_WAVE)
    g("s_lshr_b32 s%d, s2, 3" % S_I)
    g("s_lshr_b32 s%d, s%d, 4" % (S_B, S_I))
    g("s_and_b32 s%d, s%d, 15" % (S_J, S_I))
    g("s_cmp_lt_u32 s%d, 28" % S_I)
    g("s_cselect_b32 s%d, 14, 0" % S_G)
    g("s_cselect_b32 s%d, 16, 0" % S_O)
    g("s_cselect_b32 s%d, 8, 0" % S_D)
    g("s_cmp_lt_u32 s%d, 7" % S_KVH)
    g("s_cselect_b32 s%d, s%d, 0" % (S_D, S_D))
    if g.evenodd:
        g("s_bitcmp1_b32 s2, 0")
        g("s_cselect_b32 s%d, 0, s%d" % (S_G, S_G))
        g("s_mov_b32 s%d, s%d" % (S_G2, S_G))
    else:
        g("s_mov_b32 s%d, 0" % S_G2)
    g("s_add_u32 s%d, s%d, 14" % (S_BK, S_G))
    if g.defer_wd: g("s_mov_b32 s%d, s%d" % (S_BV, S_BK))
    else: g("s_add_u32 s%d, s%d, s%d" % (S_BV, S_BK, S_D))
    g("s_add_u32 s%d, s%d, s%d" % (S_BV, S_BV, S_G2))
    g("s_add_u32 s%d, s%d, 128" % (S_BV, S_BV))
    g("s_mul_i32 s%d, s%d, 37" % (S_RBL, S_I))
    g("s_lshr_b32 s%d, s%d, 8" % (S_RBL, S_RBL))
    g("s_mul_i32 s41, s%d, 7" % S_RBL)
    g("s_sub_u32 s%d, s%d, s41" % (S_CB, S_I))
    g("s_lshl_b32 s%d, s%d, 2" % (S_F, S_KVH))
    g("s_add_u32 s%d, s%d, s%d" % (S_F, S_F, S_I))
    g("s_sub_u32 s%d, s%d, 28" % (S_F, S_F))
    g("s_mov_b32 s%d, %d" % (S_BUD, 1 << 18))
    g("s_mov_b32 s%d, 0xC0000000" % S_LAND)
    if g.stamps:
        for k in range(1, 16): g("s_mov_b64 s[%d:%d], 0" % (64 + 2 * k, 65 + 2 * k))
    g("s_cmp_eq_u32 s%d, 0" % S_WAVE)
    g("s_cbranch_scc0 L_compute")
    loader(g)
    g("L_compute:")
    compute(g)
    g("L_exit:")
    g("s_endpgm")
    lines = hz.fix(diag_filter(g, g.l))
    name = KN + "_kernel"
    s = HDR + "; @launch grid=(256,1,1) block=(320,1,1) lds=%d\n" % LDS_BYTES
    s += '.amdgcn_target "amdgcn-amd-amdhsa--gfx950"\n.text\n.globl %s\n.p2align 8\n.type %s,@function\n%s:\n' % (name, name, name)
    s += "\n".join(lines) + "\n"
    s += '.section .rodata,"a"\n.p2align 6\n.amdhsa_kernel %s\n' % name
    s += "  .amdhsa_next_free_vgpr 256\n  .amdhsa_next_free_sgpr 102\n  .amdhsa_accum_offset 256\n"
    s += "  .amdhsa_group_segment_fixed_size 0\n  .amdhsa_kernarg_size 96\n  .amdhsa_user_sgpr_count 2\n"
    s += "  .amdhsa_user_sgpr_kernarg_segment_ptr 1\n  .amdhsa_system_sgpr_workgroup_id_x 1\n"
    s += "  .amdhsa_float_denorm_mode_32 3\n"
    s += ".end_amdhsa_kernel\n"
    return s

if __name__ == "__main__":
    ap = argparse.ArgumentParser()
    ap.add_argument("-o", default="k.s")
    ap.add_argument("--stamps", action="store_true")
    ap.add_argument("--set", action="append", default=[])
    a = ap.parse_args()
    kw = {x.split("=")[0]: (int(x.split("=")[1]) if x.split("=")[1].lstrip("-").isdigit() else x.split("=")[1].split(",")) for x in a.set}
    open(a.o, "w").write(build(stamps=a.stamps, **kw))
```

```python
import sys, argparse
from asmlib import HDR, KN
import hz

KV = 0
AUX = 131072
WQ_T = 0; GU_T = 14336; WD_T = 0; WO_T = 8192
MISC = 159744
XN = MISC; PB = MISC
QB = MISC + 1792; OB = QB
HB = MISC + 2816
WM = MISC + 3072; WL = MISC + 3104
PROG = MISC + 3136
LAND = MISC + 3200
JUNK = MISC + 3456
LDS_BYTES = 163840
QP = 0x1000; GP = 0x21000; ST = 0x3D000; XC = 0x3F000; YP = 0x40000; SP = 0x60000; OP = 0x80000
STAMP = 512 << 20
TAGMASK = 0x3FF; TAGMID = 0x200

S_X, S_K, S_V, S_WQ, S_WO, S_WG, S_WU, S_WD, S_OUT, S_WS = 4, 6, 8, 10, 12, 16, 18, 20, 22, 24
S_KVH, S_I, S_B, S_J, S_WAVE, S_CW = 26, 27, 28, 29, 30, 31
S_E = 32
S_G, S_D, S_O = 34, 35, 36
S_BK, S_BV = 37, 38
S_MASK = 39; S_BUD = 40
S_RBL, S_CB, S_F, S_XCC = 50, 51, 52, 53
S_EX = 54
S_C = 56; S_HI = 57; S_FAST = 59; S_LAND = 60
S_THR, S_CNT = 61, 62
S_G2 = 58
V_N, V_KG = 1, 2
V_T = 12
V_MID, V_PW, V_PR, V_LR, V_TR, V_F = 16, 17, 18, 19, 20, 21
T = 24
V_ST = 40
V_G = 44
V_C = 52
V_X = 56
V_W = 60
V_Q = 64
V_S = 96
V_ACC = 112
V_K = 128
A_PUB, A_G0, A_OBW, A_OBR, A_SP, A_STA, A_OUT, A_PART, A_YP, A_HB = 128, 129, 133, 134, 135, 136, 137, 138, 139, 140

class G:
    def __init__(self, **kw):
        self.l = []; self.n = 0
        self.W = 16; self.stamps = False; self.sleep_mid = 8; self.sleep_tail = 2; self.sleep_fin = 0
        self.fast = 1; self.stat_at = 12; self.q_issue_at = 2; self.dbgspan = 0; self.lastbar = 1; self.dbgclk = 0; self.WK = 40; self.selfin = 1; self.evenodd = 0; self.defer_wd = 0; self.sleep_y = 2; self.wbl2 = 0; self.ldpre = -1; self.selpoll = 1; self.sleep_lds = 0; self.nostrip = 1
        for k, v in kw.items(): setattr(self, k, v)
    def __call__(self, s):
        for x in s.split("\n"):
            x = x.strip()
            if x.startswith("global_") and getattr(self, "cat", None): x += " ; cat=" + self.cat
            self.l.append(x if x.endswith(":") else "  " + x)
    def lab(self, b="L"):
        self.n += 1; return "%s_%d" % (b, self.n)
    def c(self, s): self.l.append("  ; " + s)
    def stamp(self, k):
        if self.stamps and (not getattr(self, "light", 0) or k in (0, 3, 9, 11)):
            self("s_memrealtime s[%d:%d]" % (64 + 2 * k, 65 + 2 * k))

def budget_exit(g, lab):
    g("s_cmp_eq_u32 s%d, 0" % S_BUD)
    g("s_cbranch_scc1 %s" % lab)
    g("s_sub_u32 s%d, s%d, 1" % (S_BUD, S_BUD))

def write_stamps(g):
    g("s_waitcnt lgkmcnt(0)")
    g("s_mul_i32 s41, s2, 5")
    g("s_add_u32 s41, s41, s%d" % S_WAVE)
    g("s_lshl_b32 s41, s41, 7")
    g("s_add_u32 s41, s41, %d" % STAMP)
    g("v_mov_b32 v100, s41")
    for q in range(8):
        for k in range(4): g("v_mov_b32 v%d, s%d" % (104 + k, 64 + 4 * q + k))
        g("s_mov_b64 exec, 1")
        g("global_store_dwordx4 v100, v[104:107], s[%d:%d] offset:%d" % (S_WS, S_WS + 1, 16 * q))
        g("s_mov_b64 exec, -1")
        g("s_nop 1")

def loader(g):
    W = g.W
    g.c("================= loader wave =================")
    g("s_setprio 3")
    g("v_lshlrev_b32 v16, 2, v0")
    g("v_add_u32 v16, %d, v16" % LAND)
    g("v_mov_b32 v5, 0xC0000000")
    g("ds_write_b32 v16, v5")
    g("v_mov_b32 v17, %d" % PROG)
    g("v_mov_b32 v6, 0"); g("v_mov_b32 v7, 0"); g("v_mov_b32 v8, 0"); g("v_mov_b32 v9, 0")
    g("ds_write_b128 v17, v[6:9]")
    g("v_lshrrev_b32 v2, 3, v0")
    g("v_and_b32 v3, 7, v0")
    g("v_lshrrev_b32 v4, 4, v0")
    g("v_lshlrev_b32 v4, 1, v4")
    g("v_xor_b32 v3, v3, v4")
    g("v_lshlrev_b32 v3, 4, v3")
    g("v_lshl_add_u32 v5, v2, 13, v3")
    g("s_lshr_b32 s41, s%d, 3" % S_I)
    g("s_mul_i32 s41, s41, %d" % (112 * 8192))
    g("s_lshl_b32 s42, s%d, 10" % S_KVH)
    g("s_add_u32 s41, s41, s42")
    g("s_and_b32 s42, s%d, 7" % S_I)
    g("s_lshl_b32 s42, s42, 7")
    g("s_add_u32 s41, s41, s42")
    g("s_mov_b32 m0, %d" % (AUX + WQ_T))
    g("s_mov_b32 s46, 14")
    g("s_waitcnt lgkmcnt(0)")
    g("s_add_u32 s44, s%d, s41" % S_WQ)
    g("s_addc_u32 s45, s%d, 0" % (S_WQ + 1))
    lp = g.lab("WQ")
    g(lp + ":")
    g("global_load_lds_dwordx4 v5, s[44:45] nt")
    g("s_add_u32 s44, s44, 65536")
    g("s_addc_u32 s45, s45, 0")
    g("s_add_u32 m0, m0, 1024")
    g("s_sub_u32 s46, s46, 1")
    g("s_cmp_lg_u32 s46, 0")
    g("s_cbranch_scc1 " + lp)
    g("s_barrier")
    g("v_mul_u32_u24 v6, 3584, v2")
    g("v_add_u32 v6, v6, v3")
    g("v_mul_u32_u24 v7, 896, v2")
    g("v_add_u32 v7, v7, v3")
    sk = g.lab("NOGU")
    g("s_cmp_eq_u32 s%d, 0" % S_G)
    g("s_cbranch_scc1 " + sk)
    g("s_and_b32 s41, s%d, 1" % S_KVH)
    g("s_cmp_eq_u32 s41, 0")
    g("s_cselect_b32 s44, s%d, s%d" % (S_WG, S_WU))
    g("s_cselect_b32 s45, s%d, s%d" % (S_WG + 1, S_WU + 1))
    g("s_lshr_b32 s41, s%d, 1" % S_KVH)
    g("s_mul_i32 s41, s41, %d" % (112 * 3584))
    g("s_lshl_b32 s42, s%d, 7" % S_I)
    g("s_add_u32 s41, s41, s42")
    g("s_add_u32 s44, s44, s41")
    g("s_addc_u32 s45, s45, 0")
    g("s_mov_b32 m0, %d" % (AUX + GU_T))
    g("s_mov_b32 s46, 14")
    lp = g.lab("GU")
    g(lp + ":")
    g("global_load_lds_dwordx4 v6, s[44:45] nt")
    g("s_add_u32 s44, s44, %d" % (8 * 3584))
    g("s_addc_u32 s45, s45, 0")
    g("s_add_u32 m0, m0, 1024")
    g("s_sub_u32 s46, s46, 1")
    g("s_cmp_lg_u32 s46, 0")
    g("s_cbranch_scc1 " + lp)
    g(sk + ":")
    g("v_lshrrev_b32 v8, 5, v0")
    g("v_and_b32 v9, 31, v0")
    g("v_lshlrev_b32 v10, 1, v8")
    g("v_xor_b32 v9, v9, v10")
    g("v_lshlrev_b32 v9, 4, v9")
    g("v_lshlrev_b32 v8, 9, v8")
    for u in range(4):
        g("v_xor_b32 v%d, %d, v9" % (12 + u, u * 64))
        g("v_add_u32 v%d, v%d, v8" % (12 + u, 12 + u))
    g("s_lshl_b32 s41, s%d, 3" % S_B)
    g("s_add_u32 s41, s41, s%d" % S_KVH)
    g("s_lshl_b32 s41, s41, 24")
    g("s_add_u32 s41, s41, %d" % (28672 * 512))
    g("s_lshl_b32 s42, s%d, 13" % S_J)
    g("s_add_u32 s41, s41, s42")
    g("s_add_u32 s44, s%d, s41" % S_K)
    g("s_addc_u32 s45, s%d, 0" % (S_K + 1))
    g("s_add_u32 s48, s%d, s41" % S_V)
    g("s_addc_u32 s49, s%d, 0" % (S_V + 1))
    g("s_add_u32 s47, s%d, 14" % S_G)
    g("s_mov_b32 m0, %d" % KV)
    def tile(sb):
        for u in range(8):
            if u == 4:
                g("s_add_u32 s%d, s%d, 4096" % (sb, sb)); g("s_addc_u32 s%d, s%d, 0" % (sb + 1, sb + 1)); g("s_add_u32 m0, m0, 4096"); g("s_nop 0")
            g("global_load_lds_dwordx4 v%d, s[%d:%d] offset:%d nt" % (12 + (u & 3), sb, sb + 1, (u & 3) * 1024))
        g("s_add_u32 s%d, s%d, %d" % (sb, sb, 131072 - 4096)); g("s_addc_u32 s%d, s%d, 0" % (sb + 1, sb + 1)); g("s_add_u32 m0, m0, 4096")
        g("s_add_u32 s47, s47, 8")
    def flag(n):
        g("s_waitcnt vmcnt(%d)" % n)
        g("s_sub_u32 s46, s47, %d" % n)
        g("v_mov_b32 v18, s46")
        g("ds_write_b32 v16, v18")
    tile(44)
    has = g.lab("HASGU"); j2 = g.lab("J")
    g("s_cmp_eq_u32 s%d, 0" % S_G)
    g("s_cbranch_scc0 " + has)
    flag(8)
    tile(44)
    g("s_branch " + j2)
    g(has + ":")
    flag(22)
    tile(44)
    flag(16)
    g(j2 + ":")
    def kloop(n):
        lp = g.lab("KL")
        g("s_mov_b32 s43, %d" % n)
        g(lp + ":")
        tile(44)
        flag(g.WK or W)
        g("s_sub_u32 s43, s43, 1")
        g("s_cmp_lg_u32 s43, 0")
        g("s_cbranch_scc1 " + lp)
    def wait_prog(sthr):
        lp = g.lab("WP"); ex = g.lab("WPX")
        g("s_cmp_ge_i32 s%d, %s" % (S_LAND, sthr))
        g("s_cbranch_scc1 " + ex)
        g(lp + ":")
        g("ds_read_b128 v[20:23], v17")
        g("s_waitcnt lgkmcnt(0)")
        g("v_min3_i32 v20, v20, v21, v22")
        g("v_min_i32 v20, v20, v23")
        g("v_readfirstlane_b32 s%d, v20" % S_LAND)
        g("s_cmp_ge_i32 s%d, %s" % (S_LAND, sthr))
        g("s_cbranch_scc1 " + ex)
        budget_exit(g, ex)
        g("s_branch " + lp)
        g(ex + ":")
    kloop(6)
    sk = g.lab("NOG2")
    g("s_cmp_eq_u32 s%d, 0" % S_G2)
    g("s_cbranch_scc1 " + sk)
    wait_prog("1")
    g("s_mov_b32 s42, m0")
    g("s_lshr_b32 s41, s%d, 1" % S_KVH)
    g("s_mul_i32 s41, s41, %d" % (112 * 3584))
    g("s_lshl_b32 s46, s%d, 7" % S_I)
    g("s_add_u32 s41, s41, s46")
    g("s_add_u32 s62, s%d, s41" % S_WU)
    g("s_addc_u32 s63, s%d, 0" % (S_WU + 1))
    g("s_mov_b32 m0, %d" % (AUX + WQ_T))
    g("s_mov_b32 s46, 14")
    lp = g.lab("G2")
    g(lp + ":")
    g("global_load_lds_dwordx4 v6, s[62:63] nt")
    g("s_add_u32 s62, s62, %d" % (8 * 3584))
    g("s_addc_u32 s63, s63, 0")
    g("s_add_u32 m0, m0, 1024")
    g("s_sub_u32 s46, s46, 1")
    g("s_cmp_lg_u32 s46, 0")
    g("s_cbranch_scc1 " + lp)
    g("s_mov_b32 m0, s42")
    g("s_add_u32 s47, s47, 14")
    flag(W)
    g(sk + ":")
    kloop(8)
    g.stamp(1)
    def rows896(n, ptr, lds):
        g("s_add_u32 s62, s%d, s41" % ptr)
        g("s_addc_u32 s63, s%d, 0" % (ptr + 1))
        g("s_mov_b32 m0, %d" % lds)
        g("s_mov_b32 s46, %d" % n)
        lp = g.lab("RW")
        g(lp + ":")
        g("global_load_lds_dwordx4 v7, s[62:63] nt")
        g("s_add_u32 s62, s62, 7168")
        g("s_addc_u32 s63, s63, 0")
        g("s_add_u32 m0, m0, 1024")
        g("s_sub_u32 s46, s46, 1")
        g("s_cmp_lg_u32 s46, 0")
        g("s_cbranch_scc1 " + lp)
        g("s_add_u32 s47, s47, %d" % n)
    def wd_tile():
        g("s_mul_i32 s41, s%d, %d" % (S_I, 64 * 896))
        g("s_lshl_b32 s42, s%d, 7" % S_KVH)
        g("s_add_u32 s41, s41, s42")
        rows896(8, S_WD, AUX + WD_T)
    if not g.defer_wd:
        sk = g.lab("NOWD")
        g("s_cmp_eq_u32 s%d, 0" % S_D)
        g("s_cbranch_scc1 " + sk)
        wait_prog("4")
        wd_tile()
        flag(W)
        g(sk + ":")
    g("s_mov_b32 m0, %d" % KV)
    lp = g.lab("VL")
    g("s_mov_b32 s43, 0")
    g(lp + ":")
    g("s_lshr_b32 s41, s43, 2")
    g("s_lshr_b32 s42, s43, 3")
    g("s_add_u32 s41, s41, s42")
    g("s_add_u32 s41, s41, 2")
    wait_prog("s41")
    tile(48)
    if g.ldpre >= 0:
        sk = g.lab("NPT")
        g("s_cmp_lg_u32 s43, %d" % g.ldpre)
        g("s_cbranch_scc1 " + sk)
        g("s_lshl_b32 s41, s%d, 1" % S_KVH); g("s_add_u32 s41, s41, s%d" % S_B); g("s_lshl_b32 s41, s41, 4"); g("s_add_u32 s41, s41, s%d" % S_J)
        g("s_lshl_b32 s41, s41, 11"); g("s_add_u32 s41, s41, %d" % OP)
        g("v_lshlrev_b32 v19, 4, v0"); g("v_add_u32 v19, s41, v19")
        g("global_load_dwordx4 v[24:27], v19, s[%d:%d]" % (S_WS, S_WS + 1))
        g("global_load_dwordx4 v[28:31], v19, s[%d:%d] offset:1024" % (S_WS, S_WS + 1))
        g(sk + ":")
    flag(W)
    g("s_add_u32 s43, s43, 1")
    g("s_cmp_lg_u32 s43, 16")
    g("s_cbranch_scc1 " + lp)
    g.stamp(2)
    sk = g.lab("NOWO"); dn = g.lab("LDONE"); nod = g.lab("NODW")
    last = 8 if g.lastbar else 0
    def wo_tile():
        g("s_lshl_b32 s41, s%d, 2" % S_KVH)
        g("s_add_u32 s41, s41, s%d" % S_RBL)
        g("s_mul_i32 s41, s41, %d" % (128 * 896))
        g("s_lshl_b32 s42, s%d, 7" % S_CB)
        g("s_add_u32 s41, s41, s42")
        rows896(16, S_WO, AUX + WO_T)
    def drain(extra):
        for n in range(W - 8 + extra, extra - 1 + last, -8): flag(n)
        if g.lastbar:
            g("s_waitcnt vmcnt(%d)" % extra)
            g("s_barrier")
    g("s_cmp_eq_u32 s%d, 0" % S_O)
    g("s_cbranch_scc1 " + sk)
    if g.defer_wd:
        g("s_cmp_eq_u32 s%d, 0" % S_D)
        g("s_cbranch_scc1 " + nod)
        wd_tile()
        wo_tile()
        drain(24)
        flag(16)
        flag(0)
        g("s_branch " + dn)
        g(nod + ":")
    wo_tile()
    drain(16)
    flag(0)
    g("s_branch " + dn)
    g(sk + ":")
    drain(0)
    g(dn + ":")
    g.stamp(3)
    g("s_waitcnt lgkmcnt(0)")
    if g.stamps: write_stamps(g)
    g("s_endpgm")

def wait_landed(g, sthr):
    lp = g.lab("WL"); ex = g.lab("WLX")
    g("s_cmp_ge_i32 s%d, %s" % (S_LAND, sthr))
    g("s_cbranch_scc1 " + ex)
    g(lp + ":")
    g("ds_read_b32 v%d, v%d" % (V_F, V_LR))
    g("s_waitcnt lgkmcnt(0)")
    g("v_readfirstlane_b32 s%d, v%d" % (S_LAND, V_F))
    g("s_cmp_ge_i32 s%d, %s" % (S_LAND, sthr))
    g("s_cbranch_scc1 " + ex)
    budget_exit(g, ex)
    if g.sleep_lds: g("s_sleep %d" % g.sleep_lds)
    g("s_branch " + lp)
    g(ex + ":")
def prog_set(g, val):
    g("v_mov_b32 v%d, %s" % (V_F, val))
    g("ds_write_b32 v%d, v%d" % (V_PW, V_F))
def wait_prog_c(g, val):
    lp = g.lab("WP"); ex = g.lab("WPX")
    t = V_W
    g(lp + ":")
    g("ds_read_b128 v[%d:%d], v%d" % (t, t + 3, V_PR))
    g("s_waitcnt lgkmcnt(0)")
    g("v_min3_i32 v%d, v%d, v%d, v%d" % (t, t, t + 1, t + 2))
    g("v_min_i32 v%d, v%d, v%d" % (t, t, t + 3))
    g("v_cmp_gt_i32 vcc, %s, v%d" % (val, t))
    g("s_cbranch_vccz " + ex)
    budget_exit(g, ex)
    g("s_branch " + lp)
    g(ex + ":")
def tag4(g, r):
    for k in range(4): g("v_bfi_b32 v%d, s%d, v%d, v%d" % (r + k, S_MASK, V_T + k, r + k))
def strip(g, r, n):
    for k in range(n): g("v_bfi_b32 v%d, s%d, v%d, v%d" % (r + k, S_MASK, V_MID, r + k))
def poll(g, emit_loads, regs, sleep, acc, masked_last=False, pre=False, count=False):
    lp = g.lab("PL"); ex = g.lab("PX"); ck = g.lab("PC")
    if count and g.stamps and not getattr(g, 'light', 0): g("s_mov_b32 s63, 0")
    if pre: g("s_branch " + ck)
    g(lp + ":")
    emit_loads()
    g(ck + ":")
    g("s_waitcnt vmcnt(0)")
    if count and g.stamps and not getattr(g, 'light', 0): g("s_add_u32 s63, s63, 1")
    first = True
    for idx, r in enumerate(regs):
        if masked_last and idx == len(regs) - 1: g("s_mov_b32 exec_hi, 0")
        for k in range(4):
            if first:
                g("v_xor_b32 v%d, v%d, v%d" % (acc, r + k, V_T + k)); first = False
            else:
                g("v_bitop3_b32 v%d, v%d, v%d, v%d bitop3:0xBE" % (acc, r + k, V_T + k, acc))
    if masked_last: g("s_mov_b64 exec, -1")
    g("v_and_b32 v%d, s%d, v%d" % (acc, S_MASK, acc))
    g("v_cmp_ne_u32 vcc, 0, v%d" % acc)
    g("s_cbranch_vccz " + ex)
    budget_exit(g, ex)
    if sleep: g("s_sleep %d" % sleep)
    g("s_branch " + lp)
    g(ex + ":")
    if count and g.stamps and not getattr(g, 'light', 0):
        g("s_waitcnt lgkmcnt(0)")
        g("s_mul_i32 s94, s63, 100"); g("s_add_u32 s94, s94, s64"); g("s_addc_u32 s95, s65, 0")
def poll_sel(g, loads, sleep, acc, count=False, first_allow=0):
    lp = g.lab("QL"); ex = g.lab("QX")
    if count and g.stamps and not getattr(g, 'light', 0): g("s_mov_b32 s63, 0")
    if first_allow:
        ck = g.lab("QC")
        g("s_cmp_eq_u32 s%d, 0" % S_D)
        g("s_cbranch_scc1 " + lp)
        g("s_waitcnt vmcnt(%d)" % first_allow)
        g("s_branch " + ck)
    g(lp + ":")
    g("s_waitcnt vmcnt(0)")
    if first_allow: g(ck + ":")
    if count and g.stamps and not getattr(g, 'light', 0): g("s_add_u32 s63, s63, 1")
    for u, (r, emit) in enumerate(loads):
        g("v_xor_b32 v%d, v%d, v%d" % (acc + u, r, V_T))
        for k in range(1, 4): g("v_bitop3_b32 v%d, v%d, v%d, v%d bitop3:0xBE" % (acc + u, r + k, V_T + k, acc + u))
    g("v_or3_b32 v%d, v%d, v%d, v%d" % (V_F, acc, acc + 1, acc + 2))
    g("v_or_b32 v%d, v%d, v%d" % (V_F, V_F, acc + 3))
    g("v_and_b32 v%d, s%d, v%d" % (V_F, S_MASK, V_F))
    g("v_cmp_ne_u32 vcc, 0, v%d" % V_F)
    g("s_cbranch_vccz " + ex)
    g("s_mov_b32 s46, 0")
    for u, (r, emit) in enumerate(loads):
        g("v_and_b32 v%d, s%d, v%d" % (acc + u, S_MASK, acc + u))
        g("v_cmp_ne_u32 vcc, 0, v%d" % (acc + u))
        g("s_cmp_lg_u64 vcc, 0")
        g("s_cselect_b32 s47, %d, 0" % (1 << u))
        g("s_or_b32 s46, s46, s47")
    budget_exit(g, ex)
    if sleep: g("s_sleep %d" % sleep)
    for u, (r, emit) in enumerate(loads):
        sk = g.lab("QS")
        g("s_bitcmp1_b32 s46, %d" % u)
        g("s_cbranch_scc0 " + sk)
        emit()
        g(sk + ":")
    g("s_branch " + lp)
    g(ex + ":")
    if count and g.stamps and not getattr(g, 'light', 0):
        g("s_waitcnt lgkmcnt(0)")
        g("s_mul_i32 s94, s63, 100"); g("s_add_u32 s94, s94, s64"); g("s_addc_u32 s95, s65, 0")
def T4(g, r):
    g("v_permlane16_swap_b32 v%d, v%d" % (r, r + 1))
    g("v_permlane16_swap_b32 v%d, v%d" % (r + 2, r + 3))
    g("v_add_f32 v%d, v%d, v%d" % (r, r, r + 1))
    g("v_add_f32 v%d, v%d, v%d" % (r + 2, r + 2, r + 3))
    g("v_permlane32_swap_b32 v%d, v%d" % (r, r + 2))
    g("v_add_f32 v%d, v%d, v%d" % (r, r, r + 2))
def rnd_bf16(g, dst, src):
    g("v_cvt_pk_bf16_f32 v%d, v%d, v%d" % (dst, src, src))
    g("v_and_b32 v%d, s%d, v%d" % (dst, S_HI, dst))
def allreduce16(g, op, regs):
    for sh in (8, 4, 2, 1):
        for r in regs: g("%s_dpp v%d, v%d, v%d row_ror:%d row_mask:0xf bank_mask:0xf" % (op, r, r, r, sh))
def xrow(g, op, regs, tmp):
    for w in (16, 32):
        for i, r in enumerate(regs): g("v_mov_b32 v%d, v%d" % (tmp + i, r))
        for i, r in enumerate(regs): g("v_permlane%d_swap_b32 v%d, v%d" % (w, r, tmp + i))
        for i, r in enumerate(regs): g("%s v%d, v%d, v%d" % (op, r, r, tmp + i))
def thin_tile16(g, nsteps, tr_off, vb, acc, tmp):
    for s in range(nsteps):
        g("ds_read_b64_tr_b16 v[%d:%d], v%d offset:%d" % (tmp + 4 * s, tmp + 4 * s + 1, V_TR, tr_off + s * 2048))
        g("ds_read_b64 v[%d:%d], v%d offset:%d" % (tmp + 4 * s + 2, tmp + 4 * s + 3, vb, s * 32))
    for s in range(nsteps):
        g("s_waitcnt lgkmcnt(%d)" % (2 * (nsteps - 1 - s)))
        g("v_mfma_f32_16x16x16_bf16 v[%d:%d], v[%d:%d], v[%d:%d], %s" % (acc, acc + 3, tmp + 4 * s, tmp + 4 * s + 1, tmp + 4 * s + 2, tmp + 4 * s + 3, "0" if s == 0 else "v[%d:%d]" % (acc, acc + 3)))
def store_n2(g, vaddr, r):
    g("s_mov_b64 exec, s[%d:%d]" % (S_EX, S_EX + 1))
    g("global_store_dwordx4 v%d, v[%d:%d], s[%d:%d] sc1" % (vaddr, r, r + 3, S_WS, S_WS + 1))
    g("s_mov_b64 exec, -1")
def gld(g, dst, vaddr, off=0, flags="sc1"):
    g("global_load_dwordx4 v[%d:%d], v%d, s[%d:%d]%s %s" % (dst, dst + 3, vaddr, S_WS, S_WS + 1, (" offset:%d" % off) if off else "", flags))
def part_addr(g, dst, base, s_cb, s_row):
    g("s_lshl_b32 s41, s%d, 14" % s_cb)
    g("s_lshr_b32 s42, s%d, 1" % S_CW); g("s_lshl_b32 s42, s42, 12"); g("s_add_u32 s41, s41, s42")
    g("s_lshl_b32 s42, s%d, 7" % s_row); g("s_add_u32 s41, s41, s42")
    g("s_and_b32 s42, s%d, 1" % S_CW); g("s_lshl_b32 s42, s42, 6"); g("s_add_u32 s41, s41, s42")
    g("s_add_u32 s41, s41, %d" % base)
    g("v_lshlrev_b32 v%d, 13, v%d" % (dst, V_N))
    g("v_lshl_add_u32 v%d, v%d, 4, v%d" % (dst, V_KG, dst))
    g("v_add_u32 v%d, s41, v%d" % (dst, dst))

def compute(g):
    g.c("================= compute waves =================")
    if getattr(g, "loaderonly", 0):
        g("s_waitcnt lgkmcnt(0)")
        g("s_barrier")
        g("v_mov_b32 v4, %d" % PROG); g("v_mov_b32 v8, 100"); g("v_mov_b32 v9, 100"); g("v_mov_b32 v10, 100"); g("v_mov_b32 v11, 100")
        g("ds_write_b128 v4, v[8:11]")
        g("s_waitcnt lgkmcnt(0)")
        if g.lastbar: g("s_barrier")
        if g.stamps: write_stamps(g)
        g("s_endpgm")
        return
    g("s_sub_u32 s%d, s%d, 1" % (S_CW, S_WAVE))
    g("v_min_u32 v3, 55, v0")
    g("v_lshlrev_b32 v3, 4, v3")
    g("v_and_b32 v%d, 15, v0" % V_N)
    g("v_lshrrev_b32 v%d, 4, v0" % V_KG)
    g("s_mov_b32 s%d, %d" % (S_MASK, TAGMASK))
    g("s_mov_b32 s%d, 0xffff0000" % S_HI)
    g("s_mov_b32 s%d, 0x00030003" % S_EX); g("s_mov_b32 s%d, 0x00030003" % (S_EX + 1))
    g("s_mov_b32 s%d, 0x3db8aa3b" % S_C)
    g("s_waitcnt lgkmcnt(0)")
    g("global_load_dwordx4 v[%d:%d], v3, s[%d:%d]" % (T, T + 3, S_X, S_X + 1))
    g("global_load_dwordx4 v[%d:%d], v3, s[%d:%d] offset:896" % (T + 4, T + 7, S_X, S_X + 1))
    g("s_load_dwordx2 s[%d:%d], s[%d:%d], 0" % (S_E, S_E + 1, S_WS, S_WS + 1))
    g("v_mov_b32 v%d, %d" % (V_MID, TAGMID))
    g("v_mov_b32 v%d, %d" % (V_PR, PROG))
    g("v_mov_b32 v%d, %d" % (V_LR, LAND))
    g("v_lshlrev_b32 v4, 2, v0")
    g("v_add_u32 v4, %d, v4" % JUNK)
    g("s_lshl_b32 s41, s%d, 2" % S_CW)
    g("s_add_u32 s41, s41, %d" % PROG)
    g("v_mov_b32 v5, s41")
    g("v_cmp_eq_u32 vcc, 0, v0")
    g("v_cndmask_b32 v%d, v4, v5, vcc" % V_PW)
    g("v_lshrrev_b32 v4, 2, v%d" % V_N)
    g("v_lshl_add_u32 v4, v%d, 2, v4" % V_KG)
    g("v_lshrrev_b32 v5, 1, v4")
    g("v_and_b32 v5, 3, v5")
    g("v_xor_b32 v5, s%d, v5" % S_CW)
    g("v_lshlrev_b32 v5, 5, v5")
    g("v_lshl_add_u32 v5, v4, 7, v5")
    g("v_and_b32 v6, 3, v%d" % V_N)
    g("v_lshl_add_u32 v5, v6, 3, v5")
    g("v_add_u32 v%d, %d, v5" % (V_TR, AUX))
    g("s_barrier")
    g.stamp(1)
    g.c("layernorm")
    F = T + 8
    g("v_cmp_gt_u32 vcc, 56, v0")
    g("s_waitcnt vmcnt(0)")
    for k in range(8): g("v_cndmask_b32 v%d, 0, v%d, vcc" % (T + k, T + k))
    for b in range(2):
        for k in range(4):
            g("v_lshlrev_b32 v%d, 16, v%d" % (F + 8 * b + 2 * k, T + 4 * b + k))
            g("v_and_b32 v%d, s%d, v%d" % (F + 8 * b + 2 * k + 1, S_HI, T + 4 * b + k))
    SUM = T + 24
    for b in range(2):
        f = F + 8 * b
        g("v_add_f32 v%d, v%d, v%d" % (SUM + b, f, f + 1))
        for k in range(2, 8): g("v_add_f32 v%d, v%d, v%d" % (SUM + b, SUM + b, f + k))
    allreduce16(g, "v_add_f32", [SUM, SUM + 1])
    xrow(g, "v_add_f32", [SUM, SUM + 1], SUM + 2)
    g("v_mov_b32 v4, 0x3b124925")
    for b in range(2): g("v_mul_f32 v%d, v%d, v4" % (SUM + b, SUM + b))
    VAR = T + 28
    for b in range(2):
        f = F + 8 * b
        for k in range(8):
            g("v_sub_f32 v5, v%d, v%d" % (f + k, SUM + b))
            if k == 0: g("v_mul_f32 v%d, v5, v5" % (VAR + b))
            else: g("v_fma_f32 v%d, v5, v5, v%d" % (VAR + b, VAR + b))
    for b in range(2): g("v_cndmask_b32 v%d, 0, v%d, vcc" % (VAR + b, VAR + b))
    allreduce16(g, "v_add_f32", [VAR, VAR + 1])
    xrow(g, "v_add_f32", [VAR, VAR + 1], VAR + 2)
    for b in range(2):
        g("v_mul_f32 v%d, v%d, v4" % (VAR + b, VAR + b))
        rnd_bf16(g, VAR + b, VAR + b)
        g("v_add_f32 v%d, 0x3727c5ac, v%d" % (VAR + b, VAR + b))
        rnd_bf16(g, VAR + b, VAR + b)
        g("v_sqrt_f32 v%d, v%d" % (VAR + b, VAR + b))
        rnd_bf16(g, VAR + b, VAR + b)
        g("v_rcp_f32 v%d, v%d" % (VAR + b, VAR + b))
        rnd_bf16(g, SUM + b, SUM + b)
    for b in range(2):
        f = F + 8 * b
        for k in range(0, 8, 2):
            g("v_sub_f32 v%d, v%d, v%d" % (f + k, f + k, SUM + b))
            g("v_sub_f32 v%d, v%d, v%d" % (f + k + 1, f + k + 1, SUM + b))
            g("v_cvt_pk_bf16_f32 v5, v%d, v%d" % (f + k, f + k + 1))
            g("v_lshlrev_b32 v%d, 16, v5" % (f + k))
            g("v_and_b32 v%d, s%d, v5" % (f + k + 1, S_HI))
            g("v_mul_f32 v%d, v%d, v%d" % (f + k, f + k, VAR + b))
            g("v_mul_f32 v%d, v%d, v%d" % (f + k + 1, f + k + 1, VAR + b))
            g("v_cvt_pk_bf16_f32 v%d, v%d, v%d" % (T + 4 * b + k // 2, f + k, f + k + 1))
    g("v_lshlrev_b32 v4, 4, v0")
    g("v_add_u32 v4, %d, v4" % XN)
    g("s_mov_b32 exec_hi, 0x00ffffff")
    g("ds_write_b128 v4, v[%d:%d]" % (T, T + 3))
    g("ds_write_b128 v4, v[%d:%d] offset:896" % (T + 4, T + 7))
    g("s_mov_b64 exec, -1")
    g("s_waitcnt lgkmcnt(0)")
    g("s_add_u32 s%d, s%d, 1" % (S_E, S_E))
    g("s_and_b32 s41, s%d, s%d" % (S_E, S_MASK)); g("v_mov_b32 v%d, s41" % V_T)
    g("s_lshr_b32 s41, s%d, 10" % S_E); g("s_and_b32 s41, s41, s%d" % S_MASK); g("v_mov_b32 v%d, s41" % (V_T + 1))
    g("s_lshr_b32 s41, s%d, 20" % S_E); g("s_and_b32 s41, s41, s%d" % S_MASK); g("v_mov_b32 v%d, s41" % (V_T + 2))
    g("s_lshr_b32 s41, s%d, 30" % S_E); g("s_lshl_b32 s42, s%d, 2" % (S_E + 1)); g("s_or_b32 s41, s41, s42"); g("s_and_b32 s41, s41, s%d" % S_MASK); g("v_mov_b32 v%d, s41" % (V_T + 3))
    g.stamp(2)
    g.cat = "qp"
    g.c("q partial")
    g("v_and_b32 v4, 1, v%d" % V_N)
    g("v_mul_u32_u24 v4, 896, v4")
    g("v_lshl_add_u32 v4, v%d, 3, v4" % V_KG)
    g("v_add_u32 v3, %d, v4" % XN)
    g("s_lshr_b32 s41, s%d, 3" % S_I)
    g("s_mul_i32 s41, s41, 224")
    g("v_add_u32 v4, s41, v3")
    g("v_lshlrev_b32 v5, 8, v%d" % V_N)
    g("v_lshl_add_u32 v5, v%d, 4, v5" % V_KG)
    g("s_lshl_b32 s41, s%d, 6" % S_CW)
    g("v_add_u32 v5, s41, v5")
    g("s_lshl_b32 s41, s%d, 14" % S_KVH)
    g("s_lshl_b32 s42, s%d, 9" % S_I)
    g("s_add_u32 s41, s41, s42")
    g("s_add_u32 s41, s41, %d" % QP)
    g("v_add_u32 v6, s41, v5")
    wait_landed(g, "14")
    thin_tile16(g, 7, WQ_T, 4, T + 32, T)
    tag4(g, T + 32)
    store_n2(g, 6, T + 32)
    g.stamp(3)
    prog_set(g, "1")
    g.cat = "xc"
    g("s_getreg_b32 s%d, hwreg(HW_REG_XCC_ID)" % S_XCC)
    g("s_and_b32 s%d, s%d, 15" % (S_XCC, S_XCC))
    sk = g.lab("NOXC")
    g("s_cmp_lg_u32 s%d, 0" % S_CW)
    g("s_cbranch_scc1 " + sk)
    g("s_lshl_b32 s41, s%d, 16" % S_XCC)
    for k in range(4): g("v_mov_b32 v%d, s41" % (V_X + k))
    tag4(g, V_X)
    g("s_lshl_b32 s41, s%d, 9" % S_KVH); g("s_lshl_b32 s42, s%d, 4" % S_I); g("s_add_u32 s41, s41, s42"); g("s_add_u32 s41, s41, %d" % XC)
    g("v_mov_b32 v7, s41")
    g("s_mov_b64 exec, 1")
    g("global_store_dwordx4 v7, v[%d:%d], s[%d:%d] sc1" % (V_X, V_X + 3, S_WS, S_WS + 1))
    g("s_mov_b64 exec, -1")
    g(sk + ":")
    g.cat = "gp"
    g.c("gate/up partial")
    sk = g.lab("NOGU")
    g("s_cmp_eq_u32 s%d, 0" % S_G)
    g("s_cbranch_scc1 " + sk)
    g("s_lshr_b32 s41, s%d, 1" % S_KVH)
    g("s_mul_i32 s41, s41, 224")
    g("v_add_u32 v4, s41, v3")
    g("s_lshl_b32 s41, s%d, 12" % S_I)
    g("s_lshl_b32 s42, s%d, 9" % S_KVH)
    g("s_add_u32 s41, s41, s42")
    g("s_add_u32 s41, s41, %d" % GP)
    g("v_add_u32 v6, s41, v5")
    wait_landed(g, "28")
    thin_tile16(g, 7, GU_T, 4, V_S, T)
    tag4(g, V_S)
    store_n2(g, 6, V_S)
    g(sk + ":")
    g("v_mov_b32 v%d, v4" % (V_S + 4))
    g("v_add_u32 v%d, 512, v6" % (V_S + 5))
    g.cat = "ldq"
    g.c("K tiles to registers")
    g("v_and_b32 v8, 7, v%d" % V_N)
    g("v_lshlrev_b32 v8, 1, v8")
    g("s_lshl_b32 s41, s%d, 13" % S_CW)
    g("v_lshlrev_b32 v9, 9, v%d" % V_N)
    g("v_add_u32 v9, s41, v9")
    for s3 in range(4):
        g("v_add_u32 v%d, %d, v%d" % (4 + s3, 4 * s3, V_KG))
        g("v_xor_b32 v%d, v%d, v8" % (4 + s3, 4 + s3))
        g("v_lshl_add_u32 v%d, v%d, 4, v9" % (4 + s3, 4 + s3))
    g("s_lshl_b32 s41, s%d, 14" % S_KVH)
    g("s_lshl_b32 s42, s%d, 10" % S_CW)
    g("s_add_u32 s41, s41, s42")
    g("s_lshl_b32 s42, s%d, 8" % S_B)
    g("s_add_u32 s41, s41, s42")
    g("s_add_u32 s41, s41, %d" % QP)
    g("v_lshlrev_b32 v10, 12, v%d" % V_KG)
    g("v_lshl_add_u32 v10, v%d, 4, v10" % V_N)
    g("v_add_u32 v10, s41, v10")
    g("s_min_u32 s41, s%d, 27" % S_I)
    g("s_lshl_b32 s41, s41, 12")
    g("s_and_b32 s42, s%d, 1" % S_CW)
    g("s_lshl_b32 s42, s42, 8")
    g("s_add_u32 s41, s41, s42"); g("s_add_u32 s41, s41, %d" % GP)
    g("v_lshlrev_b32 v11, 10, v%d" % V_KG)
    g("v_lshl_add_u32 v11, v%d, 4, v11" % V_N)
    g("v_add_u32 v11, s41, v11")
    g("s_lshl_b32 s41, s%d, 9" % S_KVH); g("s_add_u32 s41, s41, %d" % XC)
    g("v_and_b32 v22, 31, v0"); g("v_lshlrev_b32 v22, 4, v22"); g("v_add_u32 v22, s41, v22")
    def ldq():
        gld(g, T, 10); gld(g, T + 4, 10, 512); gld(g, V_X, 22)
    def ldg():
        gld(g, V_G, 11); gld(g, V_G + 4, 11, 512)
    for r in range(4):
        if r == g.q_issue_at: ldq()
        g("s_lshl_b32 s41, s%d, 3" % S_CW)
        g("s_add_u32 s41, s41, s%d" % S_BK)
        g("s_add_u32 s41, s41, %d" % (8 + 32 * r))
        if r >= 2: g("s_add_u32 s41, s41, s%d" % S_G2)
        wait_landed(g, "s41")
        for s in range(8):
            g("ds_read_b128 v[%d:%d], v%d offset:%d" % (V_K + 32 * r + 4 * s, V_K + 32 * r + 4 * s + 3, 4 + (s & 3), (s >> 2) * 256 + (r & 1) * 32768))
        if r == 1:
            for s3 in range(4): g("v_add_u32 v%d, 0x10000, v%d" % (4 + s3, 4 + s3))
        g("s_waitcnt lgkmcnt(0)")
        prog_set(g, str(2 + r + (1 if r >= 2 else 0)))
        if r == 1:
            sk = g.lab("NOG2")
            g("s_cmp_eq_u32 s%d, 0" % S_G2)
            g("s_cbranch_scc1 " + sk)
            g("s_add_u32 s41, s%d, s%d" % (S_BK, S_G2)); g("s_add_u32 s41, s41, 64")
            wait_landed(g, "s41")
            thin_tile16(g, 7, WQ_T, V_S + 4, V_S, V_Q)
            tag4(g, V_S)
            store_n2(g, V_S + 5, V_S)
            g(sk + ":")
            prog_set(g, "4")
    g.stamp(4)
    g.c("gather q")
    poll(g, ldq, [T, T + 4, V_X], g.sleep_mid, T + 8, pre=True)
    sk = g.lab("NOGL")
    g("s_cmp_eq_u32 s%d, 0" % S_D); g("s_cbranch_scc1 " + sk)
    g("s_cmp_ge_u32 s%d, 2" % S_CW); g("s_cbranch_scc1 " + sk)
    ldg()
    g(sk + ":")
    g("v_lshrrev_b32 v%d, 16, v%d" % (V_X, V_X))
    g("v_cmp_eq_u32 vcc, s%d, v%d" % (S_XCC, V_X))
    g("s_nop 0")
    g("s_cmp_eq_u64 vcc, exec")
    g("s_cselect_b32 s%d, %d, 0" % (S_FAST, 1 if g.fast else 0))
    strip(g, T, 8)
    T4(g, T); T4(g, T + 4)
    g("v_cvt_pk_bf16_f32 v%d, v%d, v%d" % (T, T, T + 4))
    g("s_lshr_b32 s41, s%d, 1" % S_CW); g("s_lshl_b32 s41, s41, 9")
    g("s_and_b32 s42, s%d, 1" % S_CW); g("s_lshl_b32 s42, s42, 8")
    g("s_add_u32 s41, s41, s42"); g("s_add_u32 s41, s41, %d" % QB)
    g("v_lshlrev_b32 v4, 3, v%d" % V_N)
    g("v_lshl_add_u32 v4, v%d, 1, v4" % V_KG)
    g("v_add_u32 v4, s41, v4")
    g("ds_write_b16 v4, v%d" % T)
    g("ds_write_b16_d16_hi v4, v%d offset:128" % T)
    prog_set(g, "7")
    wait_prog_c(g, "7")
    g("v_and_b32 v4, 1, v%d" % V_N)
    g("v_lshlrev_b32 v4, 9, v4")
    g("v_lshl_add_u32 v4, v%d, 4, v4" % V_KG)
    g("v_add_u32 v4, %d, v4" % QB)
    for s in range(8): g("ds_read_b128 v[%d:%d], v4 offset:%d" % (V_Q + 4 * s, V_Q + 4 * s + 3, s * 64))
    g.c("QK")
    for s in range(8):
        g("s_waitcnt lgkmcnt(%d)" % (7 - s))
        for r in range(4):
            g("v_mfma_f32_16x16x32_bf16 v[%d:%d], v[%d:%d], v[%d:%d], %s" % (V_S + 4 * r, V_S + 4 * r + 3, V_K + 32 * r + 4 * s, V_K + 32 * r + 4 * s + 3, V_Q + 4 * s, V_Q + 4 * s + 3, "0" if s == 0 else "v[%d:%d]" % (V_S + 4 * r, V_S + 4 * r + 3)))
    g.stamp(5)
    g.cat = "st"
    g.c("softmax")
    for k in range(0, 16, 2):
        g("v_cvt_pk_bf16_f32 v4, v%d, v%d" % (V_S + k, V_S + k + 1))
        g("v_lshlrev_b32 v%d, 16, v4" % (V_S + k))
        g("v_and_b32 v%d, s%d, v4" % (V_S + k + 1, S_HI))
    g("v_max3_f32 v4, v%d, v%d, v%d" % (V_S, V_S + 1, V_S + 2))
    for k in range(3, 15, 2): g("v_max3_f32 v4, v4, v%d, v%d" % (V_S + k, V_S + k + 1))
    g("v_max_f32 v4, v4, v%d" % (V_S + 15))
    xrow(g, "v_max_f32", [4], 5)
    g("v_and_b32 v6, 1, v%d" % V_N)
    g("v_lshlrev_b32 v6, 4, v6")
    g("v_add_u32 v6, %d, v6" % WM)
    g("s_lshl_b32 s41, s%d, 2" % S_CW)
    g("v_add_u32 v7, s41, v6")
    g("ds_write_b32 v7, v4")
    prog_set(g, "8")
    wait_prog_c(g, "8")
    g("ds_read_b128 v[%d:%d], v6" % (T, T + 3))
    g("s_waitcnt lgkmcnt(0)")
    g("v_max3_f32 v4, v%d, v%d, v%d" % (T, T + 1, T + 2))
    g("v_max_f32 v4, v4, v%d" % (T + 3))
    g("v_mul_f32 v5, s%d, v4" % S_C)
    for k in range(16):
        g("v_fma_f32 v%d, v%d, s%d, -v5" % (V_S + k, V_S + k, S_C))
    for k in range(16): g("v_exp_f32 v%d, v%d" % (V_S + k, V_S + k))
    g("v_add_f32 v8, v%d, v%d" % (V_S, V_S + 1))
    for k in range(2, 16): g("v_add_f32 v8, v8, v%d" % (V_S + k))
    xrow(g, "v_add_f32", [8], 9)
    g("ds_write_b32 v7, v8 offset:%d" % (WL - WM))
    g("v_and_b32 v9, 1, v%d" % V_N)
    g("v_lshlrev_b32 v9, 5, v9")
    g("v_lshl_add_u32 v9, v%d, 3, v9" % V_KG)
    g("v_add_u32 v3, %d, v9" % PB)
    g("s_lshl_b32 s41, s%d, 6" % S_CW)
    g("v_add_u32 v10, s41, v3")
    for r in range(4):
        g("v_cvt_pk_bf16_f32 v%d, v%d, v%d" % (T + 2 * r, V_S + 4 * r, V_S + 4 * r + 1))
        g("v_cvt_pk_bf16_f32 v%d, v%d, v%d" % (T + 2 * r + 1, V_S + 4 * r + 2, V_S + 4 * r + 3))
        g("ds_write_b64 v10, v[%d:%d] offset:%d" % (T + 2 * r, T + 2 * r + 1, r * 256))
    prog_set(g, "9")
    wait_prog_c(g, "9")
    sk = g.lab("NOST")
    g("s_cmp_lg_u32 s%d, 0" % S_CW)
    g("s_cbranch_scc1 " + sk)
    g("ds_read_b128 v[%d:%d], v6 offset:%d" % (T, T + 3, WL - WM))
    g("s_waitcnt lgkmcnt(0)")
    g("v_add_f32 v%d, v%d, v%d" % (T, T, T + 1))
    g("v_add_f32 v%d, v%d, v%d" % (T + 2, T + 2, T + 3))
    g("v_add_f32 v%d, v%d, v%d" % (T + 1, T, T + 2))
    g("v_mov_b32 v%d, v4" % T)
    g("v_mov_b32 v%d, v4" % (T + 2))
    g("v_mov_b32 v%d, v%d" % (T + 3, T + 1))
    tag4(g, T)
    g("s_lshl_b32 s41, s%d, 1" % S_KVH); g("s_add_u32 s41, s41, s%d" % S_B); g("s_lshl_b32 s41, s41, 4"); g("s_add_u32 s41, s41, s%d" % S_J)
    g("s_lshl_b32 s41, s41, 5"); g("s_add_u32 s41, s41, %d" % ST)
    g("v_lshlrev_b32 v5, 4, v0")
    g("v_add_u32 v5, s41, v5")
    g("s_mov_b64 exec, 3")
    g("global_store_dwordx4 v5, v[%d:%d], s[%d:%d] sc1" % (T, T + 3, S_WS, S_WS + 1))
    g("s_mov_b64 exec, -1")
    g(sk + ":")
    g.stamp(6)
    g.cat = "ffn"
    g.c("ffn down partial")
    sk = g.lab("NOFFN")
    g("s_cmp_eq_u32 s%d, 0" % S_D)
    g("s_cbranch_scc1 " + sk)
    sk2 = g.lab("NOH")
    g("s_cmp_ge_u32 s%d, 2" % S_CW)
    g("s_cbranch_scc1 " + sk2)
    poll(g, ldg, [V_G, V_G + 4], g.sleep_mid, T + 8, pre=True)
    strip(g, V_G, 8)
    T4(g, V_G); T4(g, V_G + 4)
    rnd_bf16(g, T, V_G); rnd_bf16(g, T + 4, V_G + 4)
    g("v_mul_f32 v5, v%d, v%d" % (T, T))
    g("v_mov_b32 v6, 0x3d372713")
    g("v_fma_f32 v5, v5, v6, 1.0")
    g("v_mul_f32 v5, v5, v%d" % T)
    g("v_mul_f32 v5, 0xc0135761, v5")
    g("v_exp_f32 v5, v5")
    g("v_add_f32 v5, 1.0, v5")
    g("v_rcp_f32 v5, v5")
    g("v_mul_f32 v5, v5, v%d" % T)
    rnd_bf16(g, 5, 5)
    g("v_mul_f32 v5, v5, v%d" % (T + 4))
    g("v_cvt_pk_bf16_f32 v5, v5, v5")
    g("s_lshl_b32 s41, s%d, 7" % S_CW); g("s_add_u32 s41, s41, %d" % HB)
    g("v_lshlrev_b32 v4, 3, v%d" % V_N)
    g("v_lshl_add_u32 v4, v%d, 1, v4" % V_KG)
    g("v_add_u32 v4, s41, v4")
    g("ds_write_b16 v4, v5")
    g(sk2 + ":")
    prog_set(g, "10")
    if not g.defer_wd:
        part_addr(g, 6, YP, S_KVH, S_I)
        g("v_and_b32 v4, 1, v%d" % V_N)
        g("v_lshlrev_b32 v4, 7, v4")
        g("v_lshl_add_u32 v4, v%d, 3, v4" % V_KG)
        g("v_add_u32 v4, %d, v4" % HB)
        wait_prog_c(g, "10")
        wait_landed(g, "s%d" % S_BV)
        thin_tile16(g, 4, WD_T, 4, T + 16, T)
        tag4(g, T + 16)
        store_n2(g, 6, T + 16)
    else:
        wait_prog_c(g, "10")
    g(sk + ":")
    g.stamp(7)
    g.c("tail addresses")
    g("s_lshl_b32 s41, s%d, 1" % S_KVH); g("s_add_u32 s41, s41, s%d" % S_B); g("s_lshl_b32 s41, s41, 4"); g("s_add_u32 s41, s41, s%d" % S_J)
    g("s_lshl_b32 s41, s41, 11")
    g("s_lshl_b32 s42, s%d, 8" % S_CW); g("s_add_u32 s41, s41, s42"); g("s_add_u32 s41, s41, %d" % OP)
    g("v_lshlrev_b32 v%d, 10, v%d" % (A_PUB, V_N))
    g("v_lshl_add_u32 v%d, v%d, 4, v%d" % (A_PUB, V_KG, A_PUB))
    g("v_add_u32 v%d, s41, v%d" % (A_PUB, A_PUB))
    g("v_bfe_u32 v23, v0, 4, 1"); g("v_lshlrev_b32 v23, 10, v23"); g("v_lshl_add_u32 v23, v%d, 4, v23" % V_N); g("v_add_u32 v23, s41, v23")
    g("s_lshl_b32 s41, s%d, 1" % S_KVH); g("s_lshr_b32 s42, s%d, 1" % S_CW); g("s_add_u32 s41, s41, s42"); g("s_lshl_b32 s41, s41, 15")
    g("s_and_b32 s42, s%d, 3" % S_RBL); g("s_lshl_b32 s42, s42, 9"); g("s_add_u32 s41, s41, s42")
    g("s_and_b32 s42, s%d, 1" % S_CW); g("s_lshl_b32 s42, s42, 8"); g("s_add_u32 s41, s41, s42")
    g("s_add_u32 s41, s41, %d" % OP)
    g("v_lshlrev_b32 v%d, 11, v%d" % (A_G0, V_KG))
    g("v_lshl_add_u32 v%d, v%d, 4, v%d" % (A_G0, V_N, A_G0))
    g("v_add_u32 v%d, s41, v%d" % (A_G0, A_G0))
    for u in range(1, 4): g("v_add_u32 v%d, %d, v%d" % (A_G0 + u, 8192 * u, A_G0))
    g("v_lshrrev_b32 v8, 3, v%d" % V_N); g("v_lshlrev_b32 v8, 5, v8")
    g("v_and_b32 v9, 3, v%d" % V_N); g("v_lshl_add_u32 v8, v9, 3, v8")
    g("v_bfe_u32 v9, v%d, 2, 1" % V_N); g("v_lshl_add_u32 v8, v9, 2, v8")
    g("v_add_u32 v8, v8, v%d" % V_KG); g("v_lshlrev_b32 v8, 1, v8")
    g("s_lshr_b32 s41, s%d, 1" % S_CW); g("s_lshl_b32 s41, s41, 8")
    g("s_and_b32 s42, s%d, 1" % S_CW); g("s_lshl_b32 s42, s42, 7"); g("s_add_u32 s41, s41, s42"); g("s_add_u32 s41, s41, %d" % OB)
    g("v_add_u32 v%d, s41, v8" % A_OBW)
    g("v_and_b32 v9, 1, v%d" % V_N); g("v_lshlrev_b32 v9, 8, v9"); g("v_lshl_add_u32 v9, v%d, 4, v9" % V_KG); g("v_add_u32 v%d, %d, v9" % (A_OBR, OB))
    g("s_lshl_b32 s45, s%d, 2" % S_KVH); g("s_add_u32 s45, s45, s%d" % S_RBL); g("s_and_b32 s45, s45, 31")
    g("s_min_u32 s46, s%d, 6" % S_CB)
    part_addr(g, A_SP, SP, 46, 45)
    g("s_lshl_b32 s41, s%d, 10" % S_KVH)
    g("s_lshr_b32 s42, s%d, 1" % S_RBL); g("s_and_b32 s42, s42, 1"); g("s_lshl_b32 s42, s42, 4"); g("s_add_u32 s41, s41, s42")
    g("s_add_u32 s41, s41, %d" % ST)
    g("v_and_b32 v%d, 31, v0" % A_STA)
    g("v_lshlrev_b32 v%d, 5, v%d" % (A_STA, A_STA))
    g("v_add_u32 v%d, s41, v%d" % (A_STA, A_STA))
    g("s_min_u32 s47, s%d, 27" % S_F)
    g("s_cmp_ge_u32 s47, 14"); g("s_cselect_b32 s42, 1, 0")
    g("s_mul_i32 s43, s42, 14"); g("s_sub_u32 s43, s47, s43")
    g("s_lshr_b32 s44, s43, 1")
    g("s_and_b32 s43, s43, 1")
    g("s_lshl_b32 s41, s44, 1"); g("s_add_u32 s41, s41, s42"); g("s_lshl_b32 s41, s41, 1"); g("s_add_u32 s41, s41, s43"); g("s_lshl_b32 s41, s41, 12")
    g("v_lshlrev_b32 v%d, 4, v0" % A_PART)
    g("v_add_u32 v%d, s41, v%d" % (A_PART, A_PART))
    g("s_mul_i32 s42, s42, 448"); g("s_lshl_b32 s44, s44, 6"); g("s_add_u32 s42, s42, s44"); g("s_lshl_b32 s43, s43, 5"); g("s_add_u32 s42, s42, s43")
    g("v_and_b32 v%d, 7, v0" % A_OUT)
    g("v_lshl_add_u32 v%d, v%d, 2, v%d" % (A_OUT, A_OUT, V_KG))
    g("v_add_u32 v%d, s42, v%d" % (A_OUT, A_OUT))
    g("v_lshlrev_b32 v%d, 1, v%d" % (A_OUT, A_OUT))
    if g.defer_wd:
        part_addr(g, A_YP, YP, S_KVH, S_I)
        g("v_and_b32 v%d, 1, v%d" % (A_HB, V_N))
        g("v_lshlrev_b32 v%d, 7, v%d" % (A_HB, A_HB))
        g("v_lshl_add_u32 v%d, v%d, 3, v%d" % (A_HB, V_KG, A_HB))
        g("v_add_u32 v%d, %d, v%d" % (A_HB, HB, A_HB))
    g.cat = "pre"
    g.c("PV")
    g("v_lshrrev_b32 v8, 2, v%d" % V_N)
    g("v_lshl_add_u32 v8, v%d, 2, v8" % V_KG)
    g("v_and_b32 v9, 7, v8")
    g("v_lshlrev_b32 v8, 9, v8")
    g("v_and_b32 v10, 3, v%d" % V_N)
    g("v_lshl_add_u32 v8, v10, 3, v8")
    g("s_lshl_b32 s41, s%d, 2" % S_CW)
    for mt in range(4):
        g("s_add_u32 s42, s41, %d" % mt)
        g("v_xor_b32 v%d, s42, v9" % (4 + mt))
        g("v_lshl_add_u32 v%d, v%d, 5, v8" % (4 + mt, 4 + mt))
    for k in range(16): g("v_mov_b32 v%d, 0" % (V_ACC + k))
    g("s_add_u32 s%d, s%d, 8" % (S_THR, S_BV))
    def pv_body():
        for mt in range(4): g("ds_read_b64_tr_b16 v[%d:%d], v%d" % (T + 2 + 2 * mt, T + 3 + 2 * mt, 4 + mt))
    def pv_mfma():
        for mt in range(4):
            g("s_waitcnt lgkmcnt(%d)" % (3 - mt))
            g("v_mfma_f32_16x16x16_bf16 v[%d:%d], v[%d:%d], v[%d:%d], v[%d:%d]" % (V_ACC + 4 * mt, V_ACC + 4 * mt + 3, T + 2 + 2 * mt, T + 3 + 2 * mt, T, T + 1, V_ACC + 4 * mt, V_ACC + 4 * mt + 3))
    def pv_loop(n):
        g("s_mov_b32 s%d, %d" % (S_CNT, n))
        lp = g.lab("PV")
        g(lp + ":")
        wait_landed(g, "s%d" % S_THR)
        g("ds_read_b64 v[%d:%d], v3" % (T, T + 1))
        pv_body()
        for mt in range(4): g("v_add_u32 v%d, 8192, v%d" % (4 + mt, 4 + mt))
        g("v_add_u32 v3, 64, v3")
        g("s_add_u32 s%d, s%d, 8" % (S_THR, S_THR))
        g("s_sub_u32 s%d, s%d, 1" % (S_CNT, S_CNT))
        pv_mfma()
        g("s_cmp_lg_u32 s%d, 0" % S_CNT)
        g("s_cbranch_scc1 " + lp)
    pv_loop(g.stat_at)
    fin = g.lab("PFIN"); jn = g.lab("PJN")
    g("s_cmp_eq_u32 s%d, 0" % S_O)
    g("s_cbranch_scc1 " + fin)
    gld(g, V_ST, A_STA)
    g(fin + ":")
    if g.ldpre < 0: gld(g, V_G, 23)
    g.stamp(8)
    if g.lastbar:
        pv_loop(15 - g.stat_at)
        g("ds_read_b64 v[%d:%d], v3" % (T, T + 1))
        g("s_waitcnt lgkmcnt(0)")
        g("s_barrier")
        pv_body()
        pv_mfma()
    else:
        pv_loop(16 - g.stat_at)
    g.stamp(9)
    g.cat = "op"
    g.c("publish o")
    for mt in range(4): tag4(g, V_ACC + 4 * mt)
    g("s_mov_b64 exec, s[%d:%d]" % (S_EX, S_EX + 1))
    slow = g.lab("OSLOW"); dn = g.lab("ODONE")
    g("s_cmp_eq_u32 s%d, 0" % S_FAST)
    g("s_cbranch_scc1 " + slow)
    for mt in range(4):
        g("global_store_dwordx4 v%d, v[%d:%d], s[%d:%d] offset:%d" % (A_PUB, V_ACC + 4 * mt, V_ACC + 4 * mt + 3, S_WS, S_WS + 1, mt * 64))
    g("s_branch " + dn)
    g(slow + ":")
    for mt in range(4):
        g("global_store_dwordx4 v%d, v[%d:%d], s[%d:%d] offset:%d sc1" % (A_PUB, V_ACC + 4 * mt, V_ACC + 4 * mt + 3, S_WS, S_WS + 1, mt * 64))
    g(dn + ":")
    g("s_mov_b64 exec, -1")
    g.stamp(10)
    fin = g.lab("FIN2"); end = g.lab("CEND")
    g("s_cmp_eq_u32 s%d, 0" % S_O)
    g("s_cbranch_scc1 " + fin)
    g.cat = "tail"
    g.c("stats")
    lp = g.lab("SL"); ex = g.lab("SX")
    g("s_waitcnt vmcnt(4)")
    g(lp + ":")
    g("v_xor_b32 v57, v%d, v%d" % (V_ST, V_T))
    for k in range(1, 4): g("v_bitop3_b32 v57, v%d, v%d, v57 bitop3:0xBE" % (V_ST + k, V_T + k))
    g("v_and_b32 v57, s%d, v57" % S_MASK)
    g("v_cmp_ne_u32 vcc, 0, v57")
    g("s_cbranch_vccz " + ex)
    budget_exit(g, ex)
    gld(g, V_ST, A_STA)
    g("s_waitcnt vmcnt(0)")
    g("s_branch " + lp)
    g(ex + ":")
    def ldo():
        for u in range(4): gld(g, T + 4 * u, A_G0 + u)
    ldo()
    Z = V_ST
    g("v_and_b32 v%d, s%d, v%d" % (Z, S_HI, Z))
    g("v_mov_b32 v57, v%d" % Z)
    allreduce16(g, "v_max_f32", [57])
    g("v_sub_f32 v57, v%d, v57" % Z)
    g("v_mul_f32 v57, s%d, v57" % S_C)
    g("v_exp_f32 v57, v57")
    g("v_mul_f32 v58, v57, v%d" % (Z + 1))
    allreduce16(g, "v_add_f32", [58])
    g("v_rcp_f32 v58, v58")
    g("v_mul_f32 v57, v57, v58")
    g("s_lshr_b32 s41, s%d, 1" % S_CW); g("s_lshl_b32 s41, s41, 6")
    g("v_lshlrev_b32 v58, 2, v%d" % V_KG)
    g("v_add_u32 v58, s41, v58")
    for u in range(4):
        g("v_add_u32 v59, %d, v58" % (16 * u))
        g("ds_bpermute_b32 v%d, v59, v57" % (V_C + u))
    if g.defer_wd:
        sk = g.lab("NOYP")
        g("s_cmp_eq_u32 s%d, 0" % S_D)
        g("s_cbranch_scc1 " + sk)
        g("s_add_u32 s41, s%d, 136" % S_BV)
        wait_landed(g, "s41")
        thin_tile16(g, 4, WD_T, A_HB, 192, 160)
        tag4(g, 192)
        store_n2(g, A_YP, 192)
        g(sk + ":")
    g("s_add_u32 s41, s%d, 144" % S_BV)
    if g.defer_wd: g("s_add_u32 s41, s41, s%d" % S_D)
    wait_landed(g, "s41")
    A = V_Q
    for s in range(4):
        g("ds_read_b64_tr_b16 v[%d:%d], v%d offset:%d" % (A + 8 * s, A + 8 * s + 1, V_TR, WO_T + s * 4096))
        g("ds_read_b64_tr_b16 v[%d:%d], v%d offset:%d" % (A + 8 * s + 2, A + 8 * s + 3, V_TR, WO_T + s * 4096 + 2048))
    g.c("gather o")
    if g.selpoll:
        poll_sel(g, [(T + 4 * u, (lambda u=u: gld(g, T + 4 * u, A_G0 + u))) for u in range(4)], g.sleep_tail, T + 16, count=True, first_allow=(1 if g.defer_wd else 0))
    else:
        poll(g, ldo, [T, T + 4, T + 8, T + 12], g.sleep_tail, T + 16, pre=True, count=True)
    g.stamp(12)
    if not g.nostrip: strip(g, T, 16)
    g("s_waitcnt lgkmcnt(0)")
    for k in range(4): g("v_mul_f32 v%d, v%d, v%d" % (T + k, T + k, V_C))
    for u in range(1, 4):
        for k in range(4): g("v_fma_f32 v%d, v%d, v%d, v%d" % (T + k, T + 4 * u + k, V_C + u, T + k))
    T4(g, T)
    g("v_cvt_pk_bf16_f32 v%d, v%d, v%d" % (T, T, T))
    g("ds_write_b16 v%d, v%d" % (A_OBW, T))
    g("s_waitcnt lgkmcnt(0)")
    g("s_barrier")
    g.stamp(13)
    for s in range(4):
        g("ds_read_b128 v[%d:%d], v%d offset:%d" % (A + 8 * s + 4, A + 8 * s + 7, A_OBR, s * 64))
    for s in range(4):
        g("s_waitcnt lgkmcnt(%d)" % (3 - s))
        g("v_mfma_f32_16x16x32_bf16 v[%d:%d], v[%d:%d], v[%d:%d], %s" % (T, T + 3, A + 8 * s, A + 8 * s + 3, A + 8 * s + 4, A + 8 * s + 7, "0" if s == 0 else "v[%d:%d]" % (T, T + 3)))
    tag4(g, T)
    store_n2(g, A_SP, T)
    if g.wbl2:
        sk = g.lab("NOWB")
        g("s_cmp_lg_u32 s%d, 0" % S_CW); g("s_cbranch_scc1 " + sk)
        if g.wbl2 == 1:
            g("s_cmp_lg_u32 s%d, 0" % S_I); g("s_cbranch_scc1 " + sk)
        g("buffer_wbl2 sc1")
        g(sk + ":")
    g.stamp(11)
    g("s_branch " + end)
    g(fin + ":")
    g("s_cmp_lg_u32 s%d, 0" % S_CW); g("s_cbranch_scc1 " + end)
    g("s_cmp_ge_u32 s%d, 28" % S_F); g("s_cbranch_scc1 " + end)
    g("global_load_ushort v11, v%d, s[%d:%d]" % (A_OUT, S_X, S_X + 1))
    g("v_add_u32 v4, %d, v%d" % (YP, A_PART))
    for k in range(4): g("v_mov_b32 v%d, 0" % (T + 12 + k))
    def ld4(last_mask):
        def f():
            for u in range(3): gld(g, T + 4 * u, 4, 1024 * u)
            if last_mask: g("s_mov_b32 exec_hi, 0")
            gld(g, T + 12, 4, 3072)
            if last_mask: g("s_mov_b64 exec, -1")
        return f
    def red32(dst):
        if not g.nostrip: strip(g, T, 16)
        for k in range(4):
            g("v_add_f32 v%d, v%d, v%d" % (T + k, T + k, T + 4 + k))
            g("v_add_f32 v%d, v%d, v%d" % (T + 8 + k, T + 8 + k, T + 12 + k))
        for k in range(4): g("v_add_f32 v%d, v%d, v%d" % (T + k, T + k, T + 8 + k))
        for k in range(4): g("v_add_f32_dpp v%d, v%d, v%d row_ror:8 row_mask:0xf bank_mask:0xf" % (T + k, T + k, T + k))
        T4(g, T)
        rnd_bf16(g, dst, T)
    poll(g, ld4(True), [T, T + 4, T + 8, T + 12], (g.sleep_y if g.defer_wd else g.sleep_mid), T + 16, masked_last=True)
    red32(10)
    g("v_mul_f32 v5, 0xbfb8aa3b, v10")
    g("v_exp_f32 v5, v5")
    g("v_add_f32 v5, 1.0, v5")
    g("v_rcp_f32 v5, v5")
    g("v_mul_f32 v10, v10, v5")
    rnd_bf16(g, 10, 10)
    g("v_lshlrev_b32 v11, 16, v11")
    g("v_add_u32 v4, %d, v%d" % (SP, A_PART))
    g("s_mov_b32 s42, 0x00ff00ff"); g("s_mov_b32 s43, 0x00ff00ff")
    if g.selfin:
        ld4(False)()
        poll_sel(g, [(T + 4 * u, (lambda u=u: gld(g, T + 4 * u, 4, 1024 * u))) for u in range(4)], g.sleep_fin, T + 16, count=True)
    else:
        poll(g, ld4(False), [T, T + 4, T + 8, T + 12], g.sleep_fin, T + 16, count=True)
    g.stamp(12)
    red32(5)
    g("v_mul_f32 v5, v5, v10")
    rnd_bf16(g, 5, 5)
    g("v_add_f32 v5, v5, v11")
    g("v_cvt_pk_bf16_f32 v5, v5, v5")
    g("s_mov_b64 exec, s[42:43]")
    g("global_store_short v%d, v5, s[%d:%d]" % (A_OUT, S_OUT, S_OUT + 1))
    g("s_mov_b64 exec, -1")
    g.stamp(11)
    g("s_cmp_lg_u32 s%d, 0" % S_F); g("s_cbranch_scc1 " + end)
    g("v_mov_b32 v4, 0"); g("v_mov_b32 v5, s%d" % S_E)
    g("s_mov_b64 exec, 1")
    g("global_store_dword v4, v5, s[%d:%d] sc1" % (S_WS, S_WS + 1))
    g("s_mov_b64 exec, -1")
    g(end + ":")
    if g.dbgclk:
        sk = g.lab("NODBG")
        g("s_cmp_lg_u32 s%d, 0" % S_CW); g("s_cbranch_scc1 " + sk)
        g("s_cmp_ge_u32 s%d, 8" % S_F); g("s_cbranch_scc1 " + sk)
        g("s_memtime s[64:65]"); g("s_memrealtime s[66:67]")
        g("s_load_dwordx2 s[100:101], s[0:1], 80")
        g("s_waitcnt lgkmcnt(0)")
        g("s_sub_u32 s64, s64, s96"); g("s_sub_u32 s66, s66, s98")
        g("s_lshl_b32 s41, s%d, 3" % S_F)
        g("v_mov_b32 v4, s41"); g("v_mov_b32 v6, s64"); g("v_mov_b32 v7, s66")
        g("s_mov_b64 exec, 1")
        g("global_store_dwordx2 v4, v[6:7], s[100:101]")
        g("s_mov_b64 exec, -1")
        g(sk + ":")
    if g.stamps: write_stamps(g)
    g("s_endpgm")

def diag_filter(g, lines):
    drop = getattr(g, "drop", None)
    if drop:
        out = []
        for l in lines:
            t = l.strip()
            if "cat=" in t and t.split("cat=")[1].strip() in drop: continue
            if t.startswith("v_cmp_ne_u32 vcc, 0,"):
                out.append("  s_mov_b64 vcc, 0"); continue
            out.append(l)
        return out
    if not getattr(g, "nomem", 0): return lines
    out = []; incomp = False
    for l in lines:
        if l.startswith("L_compute:"): incomp = True
        t = l.strip()
        if incomp and (t.startswith("global_load_dwordx4") and "sc1" in t):
            if g.nomem & 1: continue
        if incomp and t.startswith("global_store") and ("s[24:25]" in t) and "v100" not in t and "v[104:107]" not in t:
            if g.nomem & 2: continue
        if incomp and (g.nomem & 1) and t.startswith("v_cmp_ne_u32 vcc, 0,"):
            out.append("  s_mov_b64 vcc, 0"); continue
        out.append(l)
    return out

def build(**kw):
    g = G(**kw)
    g("s_cmp_ge_u32 s2, 256")
    g("s_cbranch_scc1 L_exit")
    g.stamp(0)
    if g.dbgclk:
        g("s_memtime s[96:97]"); g("s_memrealtime s[98:99]")
    g("s_load_dwordx8 s[4:11], s[0:1], 0")
    g("s_load_dwordx2 s[12:13], s[0:1], 32")
    g("s_load_dwordx4 s[16:19], s[0:1], 48")
    g("s_load_dwordx4 s[20:23], s[0:1], 64")
    g("s_load_dwordx2 s[24:25], s[0:1], 88")
    g("v_lshrrev_b32 v1, 6, v0")
    g("v_and_b32 v0, 63, v0")
    g("s_and_b32 s%d, s2, 7" % S_KVH)
    g("v_readfirstlane_b32 s%d, v1" % S_WAVE)
    g("s_lshr_b32 s%d, s2, 3" % S_I)
    g("s_lshr_b32 s%d, s%d, 4" % (S_B, S_I))
    g("s_and_b32 s%d, s%d, 15" % (S_J, S_I))
    g("s_cmp_lt_u32 s%d, 28" % S_I)
    g("s_cselect_b32 s%d, 14, 0" % S_G)
    g("s_cselect_b32 s%d, 16, 0" % S_O)
    g("s_cselect_b32 s%d, 8, 0" % S_D)
    g("s_cmp_lt_u32 s%d, 7" % S_KVH)
    g("s_cselect_b32 s%d, s%d, 0" % (S_D, S_D))
    if g.evenodd:
        g("s_bitcmp1_b32 s2, 0")
        g("s_cselect_b32 s%d, 0, s%d" % (S_G, S_G))
        g("s_mov_b32 s%d, s%d" % (S_G2, S_G))
    else:
        g("s_mov_b32 s%d, 0" % S_G2)
    g("s_add_u32 s%d, s%d, 14" % (S_BK, S_G))
    if g.defer_wd: g("s_mov_b32 s%d, s%d" % (S_BV, S_BK))
    else: g("s_add_u32 s%d, s%d, s%d" % (S_BV, S_BK, S_D))
    g("s_add_u32 s%d, s%d, s%d" % (S_BV, S_BV, S_G2))
    g("s_add_u32 s%d, s%d, 128" % (S_BV, S_BV))
    g("s_mul_i32 s%d, s%d, 37" % (S_RBL, S_I))
    g("s_lshr_b32 s%d, s%d, 8" % (S_RBL, S_RBL))
    g("s_mul_i32 s41, s%d, 7" % S_RBL)
    g("s_sub_u32 s%d, s%d, s41" % (S_CB, S_I))
    g("s_lshl_b32 s%d, s%d, 2" % (S_F, S_KVH))
    g("s_add_u32 s%d, s%d, s%d" % (S_F, S_F, S_I))
    g("s_sub_u32 s%d, s%d, 28" % (S_F, S_F))
    g("s_mov_b32 s%d, %d" % (S_BUD, 1 << 18))
    g("s_mov_b32 s%d, 0xC0000000" % S_LAND)
    if g.stamps:
        for k in range(1, 16): g("s_mov_b64 s[%d:%d], 0" % (64 + 2 * k, 65 + 2 * k))
    g("s_cmp_eq_u32 s%d, 0" % S_WAVE)
    g("s_cbranch_scc0 L_compute")
    loader(g)
    g("L_compute:")
    compute(g)
    g("L_exit:")
    g("s_endpgm")
    lines = hz.fix(diag_filter(g, g.l))
    name = KN + "_kernel"
    s = HDR + "; @launch grid=(256,1,1) block=(320,1,1) lds=%d\n" % LDS_BYTES
    s += '.amdgcn_target "amdgcn-amd-amdhsa--gfx950"\n.text\n.globl %s\n.p2align 8\n.type %s,@function\n%s:\n' % (name, name, name)
    s += "\n".join(lines) + "\n"
    s += '.section .rodata,"a"\n.p2align 6\n.amdhsa_kernel %s\n' % name
    s += "  .amdhsa_next_free_vgpr 256\n  .amdhsa_next_free_sgpr 102\n  .amdhsa_accum_offset 256\n"
    s += "  .amdhsa_group_segment_fixed_size 0\n  .amdhsa_kernarg_size 96\n  .amdhsa_user_sgpr_count 2\n"
    s += "  .amdhsa_user_sgpr_kernarg_segment_ptr 1\n  .amdhsa_system_sgpr_workgroup_id_x 1\n"
    s += "  .amdhsa_float_denorm_mode_32 3\n"
    s += ".end_amdhsa_kernel\n"
    return s

if __name__ == "__main__":
    ap = argparse.ArgumentParser()
    ap.add_argument("-o", default="k.s")
    ap.add_argument("--stamps", action="store_true")
    ap.add_argument("--set", action="append", default=[])
    a = ap.parse_args()
    kw = {x.split("=")[0]: (int(x.split("=")[1]) if x.split("=")[1].lstrip("-").isdigit() else x.split("=")[1].split(",")) for x in a.set}
    open(a.o, "w").write(build(stamps=a.stamps, **kw))
```

```python
import sys, argparse
from asmlib import HDR, KN
import hz

KV = 0
AUX = 131072
WQ_T = 0; GU_T = 14336; WD_T = 0; WO_T = 8192
MISC = 159744
XN = MISC; PB = MISC
QB = MISC + 1792; OB = QB
HB = MISC + 2816
WM = MISC + 3072; WL = MISC + 3104
PROG = MISC + 3136
LAND = MISC + 3200
JUNK = MISC + 3456
LDS_BYTES = 163840
QP = 0x1000; GP = 0x21000; ST = 0x3D000; XC = 0x3F000; YP = 0x40000; SP = 0x60000; OP = 0x80000
STAMP = 512 << 20
TAGMASK = 0x3FF; TAGMID = 0x200

S_X, S_K, S_V, S_WQ, S_WO, S_WG, S_WU, S_WD, S_OUT, S_WS = 4, 6, 8, 10, 12, 16, 18, 20, 22, 24
S_KVH, S_I, S_B, S_J, S_WAVE, S_CW = 26, 27, 28, 29, 30, 31
S_E = 32
S_G, S_D, S_O = 34, 35, 36
S_BK, S_BV = 37, 38
S_MASK = 39; S_BUD = 40
S_RBL, S_CB, S_F, S_XCC = 50, 51, 52, 53
S_EX = 54
S_C = 56; S_HI = 57; S_FAST = 59; S_LAND = 60
S_THR, S_CNT = 61, 62
S_G2 = 58
V_N, V_KG = 1, 2
V_T = 12
V_MID, V_PW, V_PR, V_LR, V_TR, V_F = 16, 17, 18, 19, 20, 21
T = 24
V_ST = 40
V_G = 44
V_C = 52
V_X = 56
V_W = 60
V_Q = 64
V_S = 96
V_ACC = 112
V_K = 128
A_PUB, A_G0, A_OBW, A_OBR, A_SP, A_STA, A_OUT, A_PART, A_YP, A_HB = 128, 129, 133, 134, 135, 136, 137, 138, 139, 140

class G:
    def __init__(self, **kw):
        self.l = []; self.n = 0
        self.W = 16; self.stamps = False; self.sleep_mid = 8; self.sleep_tail = 2; self.sleep_fin = 0
        self.fast = 1; self.stat_at = 12; self.q_issue_at = 2; self.dbgspan = 0; self.lastbar = 1; self.Wmid = 0; self.dbgclk = 0; self.WK = 40; self.selfin = 1; self.evenodd = 0; self.defer_wd = 0; self.sleep_y = 2; self.wbl2 = 0; self.ldpre = -1; self.selpoll = 1; self.sleep_lds = 0; self.nostrip = 1
        for k, v in kw.items(): setattr(self, k, v)
    def __call__(self, s):
        for x in s.split("\n"):
            x = x.strip()
            if x.startswith("global_") and getattr(self, "cat", None): x += " ; cat=" + self.cat
            self.l.append(x if x.endswith(":") else "  " + x)
    def lab(self, b="L"):
        self.n += 1; return "%s_%d" % (b, self.n)
    def c(self, s): self.l.append("  ; " + s)
    def stamp(self, k):
        if self.stamps and (not getattr(self, "light", 0) or k in (0, 3, 9, 11)):
            self("s_memrealtime s[%d:%d]" % (64 + 2 * k, 65 + 2 * k))

def budget_exit(g, lab):
    g("s_cmp_eq_u32 s%d, 0" % S_BUD)
    g("s_cbranch_scc1 %s" % lab)
    g("s_sub_u32 s%d, s%d, 1" % (S_BUD, S_BUD))

def write_stamps(g):
    g("s_waitcnt lgkmcnt(0)")
    g("s_mul_i32 s41, s2, 5")
    g("s_add_u32 s41, s41, s%d" % S_WAVE)
    g("s_lshl_b32 s41, s41, 7")
    g("s_add_u32 s41, s41, %d" % STAMP)
    g("v_mov_b32 v100, s41")
    for q in range(8):
        for k in range(4): g("v_mov_b32 v%d, s%d" % (104 + k, 64 + 4 * q + k))
        g("s_mov_b64 exec, 1")
        g("global_store_dwordx4 v100, v[104:107], s[%d:%d] offset:%d" % (S_WS, S_WS + 1, 16 * q))
        g("s_mov_b64 exec, -1")
        g("s_nop 1")

def loader(g):
    W = g.W
    g.c("================= loader wave =================")
    g("s_setprio 3")
    g("v_lshlrev_b32 v16, 2, v0")
    g("v_add_u32 v16, %d, v16" % LAND)
    g("v_mov_b32 v5, 0xC0000000")
    g("ds_write_b32 v16, v5")
    g("v_mov_b32 v17, %d" % PROG)
    g("v_mov_b32 v6, 0"); g("v_mov_b32 v7, 0"); g("v_mov_b32 v8, 0"); g("v_mov_b32 v9, 0")
    g("ds_write_b128 v17, v[6:9]")
    g("v_lshrrev_b32 v2, 3, v0")
    g("v_and_b32 v3, 7, v0")
    g("v_lshrrev_b32 v4, 4, v0")
    g("v_lshlrev_b32 v4, 1, v4")
    g("v_xor_b32 v3, v3, v4")
    g("v_lshlrev_b32 v3, 4, v3")
    g("v_lshl_add_u32 v5, v2, 13, v3")
    g("s_lshr_b32 s41, s%d, 3" % S_I)
    g("s_mul_i32 s41, s41, %d" % (112 * 8192))
    g("s_lshl_b32 s42, s%d, 10" % S_KVH)
    g("s_add_u32 s41, s41, s42")
    g("s_and_b32 s42, s%d, 7" % S_I)
    g("s_lshl_b32 s42, s42, 7")
    g("s_add_u32 s41, s41, s42")
    g("s_mov_b32 m0, %d" % (AUX + WQ_T))
    g("s_mov_b32 s46, 14")
    g("s_waitcnt lgkmcnt(0)")
    g("s_add_u32 s44, s%d, s41" % S_WQ)
    g("s_addc_u32 s45, s%d, 0" % (S_WQ + 1))
    lp = g.lab("WQ")
    g(lp + ":")
    g("global_load_lds_dwordx4 v5, s[44:45] nt")
    g("s_add_u32 s44, s44, 65536")
    g("s_addc_u32 s45, s45, 0")
    g("s_add_u32 m0, m0, 1024")
    g("s_sub_u32 s46, s46, 1")
    g("s_cmp_lg_u32 s46, 0")
    g("s_cbranch_scc1 " + lp)
    g("s_barrier")
    g("v_mul_u32_u24 v6, 3584, v2")
    g("v_add_u32 v6, v6, v3")
    g("v_mul_u32_u24 v7, 896, v2")
    g("v_add_u32 v7, v7, v3")
    sk = g.lab("NOGU")
    g("s_cmp_eq_u32 s%d, 0" % S_G)
    g("s_cbranch_scc1 " + sk)
    g("s_and_b32 s41, s%d, 1" % S_KVH)
    g("s_cmp_eq_u32 s41, 0")
    g("s_cselect_b32 s44, s%d, s%d" % (S_WG, S_WU))
    g("s_cselect_b32 s45, s%d, s%d" % (S_WG + 1, S_WU + 1))
    g("s_lshr_b32 s41, s%d, 1" % S_KVH)
    g("s_mul_i32 s41, s41, %d" % (112 * 3584))
    g("s_lshl_b32 s42, s%d, 7" % S_I)
    g("s_add_u32 s41, s41, s42")
    g("s_add_u32 s44, s44, s41")
    g("s_addc_u32 s45, s45, 0")
    g("s_mov_b32 m0, %d" % (AUX + GU_T))
    g("s_mov_b32 s46, 14")
    lp = g.lab("GU")
    g(lp + ":")
    g("global_load_lds_dwordx4 v6, s[44:45] nt")
    g("s_add_u32 s44, s44, %d" % (8 * 3584))
    g("s_addc_u32 s45, s45, 0")
    g("s_add_u32 m0, m0, 1024")
    g("s_sub_u32 s46, s46, 1")
    g("s_cmp_lg_u32 s46, 0")
    g("s_cbranch_scc1 " + lp)
    g(sk + ":")
    g("v_lshrrev_b32 v8, 5, v0")
    g("v_and_b32 v9, 31, v0")
    g("v_lshlrev_b32 v10, 1, v8")
    g("v_xor_b32 v9, v9, v10")
    g("v_lshlrev_b32 v9, 4, v9")
    g("v_lshlrev_b32 v8, 9, v8")
    for u in range(4):
        g("v_xor_b32 v%d, %d, v9" % (12 + u, u * 64))
        g("v_add_u32 v%d, v%d, v8" % (12 + u, 12 + u))
    g("s_lshl_b32 s41, s%d, 3" % S_B)
    g("s_add_u32 s41, s41, s%d" % S_KVH)
    g("s_lshl_b32 s41, s41, 24")
    g("s_add_u32 s41, s41, %d" % (28672 * 512))
    g("s_lshl_b32 s42, s%d, 13" % S_J)
    g("s_add_u32 s41, s41, s42")
    g("s_add_u32 s44, s%d, s41" % S_K)
    g("s_addc_u32 s45, s%d, 0" % (S_K + 1))
    g("s_add_u32 s48, s%d, s41" % S_V)
    g("s_addc_u32 s49, s%d, 0" % (S_V + 1))
    g("s_add_u32 s47, s%d, 14" % S_G)
    g("s_mov_b32 m0, %d" % KV)
    def tile(sb, mid=None):
        for u in range(8):
            if u == 4:
                g("s_add_u32 s%d, s%d, 4096" % (sb, sb)); g("s_addc_u32 s%d, s%d, 0" % (sb + 1, sb + 1)); g("s_add_u32 m0, m0, 4096"); g("s_nop 0")
                if mid is not None: g("s_waitcnt vmcnt(%d)" % mid)
            g("global_load_lds_dwordx4 v%d, s[%d:%d] offset:%d nt" % (12 + (u & 3), sb, sb + 1, (u & 3) * 1024))
        g("s_add_u32 s%d, s%d, %d" % (sb, sb, 131072 - 4096)); g("s_addc_u32 s%d, s%d, 0" % (sb + 1, sb + 1)); g("s_add_u32 m0, m0, 4096")
        g("s_add_u32 s47, s47, 8")
    def flag(n):
        g("s_waitcnt vmcnt(%d)" % n)
        g("s_sub_u32 s46, s47, %d" % n)
        g("v_mov_b32 v18, s46")
        g("ds_write_b32 v16, v18")
    tile(44)
    has = g.lab("HASGU"); j2 = g.lab("J")
    g("s_cmp_eq_u32 s%d, 0" % S_G)
    g("s_cbranch_scc0 " + has)
    flag(8)
    tile(44)
    g("s_branch " + j2)
    g(has + ":")
    flag(22)
    tile(44)
    flag(16)
    g(j2 + ":")
    def kloop(n):
        lp = g.lab("KL")
        g("s_mov_b32 s43, %d" % n)
        g(lp + ":")
        tile(44)
        flag(g.WK or W)
        g("s_sub_u32 s43, s43, 1")
        g("s_cmp_lg_u32 s43, 0")
        g("s_cbranch_scc1 " + lp)
    def wait_prog(sthr):
        lp = g.lab("WP"); ex = g.lab("WPX")
        g("s_cmp_ge_i32 s%d, %s" % (S_LAND, sthr))
        g("s_cbranch_scc1 " + ex)
        g(lp + ":")
        g("ds_read_b128 v[20:23], v17")
        g("s_waitcnt lgkmcnt(0)")
        g("v_min3_i32 v20, v20, v21, v22")
        g("v_min_i32 v20, v20, v23")
        g("v_readfirstlane_b32 s%d, v20" % S_LAND)
        g("s_cmp_ge_i32 s%d, %s" % (S_LAND, sthr))
        g("s_cbranch_scc1 " + ex)
        budget_exit(g, ex)
        g("s_branch " + lp)
        g(ex + ":")
    kloop(6)
    sk = g.lab("NOG2")
    g("s_cmp_eq_u32 s%d, 0" % S_G2)
    g("s_cbranch_scc1 " + sk)
    wait_prog("1")
    g("s_mov_b32 s42, m0")
    g("s_lshr_b32 s41, s%d, 1" % S_KVH)
    g("s_mul_i32 s41, s41, %d" % (112 * 3584))
    g("s_lshl_b32 s46, s%d, 7" % S_I)
    g("s_add_u32 s41, s41, s46")
    g("s_add_u32 s62, s%d, s41" % S_WU)
    g("s_addc_u32 s63, s%d, 0" % (S_WU + 1))
    g("s_mov_b32 m0, %d" % (AUX + WQ_T))
    g("s_mov_b32 s46, 14")
    lp = g.lab("G2")
    g(lp + ":")
    g("global_load_lds_dwordx4 v6, s[62:63] nt")
    g("s_add_u32 s62, s62, %d" % (8 * 3584))
    g("s_addc_u32 s63, s63, 0")
    g("s_add_u32 m0, m0, 1024")
    g("s_sub_u32 s46, s46, 1")
    g("s_cmp_lg_u32 s46, 0")
    g("s_cbranch_scc1 " + lp)
    g("s_mov_b32 m0, s42")
    g("s_add_u32 s47, s47, 14")
    flag(W)
    g(sk + ":")
    kloop(8)
    g.stamp(1)
    def rows896(n, ptr, lds):
        g("s_add_u32 s62, s%d, s41" % ptr)
        g("s_addc_u32 s63, s%d, 0" % (ptr + 1))
        g("s_mov_b32 m0, %d" % lds)
        g("s_mov_b32 s46, %d" % n)
        lp = g.lab("RW")
        g(lp + ":")
        g("global_load_lds_dwordx4 v7, s[62:63] nt")
        g("s_add_u32 s62, s62, 7168")
        g("s_addc_u32 s63, s63, 0")
        g("s_add_u32 m0, m0, 1024")
        g("s_sub_u32 s46, s46, 1")
        g("s_cmp_lg_u32 s46, 0")
        g("s_cbranch_scc1 " + lp)
        g("s_add_u32 s47, s47, %d" % n)
    def wd_tile():
        g("s_mul_i32 s41, s%d, %d" % (S_I, 64 * 896))
        g("s_lshl_b32 s42, s%d, 7" % S_KVH)
        g("s_add_u32 s41, s41, s42")
        rows896(8, S_WD, AUX + WD_T)
    if not g.defer_wd:
        sk = g.lab("NOWD")
        g("s_cmp_eq_u32 s%d, 0" % S_D)
        g("s_cbranch_scc1 " + sk)
        wait_prog("4")
        wd_tile()
        flag(W)
        g(sk + ":")
    g("s_mov_b32 m0, %d" % KV)
    lp = g.lab("VL")
    g("s_mov_b32 s43, 0")
    g(lp + ":")
    g("s_lshr_b32 s41, s43, 2")
    g("s_lshr_b32 s42, s43, 3")
    g("s_add_u32 s41, s41, s42")
    g("s_add_u32 s41, s41, 2")
    wait_prog("s41")
    tile(48, g.Wmid if g.Wmid else None)
    if g.ldpre >= 0:
        sk = g.lab("NPT")
        g("s_cmp_lg_u32 s43, %d" % g.ldpre)
        g("s_cbranch_scc1 " + sk)
        g("s_lshl_b32 s41, s%d, 1" % S_KVH); g("s_add_u32 s41, s41, s%d" % S_B); g("s_lshl_b32 s41, s41, 4"); g("s_add_u32 s41, s41, s%d" % S_J)
        g("s_lshl_b32 s41, s41, 11"); g("s_add_u32 s41, s41, %d" % OP)
        g("v_lshlrev_b32 v19, 4, v0"); g("v_add_u32 v19, s41, v19")
        g("global_load_dwordx4 v[24:27], v19, s[%d:%d]" % (S_WS, S_WS + 1))
        g("global_load_dwordx4 v[28:31], v19, s[%d:%d] offset:1024" % (S_WS, S_WS + 1))
        g(sk + ":")
    flag(W)
    g("s_add_u32 s43, s43, 1")
    g("s_cmp_lg_u32 s43, 16")
    g("s_cbranch_scc1 " + lp)
    g.stamp(2)
    sk = g.lab("NOWO"); dn = g.lab("LDONE"); nod = g.lab("NODW")
    last = 8 if g.lastbar else 0
    def wo_tile():
        g("s_lshl_b32 s41, s%d, 2" % S_KVH)
        g("s_add_u32 s41, s41, s%d" % S_RBL)
        g("s_mul_i32 s41, s41, %d" % (128 * 896))
        g("s_lshl_b32 s42, s%d, 7" % S_CB)
        g("s_add_u32 s41, s41, s42")
        rows896(16, S_WO, AUX + WO_T)
    def drain(extra):
        n = W - 8 + extra
        while n > extra + last:
            flag(n); n -= 8
        flag(extra + last)
        if g.lastbar:
            g("s_waitcnt vmcnt(%d)" % extra)
            g("s_barrier")
    g("s_cmp_eq_u32 s%d, 0" % S_O)
    g("s_cbranch_scc1 " + sk)
    if g.defer_wd:
        g("s_cmp_eq_u32 s%d, 0" % S_D)
        g("s_cbranch_scc1 " + nod)
        wd_tile()
        wo_tile()
        drain(24)
        flag(16)
        flag(0)
        g("s_branch " + dn)
        g(nod + ":")
    wo_tile()
    drain(16)
    flag(0)
    g("s_branch " + dn)
    g(sk + ":")
    drain(0)
    g(dn + ":")
    g.stamp(3)
    g("s_waitcnt lgkmcnt(0)")
    if g.stamps: write_stamps(g)
    g("s_endpgm")

def wait_landed(g, sthr):
    lp = g.lab("WL"); ex = g.lab("WLX")
    g("s_cmp_ge_i32 s%d, %s" % (S_LAND, sthr))
    g("s_cbranch_scc1 " + ex)
    g(lp + ":")
    g("ds_read_b32 v%d, v%d" % (V_F, V_LR))
    g("s_waitcnt lgkmcnt(0)")
    g("v_readfirstlane_b32 s%d, v%d" % (S_LAND, V_F))
    g("s_cmp_ge_i32 s%d, %s" % (S_LAND, sthr))
    g("s_cbranch_scc1 " + ex)
    budget_exit(g, ex)
    if g.sleep_lds: g("s_sleep %d" % g.sleep_lds)
    g("s_branch " + lp)
    g(ex + ":")
def prog_set(g, val):
    g("v_mov_b32 v%d, %s" % (V_F, val))
    g("ds_write_b32 v%d, v%d" % (V_PW, V_F))
def wait_prog_c(g, val):
    lp = g.lab("WP"); ex = g.lab("WPX")
    t = V_W
    g(lp + ":")
    g("ds_read_b128 v[%d:%d], v%d" % (t, t + 3, V_PR))
    g("s_waitcnt lgkmcnt(0)")
    g("v_min3_i32 v%d, v%d, v%d, v%d" % (t, t, t + 1, t + 2))
    g("v_min_i32 v%d, v%d, v%d" % (t, t, t + 3))
    g("v_cmp_gt_i32 vcc, %s, v%d" % (val, t))
    g("s_cbranch_vccz " + ex)
    budget_exit(g, ex)
    g("s_branch " + lp)
    g(ex + ":")
def tag4(g, r):
    for k in range(4): g("v_bfi_b32 v%d, s%d, v%d, v%d" % (r + k, S_MASK, V_T + k, r + k))
def strip(g, r, n):
    for k in range(n): g("v_bfi_b32 v%d, s%d, v%d, v%d" % (r + k, S_MASK, V_MID, r + k))
def poll(g, emit_loads, regs, sleep, acc, masked_last=False, pre=False, count=False):
    lp = g.lab("PL"); ex = g.lab("PX"); ck = g.lab("PC")
    if count and g.stamps and not getattr(g, 'light', 0): g("s_mov_b32 s63, 0")
    if pre: g("s_branch " + ck)
    g(lp + ":")
    emit_loads()
    g(ck + ":")
    g("s_waitcnt vmcnt(0)")
    if count and g.stamps and not getattr(g, 'light', 0): g("s_add_u32 s63, s63, 1")
    first = True
    for idx, r in enumerate(regs):
        if masked_last and idx == len(regs) - 1: g("s_mov_b32 exec_hi, 0")
        for k in range(4):
            if first:
                g("v_xor_b32 v%d, v%d, v%d" % (acc, r + k, V_T + k)); first = False
            else:
                g("v_bitop3_b32 v%d, v%d, v%d, v%d bitop3:0xBE" % (acc, r + k, V_T + k, acc))
    if masked_last: g("s_mov_b64 exec, -1")
    g("v_and_b32 v%d, s%d, v%d" % (acc, S_MASK, acc))
    g("v_cmp_ne_u32 vcc, 0, v%d" % acc)
    g("s_cbranch_vccz " + ex)
    budget_exit(g, ex)
    if sleep: g("s_sleep %d" % sleep)
    g("s_branch " + lp)
    g(ex + ":")
    if count and g.stamps and not getattr(g, 'light', 0):
        g("s_waitcnt lgkmcnt(0)")
        g("s_mul_i32 s94, s63, 100"); g("s_add_u32 s94, s94, s64"); g("s_addc_u32 s95, s65, 0")
def poll_sel(g, loads, sleep, acc, count=False, first_allow=0):
    lp = g.lab("QL"); ex = g.lab("QX")
    if count and g.stamps and not getattr(g, 'light', 0): g("s_mov_b32 s63, 0")
    if first_allow:
        ck = g.lab("QC")
        g("s_cmp_eq_u32 s%d, 0" % S_D)
        g("s_cbranch_scc1 " + lp)
        g("s_waitcnt vmcnt(%d)" % first_allow)
        g("s_branch " + ck)
    g(lp + ":")
    g("s_waitcnt vmcnt(0)")
    if first_allow: g(ck + ":")
    if count and g.stamps and not getattr(g, 'light', 0): g("s_add_u32 s63, s63, 1")
    for u, (r, emit) in enumerate(loads):
        g("v_xor_b32 v%d, v%d, v%d" % (acc + u, r, V_T))
        for k in range(1, 4): g("v_bitop3_b32 v%d, v%d, v%d, v%d bitop3:0xBE" % (acc + u, r + k, V_T + k, acc + u))
    g("v_or3_b32 v%d, v%d, v%d, v%d" % (V_F, acc, acc + 1, acc + 2))
    g("v_or_b32 v%d, v%d, v%d" % (V_F, V_F, acc + 3))
    g("v_and_b32 v%d, s%d, v%d" % (V_F, S_MASK, V_F))
    g("v_cmp_ne_u32 vcc, 0, v%d" % V_F)
    g("s_cbranch_vccz " + ex)
    g("s_mov_b32 s46, 0")
    for u, (r, emit) in enumerate(loads):
        g("v_and_b32 v%d, s%d, v%d" % (acc + u, S_MASK, acc + u))
        g("v_cmp_ne_u32 vcc, 0, v%d" % (acc + u))
        g("s_cmp_lg_u64 vcc, 0")
        g("s_cselect_b32 s47, %d, 0" % (1 << u))
        g("s_or_b32 s46, s46, s47")
    budget_exit(g, ex)
    if sleep: g("s_sleep %d" % sleep)
    for u, (r, emit) in enumerate(loads):
        sk = g.lab("QS")
        g("s_bitcmp1_b32 s46, %d" % u)
        g("s_cbranch_scc0 " + sk)
        emit()
        g(sk + ":")
    g("s_branch " + lp)
    g(ex + ":")
    if count and g.stamps and not getattr(g, 'light', 0):
        g("s_waitcnt lgkmcnt(0)")
        g("s_mul_i32 s94, s63, 100"); g("s_add_u32 s94, s94, s64"); g("s_addc_u32 s95, s65, 0")
def T4(g, r):
    g("v_permlane16_swap_b32 v%d, v%d" % (r, r + 1))
    g("v_permlane16_swap_b32 v%d, v%d" % (r + 2, r + 3))
    g("v_add_f32 v%d, v%d, v%d" % (r, r, r + 1))
    g("v_add_f32 v%d, v%d, v%d" % (r + 2, r + 2, r + 3))
    g("v_permlane32_swap_b32 v%d, v%d" % (r, r + 2))
    g("v_add_f32 v%d, v%d, v%d" % (r, r, r + 2))
def rnd_bf16(g, dst, src):
    g("v_cvt_pk_bf16_f32 v%d, v%d, v%d" % (dst, src, src))
    g("v_and_b32 v%d, s%d, v%d" % (dst, S_HI, dst))
def allreduce16(g, op, regs):
    for sh in (8, 4, 2, 1):
        for r in regs: g("%s_dpp v%d, v%d, v%d row_ror:%d row_mask:0xf bank_mask:0xf" % (op, r, r, r, sh))
def xrow(g, op, regs, tmp):
    for w in (16, 32):
        for i, r in enumerate(regs): g("v_mov_b32 v%d, v%d" % (tmp + i, r))
        for i, r in enumerate(regs): g("v_permlane%d_swap_b32 v%d, v%d" % (w, r, tmp + i))
        for i, r in enumerate(regs): g("%s v%d, v%d, v%d" % (op, r, r, tmp + i))
def thin_tile16(g, nsteps, tr_off, vb, acc, tmp):
    for s in range(nsteps):
        g("ds_read_b64_tr_b16 v[%d:%d], v%d offset:%d" % (tmp + 4 * s, tmp + 4 * s + 1, V_TR, tr_off + s * 2048))
        g("ds_read_b64 v[%d:%d], v%d offset:%d" % (tmp + 4 * s + 2, tmp + 4 * s + 3, vb, s * 32))
    for s in range(nsteps):
        g("s_waitcnt lgkmcnt(%d)" % (2 * (nsteps - 1 - s)))
        g("v_mfma_f32_16x16x16_bf16 v[%d:%d], v[%d:%d], v[%d:%d], %s" % (acc, acc + 3, tmp + 4 * s, tmp + 4 * s + 1, tmp + 4 * s + 2, tmp + 4 * s + 3, "0" if s == 0 else "v[%d:%d]" % (acc, acc + 3)))
def store_n2(g, vaddr, r):
    g("s_mov_b64 exec, s[%d:%d]" % (S_EX, S_EX + 1))
    g("global_store_dwordx4 v%d, v[%d:%d], s[%d:%d] sc1" % (vaddr, r, r + 3, S_WS, S_WS + 1))
    g("s_mov_b64 exec, -1")
def gld(g, dst, vaddr, off=0, flags="sc1"):
    g("global_load_dwordx4 v[%d:%d], v%d, s[%d:%d]%s %s" % (dst, dst + 3, vaddr, S_WS, S_WS + 1, (" offset:%d" % off) if off else "", flags))
def part_addr(g, dst, base, s_cb, s_row):
    g("s_lshl_b32 s41, s%d, 14" % s_cb)
    g("s_lshr_b32 s42, s%d, 1" % S_CW); g("s_lshl_b32 s42, s42, 12"); g("s_add_u32 s41, s41, s42")
    g("s_lshl_b32 s42, s%d, 7" % s_row); g("s_add_u32 s41, s41, s42")
    g("s_and_b32 s42, s%d, 1" % S_CW); g("s_lshl_b32 s42, s42, 6"); g("s_add_u32 s41, s41, s42")
    g("s_add_u32 s41, s41, %d" % base)
    g("v_lshlrev_b32 v%d, 13, v%d" % (dst, V_N))
    g("v_lshl_add_u32 v%d, v%d, 4, v%d" % (dst, V_KG, dst))
    g("v_add_u32 v%d, s41, v%d" % (dst, dst))

def compute(g):
    g.c("================= compute waves =================")
    if getattr(g, "loaderonly", 0):
        g("s_waitcnt lgkmcnt(0)")
        g("s_barrier")
        g("v_mov_b32 v4, %d" % PROG); g("v_mov_b32 v8, 100"); g("v_mov_b32 v9, 100"); g("v_mov_b32 v10, 100"); g("v_mov_b32 v11, 100")
        g("ds_write_b128 v4, v[8:11]")
        g("s_waitcnt lgkmcnt(0)")
        if g.lastbar: g("s_barrier")
        if g.stamps: write_stamps(g)
        g("s_endpgm")
        return
    g("s_sub_u32 s%d, s%d, 1" % (S_CW, S_WAVE))
    g("v_min_u32 v3, 55, v0")
    g("v_lshlrev_b32 v3, 4, v3")
    g("v_and_b32 v%d, 15, v0" % V_N)
    g("v_lshrrev_b32 v%d, 4, v0" % V_KG)
    g("s_mov_b32 s%d, %d" % (S_MASK, TAGMASK))
    g("s_mov_b32 s%d, 0xffff0000" % S_HI)
    g("s_mov_b32 s%d, 0x00030003" % S_EX); g("s_mov_b32 s%d, 0x00030003" % (S_EX + 1))
    g("s_mov_b32 s%d, 0x3db8aa3b" % S_C)
    g("s_waitcnt lgkmcnt(0)")
    g("global_load_dwordx4 v[%d:%d], v3, s[%d:%d]" % (T, T + 3, S_X, S_X + 1))
    g("global_load_dwordx4 v[%d:%d], v3, s[%d:%d] offset:896" % (T + 4, T + 7, S_X, S_X + 1))
    g("s_load_dwordx2 s[%d:%d], s[%d:%d], 0" % (S_E, S_E + 1, S_WS, S_WS + 1))
    g("v_mov_b32 v%d, %d" % (V_MID, TAGMID))
    g("v_mov_b32 v%d, %d" % (V_PR, PROG))
    g("v_mov_b32 v%d, %d" % (V_LR, LAND))
    g("v_lshlrev_b32 v4, 2, v0")
    g("v_add_u32 v4, %d, v4" % JUNK)
    g("s_lshl_b32 s41, s%d, 2" % S_CW)
    g("s_add_u32 s41, s41, %d" % PROG)
    g("v_mov_b32 v5, s41")
    g("v_cmp_eq_u32 vcc, 0, v0")
    g("v_cndmask_b32 v%d, v4, v5, vcc" % V_PW)
    g("v_lshrrev_b32 v4, 2, v%d" % V_N)
    g("v_lshl_add_u32 v4, v%d, 2, v4" % V_KG)
    g("v_lshrrev_b32 v5, 1, v4")
    g("v_and_b32 v5, 3, v5")
    g("v_xor_b32 v5, s%d, v5" % S_CW)
    g("v_lshlrev_b32 v5, 5, v5")
    g("v_lshl_add_u32 v5, v4, 7, v5")
    g("v_and_b32 v6, 3, v%d" % V_N)
    g("v_lshl_add_u32 v5, v6, 3, v5")
    g("v_add_u32 v%d, %d, v5" % (V_TR, AUX))
    g("s_barrier")
    g.stamp(1)
    g.c("layernorm")
    F = T + 8
    g("v_cmp_gt_u32 vcc, 56, v0")
    g("s_waitcnt vmcnt(0)")
    for k in range(8): g("v_cndmask_b32 v%d, 0, v%d, vcc" % (T + k, T + k))
    for b in range(2):
        for k in range(4):
            g("v_lshlrev_b32 v%d, 16, v%d" % (F + 8 * b + 2 * k, T + 4 * b + k))
            g("v_and_b32 v%d, s%d, v%d" % (F + 8 * b + 2 * k + 1, S_HI, T + 4 * b + k))
    SUM = T + 24
    for b in range(2):
        f = F + 8 * b
        g("v_add_f32 v%d, v%d, v%d" % (SUM + b, f, f + 1))
        for k in range(2, 8): g("v_add_f32 v%d, v%d, v%d" % (SUM + b, SUM + b, f + k))
    allreduce16(g, "v_add_f32", [SUM, SUM + 1])
    xrow(g, "v_add_f32", [SUM, SUM + 1], SUM + 2)
    g("v_mov_b32 v4, 0x3b124925")
    for b in range(2): g("v_mul_f32 v%d, v%d, v4" % (SUM + b, SUM + b))
    VAR = T + 28
    for b in range(2):
        f = F + 8 * b
        for k in range(8):
            g("v_sub_f32 v5, v%d, v%d" % (f + k, SUM + b))
            if k == 0: g("v_mul_f32 v%d, v5, v5" % (VAR + b))
            else: g("v_fma_f32 v%d, v5, v5, v%d" % (VAR + b, VAR + b))
    for b in range(2): g("v_cndmask_b32 v%d, 0, v%d, vcc" % (VAR + b, VAR + b))
    allreduce16(g, "v_add_f32", [VAR, VAR + 1])
    xrow(g, "v_add_f32", [VAR, VAR + 1], VAR + 2)
    for b in range(2):
        g("v_mul_f32 v%d, v%d, v4" % (VAR + b, VAR + b))
        rnd_bf16(g, VAR + b, VAR + b)
        g("v_add_f32 v%d, 0x3727c5ac, v%d" % (VAR + b, VAR + b))
        rnd_bf16(g, VAR + b, VAR + b)
        g("v_sqrt_f32 v%d, v%d" % (VAR + b, VAR + b))
        rnd_bf16(g, VAR + b, VAR + b)
        g("v_rcp_f32 v%d, v%d" % (VAR + b, VAR + b))
        rnd_bf16(g, SUM + b, SUM + b)
    for b in range(2):
        f = F + 8 * b
        for k in range(0, 8, 2):
            g("v_sub_f32 v%d, v%d, v%d" % (f + k, f + k, SUM + b))
            g("v_sub_f32 v%d, v%d, v%d" % (f + k + 1, f + k + 1, SUM + b))
            g("v_cvt_pk_bf16_f32 v5, v%d, v%d" % (f + k, f + k + 1))
            g("v_lshlrev_b32 v%d, 16, v5" % (f + k))
            g("v_and_b32 v%d, s%d, v5" % (f + k + 1, S_HI))
            g("v_mul_f32 v%d, v%d, v%d" % (f + k, f + k, VAR + b))
            g("v_mul_f32 v%d, v%d, v%d" % (f + k + 1, f + k + 1, VAR + b))
            g("v_cvt_pk_bf16_f32 v%d, v%d, v%d" % (T + 4 * b + k // 2, f + k, f + k + 1))
    g("v_lshlrev_b32 v4, 4, v0")
    g("v_add_u32 v4, %d, v4" % XN)
    g("s_mov_b32 exec_hi, 0x00ffffff")
    g("ds_write_b128 v4, v[%d:%d]" % (T, T + 3))
    g("ds_write_b128 v4, v[%d:%d] offset:896" % (T + 4, T + 7))
    g("s_mov_b64 exec, -1")
    g("s_waitcnt lgkmcnt(0)")
    g("s_add_u32 s%d, s%d, 1" % (S_E, S_E))
    g("s_and_b32 s41, s%d, s%d" % (S_E, S_MASK)); g("v_mov_b32 v%d, s41" % V_T)
    g("s_lshr_b32 s41, s%d, 10" % S_E); g("s_and_b32 s41, s41, s%d" % S_MASK); g("v_mov_b32 v%d, s41" % (V_T + 1))
    g("s_lshr_b32 s41, s%d, 20" % S_E); g("s_and_b32 s41, s41, s%d" % S_MASK); g("v_mov_b32 v%d, s41" % (V_T + 2))
    g("s_lshr_b32 s41, s%d, 30" % S_E); g("s_lshl_b32 s42, s%d, 2" % (S_E + 1)); g("s_or_b32 s41, s41, s42"); g("s_and_b32 s41, s41, s%d" % S_MASK); g("v_mov_b32 v%d, s41" % (V_T + 3))
    g.stamp(2)
    g.cat = "qp"
    g.c("q partial")
    g("v_and_b32 v4, 1, v%d" % V_N)
    g("v_mul_u32_u24 v4, 896, v4")
    g("v_lshl_add_u32 v4, v%d, 3, v4" % V_KG)
    g("v_add_u32 v3, %d, v4" % XN)
    g("s_lshr_b32 s41, s%d, 3" % S_I)
    g("s_mul_i32 s41, s41, 224")
    g("v_add_u32 v4, s41, v3")
    g("v_lshlrev_b32 v5, 8, v%d" % V_N)
    g("v_lshl_add_u32 v5, v%d, 4, v5" % V_KG)
    g("s_lshl_b32 s41, s%d, 6" % S_CW)
    g("v_add_u32 v5, s41, v5")
    g("s_lshl_b32 s41, s%d, 14" % S_KVH)
    g("s_lshl_b32 s42, s%d, 9" % S_I)
    g("s_add_u32 s41, s41, s42")
    g("s_add_u32 s41, s41, %d" % QP)
    g("v_add_u32 v6, s41, v5")
    wait_landed(g, "14")
    thin_tile16(g, 7, WQ_T, 4, T + 32, T)
    tag4(g, T + 32)
    store_n2(g, 6, T + 32)
    g.stamp(3)
    prog_set(g, "1")
    g.cat = "xc"
    g("s_getreg_b32 s%d, hwreg(HW_REG_XCC_ID)" % S_XCC)
    g("s_and_b32 s%d, s%d, 15" % (S_XCC, S_XCC))
    sk = g.lab("NOXC")
    g("s_cmp_lg_u32 s%d, 0" % S_CW)
    g("s_cbranch_scc1 " + sk)
    g("s_lshl_b32 s41, s%d, 16" % S_XCC)
    for k in range(4): g("v_mov_b32 v%d, s41" % (V_X + k))
    tag4(g, V_X)
    g("s_lshl_b32 s41, s%d, 9" % S_KVH); g("s_lshl_b32 s42, s%d, 4" % S_I); g("s_add_u32 s41, s41, s42"); g("s_add_u32 s41, s41, %d" % XC)
    g("v_mov_b32 v7, s41")
    g("s_mov_b64 exec, 1")
    g("global_store_dwordx4 v7, v[%d:%d], s[%d:%d] sc1" % (V_X, V_X + 3, S_WS, S_WS + 1))
    g("s_mov_b64 exec, -1")
    g(sk + ":")
    g.cat = "gp"
    g.c("gate/up partial")
    sk = g.lab("NOGU")
    g("s_cmp_eq_u32 s%d, 0" % S_G)
    g("s_cbranch_scc1 " + sk)
    g("s_lshr_b32 s41, s%d, 1" % S_KVH)
    g("s_mul_i32 s41, s41, 224")
    g("v_add_u32 v4, s41, v3")
    g("s_lshl_b32 s41, s%d, 12" % S_I)
    g("s_lshl_b32 s42, s%d, 9" % S_KVH)
    g("s_add_u32 s41, s41, s42")
    g("s_add_u32 s41, s41, %d" % GP)
    g("v_add_u32 v6, s41, v5")
    wait_landed(g, "28")
    thin_tile16(g, 7, GU_T, 4, V_S, T)
    tag4(g, V_S)
    store_n2(g, 6, V_S)
    g(sk + ":")
    g("v_mov_b32 v%d, v4" % (V_S + 4))
    g("v_add_u32 v%d, 512, v6" % (V_S + 5))
    g.cat = "ldq"
    g.c("K tiles to registers")
    g("v_and_b32 v8, 7, v%d" % V_N)
    g("v_lshlrev_b32 v8, 1, v8")
    g("s_lshl_b32 s41, s%d, 13" % S_CW)
    g("v_lshlrev_b32 v9, 9, v%d" % V_N)
    g("v_add_u32 v9, s41, v9")
    for s3 in range(4):
        g("v_add_u32 v%d, %d, v%d" % (4 + s3, 4 * s3, V_KG))
        g("v_xor_b32 v%d, v%d, v8" % (4 + s3, 4 + s3))
        g("v_lshl_add_u32 v%d, v%d, 4, v9" % (4 + s3, 4 + s3))
    g("s_lshl_b32 s41, s%d, 14" % S_KVH)
    g("s_lshl_b32 s42, s%d, 10" % S_CW)
    g("s_add_u32 s41, s41, s42")
    g("s_lshl_b32 s42, s%d, 8" % S_B)
    g("s_add_u32 s41, s41, s42")
    g("s_add_u32 s41, s41, %d" % QP)
    g("v_lshlrev_b32 v10, 12, v%d" % V_KG)
    g("v_lshl_add_u32 v10, v%d, 4, v10" % V_N)
    g("v_add_u32 v10, s41, v10")
    g("s_min_u32 s41, s%d, 27" % S_I)
    g("s_lshl_b32 s41, s41, 12")
    g("s_and_b32 s42, s%d, 1" % S_CW)
    g("s_lshl_b32 s42, s42, 8")
    g("s_add_u32 s41, s41, s42"); g("s_add_u32 s41, s41, %d" % GP)
    g("v_lshlrev_b32 v11, 10, v%d" % V_KG)
    g("v_lshl_add_u32 v11, v%d, 4, v11" % V_N)
    g("v_add_u32 v11, s41, v11")
    g("s_lshl_b32 s41, s%d, 9" % S_KVH); g("s_add_u32 s41, s41, %d" % XC)
    g("v_and_b32 v22, 31, v0"); g("v_lshlrev_b32 v22, 4, v22"); g("v_add_u32 v22, s41, v22")
    def ldq():
        gld(g, T, 10); gld(g, T + 4, 10, 512); gld(g, V_X, 22)
    def ldg():
        gld(g, V_G, 11); gld(g, V_G + 4, 11, 512)
    for r in range(4):
        if r == g.q_issue_at: ldq()
        g("s_lshl_b32 s41, s%d, 3" % S_CW)
        g("s_add_u32 s41, s41, s%d" % S_BK)
        g("s_add_u32 s41, s41, %d" % (8 + 32 * r))
        if r >= 2: g("s_add_u32 s41, s41, s%d" % S_G2)
        wait_landed(g, "s41")
        for s in range(8):
            g("ds_read_b128 v[%d:%d], v%d offset:%d" % (V_K + 32 * r + 4 * s, V_K + 32 * r + 4 * s + 3, 4 + (s & 3), (s >> 2) * 256 + (r & 1) * 32768))
        if r == 1:
            for s3 in range(4): g("v_add_u32 v%d, 0x10000, v%d" % (4 + s3, 4 + s3))
        g("s_waitcnt lgkmcnt(0)")
        prog_set(g, str(2 + r + (1 if r >= 2 else 0)))
        if r == 1:
            sk = g.lab("NOG2")
            g("s_cmp_eq_u32 s%d, 0" % S_G2)
            g("s_cbranch_scc1 " + sk)
            g("s_add_u32 s41, s%d, s%d" % (S_BK, S_G2)); g("s_add_u32 s41, s41, 64")
            wait_landed(g, "s41")
            thin_tile16(g, 7, WQ_T, V_S + 4, V_S, V_Q)
            tag4(g, V_S)
            store_n2(g, V_S + 5, V_S)
            g(sk + ":")
            prog_set(g, "4")
    g.stamp(4)
    g.c("gather q")
    poll(g, ldq, [T, T + 4, V_X], g.sleep_mid, T + 8, pre=True)
    sk = g.lab("NOGL")
    g("s_cmp_eq_u32 s%d, 0" % S_D); g("s_cbranch_scc1 " + sk)
    g("s_cmp_ge_u32 s%d, 2" % S_CW); g("s_cbranch_scc1 " + sk)
    ldg()
    g(sk + ":")
    g("v_lshrrev_b32 v%d, 16, v%d" % (V_X, V_X))
    g("v_cmp_eq_u32 vcc, s%d, v%d" % (S_XCC, V_X))
    g("s_nop 0")
    g("s_cmp_eq_u64 vcc, exec")
    g("s_cselect_b32 s%d, %d, 0" % (S_FAST, 1 if g.fast else 0))
    strip(g, T, 8)
    T4(g, T); T4(g, T + 4)
    g("v_cvt_pk_bf16_f32 v%d, v%d, v%d" % (T, T, T + 4))
    g("s_lshr_b32 s41, s%d, 1" % S_CW); g("s_lshl_b32 s41, s41, 9")
    g("s_and_b32 s42, s%d, 1" % S_CW); g("s_lshl_b32 s42, s42, 8")
    g("s_add_u32 s41, s41, s42"); g("s_add_u32 s41, s41, %d" % QB)
    g("v_lshlrev_b32 v4, 3, v%d" % V_N)
    g("v_lshl_add_u32 v4, v%d, 1, v4" % V_KG)
    g("v_add_u32 v4, s41, v4")
    g("ds_write_b16 v4, v%d" % T)
    g("ds_write_b16_d16_hi v4, v%d offset:128" % T)
    prog_set(g, "7")
    wait_prog_c(g, "7")
    g("v_and_b32 v4, 1, v%d" % V_N)
    g("v_lshlrev_b32 v4, 9, v4")
    g("v_lshl_add_u32 v4, v%d, 4, v4" % V_KG)
    g("v_add_u32 v4, %d, v4" % QB)
    for s in range(8): g("ds_read_b128 v[%d:%d], v4 offset:%d" % (V_Q + 4 * s, V_Q + 4 * s + 3, s * 64))
    g.c("QK")
    for s in range(8):
        g("s_waitcnt lgkmcnt(%d)" % (7 - s))
        for r in range(4):
            g("v_mfma_f32_16x16x32_bf16 v[%d:%d], v[%d:%d], v[%d:%d], %s" % (V_S + 4 * r, V_S + 4 * r + 3, V_K + 32 * r + 4 * s, V_K + 32 * r + 4 * s + 3, V_Q + 4 * s, V_Q + 4 * s + 3, "0" if s == 0 else "v[%d:%d]" % (V_S + 4 * r, V_S + 4 * r + 3)))
    g.stamp(5)
    g.cat = "st"
    g.c("softmax")
    for k in range(0, 16, 2):
        g("v_cvt_pk_bf16_f32 v4, v%d, v%d" % (V_S + k, V_S + k + 1))
        g("v_lshlrev_b32 v%d, 16, v4" % (V_S + k))
        g("v_and_b32 v%d, s%d, v4" % (V_S + k + 1, S_HI))
    g("v_max3_f32 v4, v%d, v%d, v%d" % (V_S, V_S + 1, V_S + 2))
    for k in range(3, 15, 2): g("v_max3_f32 v4, v4, v%d, v%d" % (V_S + k, V_S + k + 1))
    g("v_max_f32 v4, v4, v%d" % (V_S + 15))
    xrow(g, "v_max_f32", [4], 5)
    g("v_and_b32 v6, 1, v%d" % V_N)
    g("v_lshlrev_b32 v6, 4, v6")
    g("v_add_u32 v6, %d, v6" % WM)
    g("s_lshl_b32 s41, s%d, 2" % S_CW)
    g("v_add_u32 v7, s41, v6")
    g("ds_write_b32 v7, v4")
    prog_set(g, "8")
    wait_prog_c(g, "8")
    g("ds_read_b128 v[%d:%d], v6" % (T, T + 3))
    g("s_waitcnt lgkmcnt(0)")
    g("v_max3_f32 v4, v%d, v%d, v%d" % (T, T + 1, T + 2))
    g("v_max_f32 v4, v4, v%d" % (T + 3))
    g("v_mul_f32 v5, s%d, v4" % S_C)
    for k in range(16):
        g("v_fma_f32 v%d, v%d, s%d, -v5" % (V_S + k, V_S + k, S_C))
    for k in range(16): g("v_exp_f32 v%d, v%d" % (V_S + k, V_S + k))
    g("v_add_f32 v8, v%d, v%d" % (V_S, V_S + 1))
    for k in range(2, 16): g("v_add_f32 v8, v8, v%d" % (V_S + k))
    xrow(g, "v_add_f32", [8], 9)
    g("ds_write_b32 v7, v8 offset:%d" % (WL - WM))
    g("v_and_b32 v9, 1, v%d" % V_N)
    g("v_lshlrev_b32 v9, 5, v9")
    g("v_lshl_add_u32 v9, v%d, 3, v9" % V_KG)
    g("v_add_u32 v3, %d, v9" % PB)
    g("s_lshl_b32 s41, s%d, 6" % S_CW)
    g("v_add_u32 v10, s41, v3")
    for r in range(4):
        g("v_cvt_pk_bf16_f32 v%d, v%d, v%d" % (T + 2 * r, V_S + 4 * r, V_S + 4 * r + 1))
        g("v_cvt_pk_bf16_f32 v%d, v%d, v%d" % (T + 2 * r + 1, V_S + 4 * r + 2, V_S + 4 * r + 3))
        g("ds_write_b64 v10, v[%d:%d] offset:%d" % (T + 2 * r, T + 2 * r + 1, r * 256))
    prog_set(g, "9")
    wait_prog_c(g, "9")
    sk = g.lab("NOST")
    g("s_cmp_lg_u32 s%d, 0" % S_CW)
    g("s_cbranch_scc1 " + sk)
    g("ds_read_b128 v[%d:%d], v6 offset:%d" % (T, T + 3, WL - WM))
    g("s_waitcnt lgkmcnt(0)")
    g("v_add_f32 v%d, v%d, v%d" % (T, T, T + 1))
    g("v_add_f32 v%d, v%d, v%d" % (T + 2, T + 2, T + 3))
    g("v_add_f32 v%d, v%d, v%d" % (T + 1, T, T + 2))
    g("v_mov_b32 v%d, v4" % T)
    g("v_mov_b32 v%d, v4" % (T + 2))
    g("v_mov_b32 v%d, v%d" % (T + 3, T + 1))
    tag4(g, T)
    g("s_lshl_b32 s41, s%d, 1" % S_KVH); g("s_add_u32 s41, s41, s%d" % S_B); g("s_lshl_b32 s41, s41, 4"); g("s_add_u32 s41, s41, s%d" % S_J)
    g("s_lshl_b32 s41, s41, 5"); g("s_add_u32 s41, s41, %d" % ST)
    g("v_lshlrev_b32 v5, 4, v0")
    g("v_add_u32 v5, s41, v5")
    g("s_mov_b64 exec, 3")
    g("global_store_dwordx4 v5, v[%d:%d], s[%d:%d] sc1" % (T, T + 3, S_WS, S_WS + 1))
    g("s_mov_b64 exec, -1")
    g(sk + ":")
    g.stamp(6)
    g.cat = "ffn"
    g.c("ffn down partial")
    sk = g.lab("NOFFN")
    g("s_cmp_eq_u32 s%d, 0" % S_D)
    g("s_cbranch_scc1 " + sk)
    sk2 = g.lab("NOH")
    g("s_cmp_ge_u32 s%d, 2" % S_CW)
    g("s_cbranch_scc1 " + sk2)
    poll(g, ldg, [V_G, V_G + 4], g.sleep_mid, T + 8, pre=True)
    strip(g, V_G, 8)
    T4(g, V_G); T4(g, V_G + 4)
    rnd_bf16(g, T, V_G); rnd_bf16(g, T + 4, V_G + 4)
    g("v_mul_f32 v5, v%d, v%d" % (T, T))
    g("v_mov_b32 v6, 0x3d372713")
    g("v_fma_f32 v5, v5, v6, 1.0")
    g("v_mul_f32 v5, v5, v%d" % T)
    g("v_mul_f32 v5, 0xc0135761, v5")
    g("v_exp_f32 v5, v5")
    g("v_add_f32 v5, 1.0, v5")
    g("v_rcp_f32 v5, v5")
    g("v_mul_f32 v5, v5, v%d" % T)
    rnd_bf16(g, 5, 5)
    g("v_mul_f32 v5, v5, v%d" % (T + 4))
    g("v_cvt_pk_bf16_f32 v5, v5, v5")
    g("s_lshl_b32 s41, s%d, 7" % S_CW); g("s_add_u32 s41, s41, %d" % HB)
    g("v_lshlrev_b32 v4, 3, v%d" % V_N)
    g("v_lshl_add_u32 v4, v%d, 1, v4" % V_KG)
    g("v_add_u32 v4, s41, v4")
    g("ds_write_b16 v4, v5")
    g(sk2 + ":")
    prog_set(g, "10")
    if not g.defer_wd:
        part_addr(g, 6, YP, S_KVH, S_I)
        g("v_and_b32 v4, 1, v%d" % V_N)
        g("v_lshlrev_b32 v4, 7, v4")
        g("v_lshl_add_u32 v4, v%d, 3, v4" % V_KG)
        g("v_add_u32 v4, %d, v4" % HB)
        wait_prog_c(g, "10")
        wait_landed(g, "s%d" % S_BV)
        thin_tile16(g, 4, WD_T, 4, T + 16, T)
        tag4(g, T + 16)
        store_n2(g, 6, T + 16)
    else:
        wait_prog_c(g, "10")
    g(sk + ":")
    g.stamp(7)
    g.c("tail addresses")
    g("s_lshl_b32 s41, s%d, 1" % S_KVH); g("s_add_u32 s41, s41, s%d" % S_B); g("s_lshl_b32 s41, s41, 4"); g("s_add_u32 s41, s41, s%d" % S_J)
    g("s_lshl_b32 s41, s41, 11")
    g("s_lshl_b32 s42, s%d, 8" % S_CW); g("s_add_u32 s41, s41, s42"); g("s_add_u32 s41, s41, %d" % OP)
    g("v_lshlrev_b32 v%d, 10, v%d" % (A_PUB, V_N))
    g("v_lshl_add_u32 v%d, v%d, 4, v%d" % (A_PUB, V_KG, A_PUB))
    g("v_add_u32 v%d, s41, v%d" % (A_PUB, A_PUB))
    g("v_bfe_u32 v23, v0, 4, 1"); g("v_lshlrev_b32 v23, 10, v23"); g("v_lshl_add_u32 v23, v%d, 4, v23" % V_N); g("v_add_u32 v23, s41, v23")
    g("s_lshl_b32 s41, s%d, 1" % S_KVH); g("s_lshr_b32 s42, s%d, 1" % S_CW); g("s_add_u32 s41, s41, s42"); g("s_lshl_b32 s41, s41, 15")
    g("s_and_b32 s42, s%d, 3" % S_RBL); g("s_lshl_b32 s42, s42, 9"); g("s_add_u32 s41, s41, s42")
    g("s_and_b32 s42, s%d, 1" % S_CW); g("s_lshl_b32 s42, s42, 8"); g("s_add_u32 s41, s41, s42")
    g("s_add_u32 s41, s41, %d" % OP)
    g("v_lshlrev_b32 v%d, 11, v%d" % (A_G0, V_KG))
    g("v_lshl_add_u32 v%d, v%d, 4, v%d" % (A_G0, V_N, A_G0))
    g("v_add_u32 v%d, s41, v%d" % (A_G0, A_G0))
    for u in range(1, 4): g("v_add_u32 v%d, %d, v%d" % (A_G0 + u, 8192 * u, A_G0))
    g("v_lshrrev_b32 v8, 3, v%d" % V_N); g("v_lshlrev_b32 v8, 5, v8")
    g("v_and_b32 v9, 3, v%d" % V_N); g("v_lshl_add_u32 v8, v9, 3, v8")
    g("v_bfe_u32 v9, v%d, 2, 1" % V_N); g("v_lshl_add_u32 v8, v9, 2, v8")
    g("v_add_u32 v8, v8, v%d" % V_KG); g("v_lshlrev_b32 v8, 1, v8")
    g("s_lshr_b32 s41, s%d, 1" % S_CW); g("s_lshl_b32 s41, s41, 8")
    g("s_and_b32 s42, s%d, 1" % S_CW); g("s_lshl_b32 s42, s42, 7"); g("s_add_u32 s41, s41, s42"); g("s_add_u32 s41, s41, %d" % OB)
    g("v_add_u32 v%d, s41, v8" % A_OBW)
    g("v_and_b32 v9, 1, v%d" % V_N); g("v_lshlrev_b32 v9, 8, v9"); g("v_lshl_add_u32 v9, v%d, 4, v9" % V_KG); g("v_add_u32 v%d, %d, v9" % (A_OBR, OB))
    g("s_lshl_b32 s45, s%d, 2" % S_KVH); g("s_add_u32 s45, s45, s%d" % S_RBL); g("s_and_b32 s45, s45, 31")
    g("s_min_u32 s46, s%d, 6" % S_CB)
    part_addr(g, A_SP, SP, 46, 45)
    g("s_lshl_b32 s41, s%d, 10" % S_KVH)
    g("s_lshr_b32 s42, s%d, 1" % S_RBL); g("s_and_b32 s42, s42, 1"); g("s_lshl_b32 s42, s42, 4"); g("s_add_u32 s41, s41, s42")
    g("s_add_u32 s41, s41, %d" % ST)
    g("v_and_b32 v%d, 31, v0" % A_STA)
    g("v_lshlrev_b32 v%d, 5, v%d" % (A_STA, A_STA))
    g("v_add_u32 v%d, s41, v%d" % (A_STA, A_STA))
    g("s_min_u32 s47, s%d, 27" % S_F)
    g("s_cmp_ge_u32 s47, 14"); g("s_cselect_b32 s42, 1, 0")
    g("s_mul_i32 s43, s42, 14"); g("s_sub_u32 s43, s47, s43")
    g("s_lshr_b32 s44, s43, 1")
    g("s_and_b32 s43, s43, 1")
    g("s_lshl_b32 s41, s44, 1"); g("s_add_u32 s41, s41, s42"); g("s_lshl_b32 s41, s41, 1"); g("s_add_u32 s41, s41, s43"); g("s_lshl_b32 s41, s41, 12")
    g("v_lshlrev_b32 v%d, 4, v0" % A_PART)
    g("v_add_u32 v%d, s41, v%d" % (A_PART, A_PART))
    g("s_mul_i32 s42, s42, 448"); g("s_lshl_b32 s44, s44, 6"); g("s_add_u32 s42, s42, s44"); g("s_lshl_b32 s43, s43, 5"); g("s_add_u32 s42, s42, s43")
    g("v_and_b32 v%d, 7, v0" % A_OUT)
    g("v_lshl_add_u32 v%d, v%d, 2, v%d" % (A_OUT, A_OUT, V_KG))
    g("v_add_u32 v%d, s42, v%d" % (A_OUT, A_OUT))
    g("v_lshlrev_b32 v%d, 1, v%d" % (A_OUT, A_OUT))
    if g.defer_wd:
        part_addr(g, A_YP, YP, S_KVH, S_I)
        g("v_and_b32 v%d, 1, v%d" % (A_HB, V_N))
        g("v_lshlrev_b32 v%d, 7, v%d" % (A_HB, A_HB))
        g("v_lshl_add_u32 v%d, v%d, 3, v%d" % (A_HB, V_KG, A_HB))
        g("v_add_u32 v%d, %d, v%d" % (A_HB, HB, A_HB))
    g.cat = "pre"
    g.c("PV")
    g("v_lshrrev_b32 v8, 2, v%d" % V_N)
    g("v_lshl_add_u32 v8, v%d, 2, v8" % V_KG)
    g("v_and_b32 v9, 7, v8")
    g("v_lshlrev_b32 v8, 9, v8")
    g("v_and_b32 v10, 3, v%d" % V_N)
    g("v_lshl_add_u32 v8, v10, 3, v8")
    g("s_lshl_b32 s41, s%d, 2" % S_CW)
    for mt in range(4):
        g("s_add_u32 s42, s41, %d" % mt)
        g("v_xor_b32 v%d, s42, v9" % (4 + mt))
        g("v_lshl_add_u32 v%d, v%d, 5, v8" % (4 + mt, 4 + mt))
    for k in range(16): g("v_mov_b32 v%d, 0" % (V_ACC + k))
    g("s_add_u32 s%d, s%d, 8" % (S_THR, S_BV))
    def pv_body():
        for mt in range(4): g("ds_read_b64_tr_b16 v[%d:%d], v%d" % (T + 2 + 2 * mt, T + 3 + 2 * mt, 4 + mt))
    def pv_mfma():
        for mt in range(4):
            g("s_waitcnt lgkmcnt(%d)" % (3 - mt))
            g("v_mfma_f32_16x16x16_bf16 v[%d:%d], v[%d:%d], v[%d:%d], v[%d:%d]" % (V_ACC + 4 * mt, V_ACC + 4 * mt + 3, T + 2 + 2 * mt, T + 3 + 2 * mt, T, T + 1, V_ACC + 4 * mt, V_ACC + 4 * mt + 3))
    def pv_loop(n):
        g("s_mov_b32 s%d, %d" % (S_CNT, n))
        lp = g.lab("PV")
        g(lp + ":")
        wait_landed(g, "s%d" % S_THR)
        g("ds_read_b64 v[%d:%d], v3" % (T, T + 1))
        pv_body()
        for mt in range(4): g("v_add_u32 v%d, 8192, v%d" % (4 + mt, 4 + mt))
        g("v_add_u32 v3, 64, v3")
        g("s_add_u32 s%d, s%d, 8" % (S_THR, S_THR))
        g("s_sub_u32 s%d, s%d, 1" % (S_CNT, S_CNT))
        pv_mfma()
        g("s_cmp_lg_u32 s%d, 0" % S_CNT)
        g("s_cbranch_scc1 " + lp)
    pv_loop(g.stat_at)
    fin = g.lab("PFIN"); jn = g.lab("PJN")
    g("s_cmp_eq_u32 s%d, 0" % S_O)
    g("s_cbranch_scc1 " + fin)
    gld(g, V_ST, A_STA)
    g(fin + ":")
    if g.ldpre < 0: gld(g, V_G, 23)
    g.stamp(8)
    if g.lastbar:
        pv_loop(15 - g.stat_at)
        g("ds_read_b64 v[%d:%d], v3" % (T, T + 1))
        g("s_waitcnt lgkmcnt(0)")
        g("s_barrier")
        pv_body()
        pv_mfma()
    else:
        pv_loop(16 - g.stat_at)
    g.stamp(9)
    g.cat = "op"
    g.c("publish o")
    for mt in range(4): tag4(g, V_ACC + 4 * mt)
    g("s_mov_b64 exec, s[%d:%d]" % (S_EX, S_EX + 1))
    slow = g.lab("OSLOW"); dn = g.lab("ODONE")
    g("s_cmp_eq_u32 s%d, 0" % S_FAST)
    g("s_cbranch_scc1 " + slow)
    for mt in range(4):
        g("global_store_dwordx4 v%d, v[%d:%d], s[%d:%d] offset:%d" % (A_PUB, V_ACC + 4 * mt, V_ACC + 4 * mt + 3, S_WS, S_WS + 1, mt * 64))
    g("s_branch " + dn)
    g(slow + ":")
    for mt in range(4):
        g("global_store_dwordx4 v%d, v[%d:%d], s[%d:%d] offset:%d sc1" % (A_PUB, V_ACC + 4 * mt, V_ACC + 4 * mt + 3, S_WS, S_WS + 1, mt * 64))
    g(dn + ":")
    g("s_mov_b64 exec, -1")
    g.stamp(10)
    fin = g.lab("FIN2"); end = g.lab("CEND")
    g("s_cmp_eq_u32 s%d, 0" % S_O)
    g("s_cbranch_scc1 " + fin)
    g.cat = "tail"
    g.c("stats")
    lp = g.lab("SL"); ex = g.lab("SX")
    g("s_waitcnt vmcnt(4)")
    g(lp + ":")
    g("v_xor_b32 v57, v%d, v%d" % (V_ST, V_T))
    for k in range(1, 4): g("v_bitop3_b32 v57, v%d, v%d, v57 bitop3:0xBE" % (V_ST + k, V_T + k))
    g("v_and_b32 v57, s%d, v57" % S_MASK)
    g("v_cmp_ne_u32 vcc, 0, v57")
    g("s_cbranch_vccz " + ex)
    budget_exit(g, ex)
    gld(g, V_ST, A_STA)
    g("s_waitcnt vmcnt(0)")
    g("s_branch " + lp)
    g(ex + ":")
    def ldo():
        for u in range(4): gld(g, T + 4 * u, A_G0 + u)
    ldo()
    Z = V_ST
    g("v_and_b32 v%d, s%d, v%d" % (Z, S_HI, Z))
    g("v_mov_b32 v57, v%d" % Z)
    allreduce16(g, "v_max_f32", [57])
    g("v_sub_f32 v57, v%d, v57" % Z)
    g("v_mul_f32 v57, s%d, v57" % S_C)
    g("v_exp_f32 v57, v57")
    g("v_mul_f32 v58, v57, v%d" % (Z + 1))
    allreduce16(g, "v_add_f32", [58])
    g("v_rcp_f32 v58, v58")
    g("v_mul_f32 v57, v57, v58")
    g("s_lshr_b32 s41, s%d, 1" % S_CW); g("s_lshl_b32 s41, s41, 6")
    g("v_lshlrev_b32 v58, 2, v%d" % V_KG)
    g("v_add_u32 v58, s41, v58")
    for u in range(4):
        g("v_add_u32 v59, %d, v58" % (16 * u))
        g("ds_bpermute_b32 v%d, v59, v57" % (V_C + u))
    if g.defer_wd:
        sk = g.lab("NOYP")
        g("s_cmp_eq_u32 s%d, 0" % S_D)
        g("s_cbranch_scc1 " + sk)
        g("s_add_u32 s41, s%d, 136" % S_BV)
        wait_landed(g, "s41")
        thin_tile16(g, 4, WD_T, A_HB, 192, 160)
        tag4(g, 192)
        store_n2(g, A_YP, 192)
        g(sk + ":")
    g("s_add_u32 s41, s%d, 144" % S_BV)
    if g.defer_wd: g("s_add_u32 s41, s41, s%d" % S_D)
    wait_landed(g, "s41")
    A = V_Q
    for s in range(4):
        g("ds_read_b64_tr_b16 v[%d:%d], v%d offset:%d" % (A + 8 * s, A + 8 * s + 1, V_TR, WO_T + s * 4096))
        g("ds_read_b64_tr_b16 v[%d:%d], v%d offset:%d" % (A + 8 * s + 2, A + 8 * s + 3, V_TR, WO_T + s * 4096 + 2048))
    g.c("gather o")
    if g.selpoll:
        poll_sel(g, [(T + 4 * u, (lambda u=u: gld(g, T + 4 * u, A_G0 + u))) for u in range(4)], g.sleep_tail, T + 16, count=True, first_allow=(1 if g.defer_wd else 0))
    else:
        poll(g, ldo, [T, T + 4, T + 8, T + 12], g.sleep_tail, T + 16, pre=True, count=True)
    g.stamp(12)
    if not g.nostrip: strip(g, T, 16)
    g("s_waitcnt lgkmcnt(0)")
    for k in range(4): g("v_mul_f32 v%d, v%d, v%d" % (T + k, T + k, V_C))
    for u in range(1, 4):
        for k in range(4): g("v_fma_f32 v%d, v%d, v%d, v%d" % (T + k, T + 4 * u + k, V_C + u, T + k))
    T4(g, T)
    g("v_cvt_pk_bf16_f32 v%d, v%d, v%d" % (T, T, T))
    g("ds_write_b16 v%d, v%d" % (A_OBW, T))
    g("s_waitcnt lgkmcnt(0)")
    g("s_barrier")
    g.stamp(13)
    for s in range(4):
        g("ds_read_b128 v[%d:%d], v%d offset:%d" % (A + 8 * s + 4, A + 8 * s + 7, A_OBR, s * 64))
    for s in range(4):
        g("s_waitcnt lgkmcnt(%d)" % (3 - s))
        g("v_mfma_f32_16x16x32_bf16 v[%d:%d], v[%d:%d], v[%d:%d], %s" % (T, T + 3, A + 8 * s, A + 8 * s + 3, A + 8 * s + 4, A + 8 * s + 7, "0" if s == 0 else "v[%d:%d]" % (T, T + 3)))
    tag4(g, T)
    store_n2(g, A_SP, T)
    if g.wbl2:
        sk = g.lab("NOWB")
        g("s_cmp_lg_u32 s%d, 0" % S_CW); g("s_cbranch_scc1 " + sk)
        if g.wbl2 == 1:
            g("s_cmp_lg_u32 s%d, 0" % S_I); g("s_cbranch_scc1 " + sk)
        g("buffer_wbl2 sc1")
        g(sk + ":")
    g.stamp(11)
    g("s_branch " + end)
    g(fin + ":")
    g("s_cmp_lg_u32 s%d, 0" % S_CW); g("s_cbranch_scc1 " + end)
    g("s_cmp_ge_u32 s%d, 28" % S_F); g("s_cbranch_scc1 " + end)
    g("global_load_ushort v11, v%d, s[%d:%d]" % (A_OUT, S_X, S_X + 1))
    g("v_add_u32 v4, %d, v%d" % (YP, A_PART))
    for k in range(4): g("v_mov_b32 v%d, 0" % (T + 12 + k))
    def ld4(last_mask):
        def f():
            for u in range(3): gld(g, T + 4 * u, 4, 1024 * u)
            if last_mask: g("s_mov_b32 exec_hi, 0")
            gld(g, T + 12, 4, 3072)
            if last_mask: g("s_mov_b64 exec, -1")
        return f
    def red32(dst):
        if not g.nostrip: strip(g, T, 16)
        for k in range(4):
            g("v_add_f32 v%d, v%d, v%d" % (T + k, T + k, T + 4 + k))
            g("v_add_f32 v%d, v%d, v%d" % (T + 8 + k, T + 8 + k, T + 12 + k))
        for k in range(4): g("v_add_f32 v%d, v%d, v%d" % (T + k, T + k, T + 8 + k))
        for k in range(4): g("v_add_f32_dpp v%d, v%d, v%d row_ror:8 row_mask:0xf bank_mask:0xf" % (T + k, T + k, T + k))
        T4(g, T)
        rnd_bf16(g, dst, T)
    poll(g, ld4(True), [T, T + 4, T + 8, T + 12], (g.sleep_y if g.defer_wd else g.sleep_mid), T + 16, masked_last=True)
    red32(10)
    g("v_mul_f32 v5, 0xbfb8aa3b, v10")
    g("v_exp_f32 v5, v5")
    g("v_add_f32 v5, 1.0, v5")
    g("v_rcp_f32 v5, v5")
    g("v_mul_f32 v10, v10, v5")
    rnd_bf16(g, 10, 10)
    g("v_lshlrev_b32 v11, 16, v11")
    g("v_add_u32 v4, %d, v%d" % (SP, A_PART))
    g("s_mov_b32 s42, 0x00ff00ff"); g("s_mov_b32 s43, 0x00ff00ff")
    if g.selfin:
        ld4(False)()
        poll_sel(g, [(T + 4 * u, (lambda u=u: gld(g, T + 4 * u, 4, 1024 * u))) for u in range(4)], g.sleep_fin, T + 16, count=True)
    else:
        poll(g, ld4(False), [T, T + 4, T + 8, T + 12], g.sleep_fin, T + 16, count=True)
    g.stamp(12)
    red32(5)
    g("v_mul_f32 v5, v5, v10")
    rnd_bf16(g, 5, 5)
    g("v_add_f32 v5, v5, v11")
    g("v_cvt_pk_bf16_f32 v5, v5, v5")
    g("s_mov_b64 exec, s[42:43]")
    g("global_store_short v%d, v5, s[%d:%d]" % (A_OUT, S_OUT, S_OUT + 1))
    g("s_mov_b64 exec, -1")
    g.stamp(11)
    g("s_cmp_lg_u32 s%d, 0" % S_F); g("s_cbranch_scc1 " + end)
    g("v_mov_b32 v4, 0"); g("v_mov_b32 v5, s%d" % S_E)
    g("s_mov_b64 exec, 1")
    g("global_store_dword v4, v5, s[%d:%d] sc1" % (S_WS, S_WS + 1))
    g("s_mov_b64 exec, -1")
    g(end + ":")
    if g.dbgclk:
        sk = g.lab("NODBG")
        g("s_cmp_lg_u32 s%d, 0" % S_CW); g("s_cbranch_scc1 " + sk)
        g("s_cmp_ge_u32 s%d, 8" % S_F); g("s_cbranch_scc1 " + sk)
        g("s_memtime s[64:65]"); g("s_memrealtime s[66:67]")
        g("s_load_dwordx2 s[100:101], s[0:1], 80")
        g("s_waitcnt lgkmcnt(0)")
        g("s_sub_u32 s64, s64, s96"); g("s_sub_u32 s66, s66, s98")
        g("s_lshl_b32 s41, s%d, 3" % S_F)
        g("v_mov_b32 v4, s41"); g("v_mov_b32 v6, s64"); g("v_mov_b32 v7, s66")
        g("s_mov_b64 exec, 1")
        g("global_store_dwordx2 v4, v[6:7], s[100:101]")
        g("s_mov_b64 exec, -1")
        g(sk + ":")
    if g.stamps: write_stamps(g)
    g("s_endpgm")

def diag_filter(g, lines):
    drop = getattr(g, "drop", None)
    if drop:
        out = []
        for l in lines:
            t = l.strip()
            if "cat=" in t and t.split("cat=")[1].strip() in drop: continue
            if t.startswith("v_cmp_ne_u32 vcc, 0,"):
                out.append("  s_mov_b64 vcc, 0"); continue
            out.append(l)
        return out
    if not getattr(g, "nomem", 0): return lines
    out = []; incomp = False
    for l in lines:
        if l.startswith("L_compute:"): incomp = True
        t = l.strip()
        if incomp and (t.startswith("global_load_dwordx4") and "sc1" in t):
            if g.nomem & 1: continue
        if incomp and t.startswith("global_store") and ("s[24:25]" in t) and "v100" not in t and "v[104:107]" not in t:
            if g.nomem & 2: continue
        if incomp and (g.nomem & 1) and t.startswith("v_cmp_ne_u32 vcc, 0,"):
            out.append("  s_mov_b64 vcc, 0"); continue
        out.append(l)
    return out


DOC = """; ---------------------------------------------------------------------------------------------
;   Stores are write-through (sc1) and loads bypass L1 (sc1); only when a run-time check
; ---------------------------------------------------------------------------------------------
"""

def build(**kw):
    g = G(**kw)
    g("s_cmp_ge_u32 s2, 256")
    g("s_cbranch_scc1 L_exit")
    g.stamp(0)
    if g.dbgclk:
        g("s_memtime s[96:97]"); g("s_memrealtime s[98:99]")
    g("s_load_dwordx8 s[4:11], s[0:1], 0")
    g("s_load_dwordx2 s[12:13], s[0:1], 32")
    g("s_load_dwordx4 s[16:19], s[0:1], 48")
    g("s_load_dwordx4 s[20:23], s[0:1], 64")
    g("s_load_dwordx2 s[24:25], s[0:1], 88")
    g("v_lshrrev_b32 v1, 6, v0")
    g("v_and_b32 v0, 63, v0")
    g("s_and_b32 s%d, s2, 7" % S_KVH)
    g("v_readfirstlane_b32 s%d, v1" % S_WAVE)
    g("s_lshr_b32 s%d, s2, 3" % S_I)
    g("s_lshr_b32 s%d, s%d, 4" % (S_B, S_I))
    g("s_and_b32 s%d, s%d, 15" % (S_J, S_I))
    g("s_cmp_lt_u32 s%d, 28" % S_I)
    g("s_cselect_b32 s%d, 14, 0" % S_G)
    g("s_cselect_b32 s%d, 16, 0" % S_O)
    g("s_cselect_b32 s%d, 8, 0" % S_D)
    g("s_cmp_lt_u32 s%d, 7" % S_KVH)
    g("s_cselect_b32 s%d, s%d, 0" % (S_D, S_D))
    if g.evenodd:
        g("s_bitcmp1_b32 s2, 0")
        g("s_cselect_b32 s%d, 0, s%d" % (S_G, S_G))
        g("s_mov_b32 s%d, s%d" % (S_G2, S_G))
    else:
        g("s_mov_b32 s%d, 0" % S_G2)
    g("s_add_u32 s%d, s%d, 14" % (S_BK, S_G))
    if g.defer_wd: g("s_mov_b32 s%d, s%d" % (S_BV, S_BK))
    else: g("s_add_u32 s%d, s%d, s%d" % (S_BV, S_BK, S_D))
    g("s_add_u32 s%d, s%d, s%d" % (S_BV, S_BV, S_G2))
    g("s_add_u32 s%d, s%d, 128" % (S_BV, S_BV))
    g("s_mul_i32 s%d, s%d, 37" % (S_RBL, S_I))
    g("s_lshr_b32 s%d, s%d, 8" % (S_RBL, S_RBL))
    g("s_mul_i32 s41, s%d, 7" % S_RBL)
    g("s_sub_u32 s%d, s%d, s41" % (S_CB, S_I))
    g("s_lshl_b32 s%d, s%d, 2" % (S_F, S_KVH))
    g("s_add_u32 s%d, s%d, s%d" % (S_F, S_F, S_I))
    g("s_sub_u32 s%d, s%d, 28" % (S_F, S_F))
    g("s_mov_b32 s%d, %d" % (S_BUD, 1 << 21))
    g("s_mov_b32 s%d, 0xC0000000" % S_LAND)
    if g.stamps:
        for k in range(1, 16): g("s_mov_b64 s[%d:%d], 0" % (64 + 2 * k, 65 + 2 * k))
    g("s_cmp_eq_u32 s%d, 0" % S_WAVE)
    g("s_cbranch_scc0 L_compute")
    loader(g)
    g("L_compute:")
    compute(g)
    g("L_exit:")
    g("s_endpgm")
    lines = hz.fix(diag_filter(g, g.l))
    name = KN + "_kernel"
    s = HDR + "; @launch grid=(256,1,1) block=(320,1,1) lds=%d\n" % LDS_BYTES
    s += DOC
    s += '.amdgcn_target "amdgcn-amd-amdhsa--gfx950"\n.text\n.globl %s\n.p2align 8\n.type %s,@function\n%s:\n' % (name, name, name)
    s += "\n".join(lines) + "\n"
    s += '.section .rodata,"a"\n.p2align 6\n.amdhsa_kernel %s\n' % name
    s += "  .amdhsa_next_free_vgpr 256\n  .amdhsa_next_free_sgpr 102\n  .amdhsa_accum_offset 256\n"
    s += "  .amdhsa_group_segment_fixed_size 0\n  .amdhsa_kernarg_size 96\n  .amdhsa_user_sgpr_count 2\n"
    s += "  .amdhsa_user_sgpr_kernarg_segment_ptr 1\n  .amdhsa_system_sgpr_workgroup_id_x 1\n"
    s += "  .amdhsa_float_denorm_mode_32 3\n"
    s += ".end_amdhsa_kernel\n"
    return s

if __name__ == "__main__":
    ap = argparse.ArgumentParser()
    ap.add_argument("-o", default="k.s")
    ap.add_argument("--stamps", action="store_true")
    ap.add_argument("--set", action="append", default=[])
    a = ap.parse_args()
    kw = {x.split("=")[0]: (int(x.split("=")[1]) if x.split("=")[1].lstrip("-").isdigit() else x.split("=")[1].split(",")) for x in a.set}
    open(a.o, "w").write(build(stamps=a.stamps, **kw))
```

```python
import sys, argparse
from asmlib import HDR, KN
import hz

KV = 0
AUX = 131072
WQ_T = 0; GU_T = 14336; WD_T = 0; WO_T = 8192
MISC = 159744
XN = MISC; PB = MISC
QB = MISC + 1792; OB = QB
HB = MISC + 2816
WM = MISC + 3072; WL = MISC + 3104
PROG = MISC + 3136
LAND = MISC + 3200
JUNK = MISC + 3456
LDS_BYTES = 163840
QP = 0x1000; GP = 0x21000; ST = 0x3D000; XC = 0x3F000; YP = 0x40000; SP = 0x60000; OP = 0x80000
STAMP = 512 << 20
TAGMASK = 0x3FF; TAGMID = 0x200

S_X, S_K, S_V, S_WQ, S_WO, S_WG, S_WU, S_WD, S_OUT, S_WS = 4, 6, 8, 10, 12, 16, 18, 20, 22, 24
S_KVH, S_I, S_B, S_J, S_WAVE, S_CW = 26, 27, 28, 29, 30, 31
S_E = 32
S_G, S_D, S_O = 34, 35, 36
S_BK, S_BV = 37, 38
S_MASK = 39; S_BUD = 40
S_RBL, S_CB, S_F, S_XCC = 50, 51, 52, 53
S_EX = 54
S_C = 56; S_HI = 57; S_FAST = 59; S_LAND = 60
S_THR, S_CNT = 61, 62
S_GFB, S_GSL, S_DFB, S_DCB = 14, 15, 3, 96
S_G2 = 58
V_N, V_KG = 1, 2
V_T = 12
V_MID, V_PW, V_PR, V_LR, V_TR, V_F = 16, 17, 18, 19, 20, 21
T = 24
V_ST = 40
V_G = 44
V_C = 52
V_X = 56
V_W = 60
V_Q = 64
V_S = 96
V_ACC = 112
V_K = 128
A_PUB, A_G0, A_OBW, A_OBR, A_SP, A_STA, A_OUT, A_PART, A_YP, A_HB = 128, 129, 133, 134, 135, 136, 137, 138, 139, 140

class G:
    def __init__(self, **kw):
        self.l = []; self.n = 0
        self.W = 16; self.stamps = False; self.sleep_mid = 8; self.sleep_tail = 2; self.sleep_fin = 0
        self.fast = 1; self.stat_at = 12; self.q_issue_at = 2; self.dbgspan = 0; self.lastbar = 1; self.ffnlocal = 1; self.Wmid = 0; self.dbgclk = 0; self.WK = 40; self.selfin = 1; self.evenodd = 0; self.defer_wd = 0; self.sleep_y = 2; self.wbl2 = 0; self.ldpre = -1; self.selpoll = 1; self.sleep_lds = 0; self.nostrip = 0
        for k, v in kw.items(): setattr(self, k, v)
    def __call__(self, s):
        for x in s.split("\n"):
            x = x.strip()
            if x.startswith("global_") and getattr(self, "cat", None): x += " ; cat=" + self.cat
            self.l.append(x if x.endswith(":") else "  " + x)
    def lab(self, b="L"):
        self.n += 1; return "%s_%d" % (b, self.n)
    def c(self, s): self.l.append("  ; " + s)
    def stamp(self, k):
        if self.stamps and (not getattr(self, "light", 0) or k in (0, 3, 9, 11)):
            self("s_memrealtime s[%d:%d]" % (64 + 2 * k, 65 + 2 * k))

def budget_exit(g, lab):
    g("s_cmp_eq_u32 s%d, 0" % S_BUD)
    g("s_cbranch_scc1 %s" % lab)
    g("s_sub_u32 s%d, s%d, 1" % (S_BUD, S_BUD))

def write_stamps(g):
    g("s_waitcnt lgkmcnt(0)")
    g("s_mul_i32 s41, s2, 5")
    g("s_add_u32 s41, s41, s%d" % S_WAVE)
    g("s_lshl_b32 s41, s41, 7")
    g("s_add_u32 s41, s41, %d" % STAMP)
    g("v_mov_b32 v100, s41")
    for q in range(8):
        for k in range(4): g("v_mov_b32 v%d, s%d" % (104 + k, 64 + 4 * q + k))
        g("s_mov_b64 exec, 1")
        g("global_store_dwordx4 v100, v[104:107], s[%d:%d] offset:%d" % (S_WS, S_WS + 1, 16 * q))
        g("s_mov_b64 exec, -1")
        g("s_nop 1")

def loader(g):
    W = g.W
    g.c("================= loader wave =================")
    g("s_setprio 3")
    g("v_lshlrev_b32 v16, 2, v0")
    g("v_add_u32 v16, %d, v16" % LAND)
    g("v_mov_b32 v5, 0xC0000000")
    g("ds_write_b32 v16, v5")
    g("v_mov_b32 v17, %d" % PROG)
    g("v_mov_b32 v6, 0"); g("v_mov_b32 v7, 0"); g("v_mov_b32 v8, 0"); g("v_mov_b32 v9, 0")
    g("ds_write_b128 v17, v[6:9]")
    g("v_lshrrev_b32 v2, 3, v0")
    g("v_and_b32 v3, 7, v0")
    g("v_lshrrev_b32 v4, 4, v0")
    g("v_lshlrev_b32 v4, 1, v4")
    g("v_xor_b32 v3, v3, v4")
    g("v_lshlrev_b32 v3, 4, v3")
    g("v_lshl_add_u32 v5, v2, 13, v3")
    g("s_lshr_b32 s41, s%d, 3" % S_I)
    g("s_mul_i32 s41, s41, %d" % (112 * 8192))
    g("s_lshl_b32 s42, s%d, 10" % S_KVH)
    g("s_add_u32 s41, s41, s42")
    g("s_and_b32 s42, s%d, 7" % S_I)
    g("s_lshl_b32 s42, s42, 7")
    g("s_add_u32 s41, s41, s42")
    g("s_mov_b32 m0, %d" % (AUX + WQ_T))
    g("s_mov_b32 s46, 14")
    g("s_waitcnt lgkmcnt(0)")
    g("s_add_u32 s44, s%d, s41" % S_WQ)
    g("s_addc_u32 s45, s%d, 0" % (S_WQ + 1))
    lp = g.lab("WQ")
    g(lp + ":")
    g("global_load_lds_dwordx4 v5, s[44:45] nt")
    g("s_add_u32 s44, s44, 65536")
    g("s_addc_u32 s45, s45, 0")
    g("s_add_u32 m0, m0, 1024")
    g("s_sub_u32 s46, s46, 1")
    g("s_cmp_lg_u32 s46, 0")
    g("s_cbranch_scc1 " + lp)
    g("s_barrier")
    g("v_mul_u32_u24 v6, 3584, v2")
    g("v_add_u32 v6, v6, v3")
    g("v_mul_u32_u24 v7, 896, v2")
    g("v_add_u32 v7, v7, v3")
    sk = g.lab("NOGU")
    g("s_cmp_eq_u32 s%d, 0" % S_G)
    g("s_cbranch_scc1 " + sk)
    g("s_and_b32 s41, s%d, 1" % S_GSL)
    g("s_cmp_eq_u32 s41, 0")
    g("s_cselect_b32 s44, s%d, s%d" % (S_WG, S_WU))
    g("s_cselect_b32 s45, s%d, s%d" % (S_WG + 1, S_WU + 1))
    g("s_lshr_b32 s41, s%d, 1" % S_GSL)
    g("s_mul_i32 s41, s41, %d" % (112 * 3584))
    g("s_lshl_b32 s42, s%d, 7" % S_GFB)
    g("s_add_u32 s41, s41, s42")
    g("s_add_u32 s44, s44, s41")
    g("s_addc_u32 s45, s45, 0")
    g("s_mov_b32 m0, %d" % (AUX + GU_T))
    g("s_mov_b32 s46, 14")
    lp = g.lab("GU")
    g(lp + ":")
    g("global_load_lds_dwordx4 v6, s[44:45] nt")
    g("s_add_u32 s44, s44, %d" % (8 * 3584))
    g("s_addc_u32 s45, s45, 0")
    g("s_add_u32 m0, m0, 1024")
    g("s_sub_u32 s46, s46, 1")
    g("s_cmp_lg_u32 s46, 0")
    g("s_cbranch_scc1 " + lp)
    g(sk + ":")
    g("v_lshrrev_b32 v8, 5, v0")
    g("v_and_b32 v9, 31, v0")
    g("v_lshlrev_b32 v10, 1, v8")
    g("v_xor_b32 v9, v9, v10")
    g("v_lshlrev_b32 v9, 4, v9")
    g("v_lshlrev_b32 v8, 9, v8")
    for u in range(4):
        g("v_xor_b32 v%d, %d, v9" % (12 + u, u * 64))
        g("v_add_u32 v%d, v%d, v8" % (12 + u, 12 + u))
    g("s_lshl_b32 s41, s%d, 3" % S_B)
    g("s_add_u32 s41, s41, s%d" % S_KVH)
    g("s_lshl_b32 s41, s41, 24")
    g("s_add_u32 s41, s41, %d" % (28672 * 512))
    g("s_lshl_b32 s42, s%d, 13" % S_J)
    g("s_add_u32 s41, s41, s42")
    g("s_add_u32 s44, s%d, s41" % S_K)
    g("s_addc_u32 s45, s%d, 0" % (S_K + 1))
    g("s_add_u32 s48, s%d, s41" % S_V)
    g("s_addc_u32 s49, s%d, 0" % (S_V + 1))
    g("s_add_u32 s47, s%d, 14" % S_G)
    g("s_mov_b32 m0, %d" % KV)
    def tile(sb, mid=None):
        for u in range(8):
            if u == 4:
                g("s_add_u32 s%d, s%d, 4096" % (sb, sb)); g("s_addc_u32 s%d, s%d, 0" % (sb + 1, sb + 1)); g("s_add_u32 m0, m0, 4096"); g("s_nop 0")
                if mid is not None: g("s_waitcnt vmcnt(%d)" % mid)
            g("global_load_lds_dwordx4 v%d, s[%d:%d] offset:%d nt" % (12 + (u & 3), sb, sb + 1, (u & 3) * 1024))
        g("s_add_u32 s%d, s%d, %d" % (sb, sb, 131072 - 4096)); g("s_addc_u32 s%d, s%d, 0" % (sb + 1, sb + 1)); g("s_add_u32 m0, m0, 4096")
        g("s_add_u32 s47, s47, 8")
    def flag(n):
        g("s_waitcnt vmcnt(%d)" % n)
        g("s_sub_u32 s46, s47, %d" % n)
        g("v_mov_b32 v18, s46")
        g("ds_write_b32 v16, v18")
    tile(44)
    has = g.lab("HASGU"); j2 = g.lab("J")
    g("s_cmp_eq_u32 s%d, 0" % S_G)
    g("s_cbranch_scc0 " + has)
    flag(8)
    tile(44)
    g("s_branch " + j2)
    g(has + ":")
    flag(22)
    tile(44)
    flag(16)
    g(j2 + ":")
    def kloop(n):
        lp = g.lab("KL")
        g("s_mov_b32 s43, %d" % n)
        g(lp + ":")
        tile(44)
        flag(g.WK or W)
        g("s_sub_u32 s43, s43, 1")
        g("s_cmp_lg_u32 s43, 0")
        g("s_cbranch_scc1 " + lp)
    def wait_prog(sthr):
        lp = g.lab("WP"); ex = g.lab("WPX")
        g("s_cmp_ge_i32 s%d, %s" % (S_LAND, sthr))
        g("s_cbranch_scc1 " + ex)
        g(lp + ":")
        g("ds_read_b128 v[20:23], v17")
        g("s_waitcnt lgkmcnt(0)")
        g("v_min3_i32 v20, v20, v21, v22")
        g("v_min_i32 v20, v20, v23")
        g("v_readfirstlane_b32 s%d, v20" % S_LAND)
        g("s_cmp_ge_i32 s%d, %s" % (S_LAND, sthr))
        g("s_cbranch_scc1 " + ex)
        budget_exit(g, ex)
        g("s_branch " + lp)
        g(ex + ":")
    kloop(6)
    sk = g.lab("NOG2")
    g("s_cmp_eq_u32 s%d, 0" % S_G2)
    g("s_cbranch_scc1 " + sk)
    wait_prog("1")
    g("s_mov_b32 s42, m0")
    g("s_lshr_b32 s41, s%d, 1" % S_KVH)
    g("s_mul_i32 s41, s41, %d" % (112 * 3584))
    g("s_lshl_b32 s46, s%d, 7" % S_I)
    g("s_add_u32 s41, s41, s46")
    g("s_add_u32 s62, s%d, s41" % S_WU)
    g("s_addc_u32 s63, s%d, 0" % (S_WU + 1))
    g("s_mov_b32 m0, %d" % (AUX + WQ_T))
    g("s_mov_b32 s46, 14")
    lp = g.lab("G2")
    g(lp + ":")
    g("global_load_lds_dwordx4 v6, s[62:63] nt")
    g("s_add_u32 s62, s62, %d" % (8 * 3584))
    g("s_addc_u32 s63, s63, 0")
    g("s_add_u32 m0, m0, 1024")
    g("s_sub_u32 s46, s46, 1")
    g("s_cmp_lg_u32 s46, 0")
    g("s_cbranch_scc1 " + lp)
    g("s_mov_b32 m0, s42")
    g("s_add_u32 s47, s47, 14")
    flag(W)
    g(sk + ":")
    kloop(8)
    g.stamp(1)
    def rows896(n, ptr, lds):
        g("s_add_u32 s62, s%d, s41" % ptr)
        g("s_addc_u32 s63, s%d, 0" % (ptr + 1))
        g("s_mov_b32 m0, %d" % lds)
        g("s_mov_b32 s46, %d" % n)
        lp = g.lab("RW")
        g(lp + ":")
        g("global_load_lds_dwordx4 v7, s[62:63] nt")
        g("s_add_u32 s62, s62, 7168")
        g("s_addc_u32 s63, s63, 0")
        g("s_add_u32 m0, m0, 1024")
        g("s_sub_u32 s46, s46, 1")
        g("s_cmp_lg_u32 s46, 0")
        g("s_cbranch_scc1 " + lp)
        g("s_add_u32 s47, s47, %d" % n)
    def wd_tile():
        g("s_mul_i32 s41, s%d, %d" % (S_DFB, 64 * 896))
        g("s_lshl_b32 s42, s%d, 7" % S_DCB)
        g("s_add_u32 s41, s41, s42")
        rows896(8, S_WD, AUX + WD_T)
    if not g.defer_wd:
        sk = g.lab("NOWD")
        g("s_cmp_eq_u32 s%d, 0" % S_D)
        g("s_cbranch_scc1 " + sk)
        wait_prog("4")
        wd_tile()
        flag(W)
        g(sk + ":")
    g("s_mov_b32 m0, %d" % KV)
    lp = g.lab("VL")
    g("s_mov_b32 s43, 0")
    g(lp + ":")
    g("s_lshr_b32 s41, s43, 2")
    g("s_lshr_b32 s42, s43, 3")
    g("s_add_u32 s41, s41, s42")
    g("s_add_u32 s41, s41, 2")
    wait_prog("s41")
    tile(48, g.Wmid if g.Wmid else None)
    if g.ldpre >= 0:
        sk = g.lab("NPT")
        g("s_cmp_lg_u32 s43, %d" % g.ldpre)
        g("s_cbranch_scc1 " + sk)
        g("s_lshl_b32 s41, s%d, 1" % S_KVH); g("s_add_u32 s41, s41, s%d" % S_B); g("s_lshl_b32 s41, s41, 4"); g("s_add_u32 s41, s41, s%d" % S_J)
        g("s_lshl_b32 s41, s41, 11"); g("s_add_u32 s41, s41, %d" % OP)
        g("v_lshlrev_b32 v19, 4, v0"); g("v_add_u32 v19, s41, v19")
        g("global_load_dwordx4 v[24:27], v19, s[%d:%d]" % (S_WS, S_WS + 1))
        g("global_load_dwordx4 v[28:31], v19, s[%d:%d] offset:1024" % (S_WS, S_WS + 1))
        g(sk + ":")
    flag(W)
    g("s_add_u32 s43, s43, 1")
    g("s_cmp_lg_u32 s43, 16")
    g("s_cbranch_scc1 " + lp)
    g.stamp(2)
    sk = g.lab("NOWO"); dn = g.lab("LDONE"); nod = g.lab("NODW")
    last = 8 if g.lastbar else 0
    def wo_tile():
        g("s_lshl_b32 s41, s%d, 2" % S_KVH)
        g("s_add_u32 s41, s41, s%d" % S_RBL)
        g("s_mul_i32 s41, s41, %d" % (128 * 896))
        g("s_lshl_b32 s42, s%d, 7" % S_CB)
        g("s_add_u32 s41, s41, s42")
        rows896(16, S_WO, AUX + WO_T)
    def drain(extra):
        n = W - 8 + extra
        while n > extra + last:
            flag(n); n -= 8
        flag(extra + last)
        if g.lastbar:
            g("s_waitcnt vmcnt(%d)" % extra)
            g("s_barrier")
    g("s_cmp_eq_u32 s%d, 0" % S_O)
    g("s_cbranch_scc1 " + sk)
    if g.defer_wd:
        g("s_cmp_eq_u32 s%d, 0" % S_D)
        g("s_cbranch_scc1 " + nod)
        wd_tile()
        wo_tile()
        drain(24)
        flag(16)
        flag(0)
        g("s_branch " + dn)
        g(nod + ":")
    wo_tile()
    drain(16)
    flag(0)
    g("s_branch " + dn)
    g(sk + ":")
    drain(0)
    g(dn + ":")
    g.stamp(3)
    g("s_waitcnt lgkmcnt(0)")
    if g.stamps: write_stamps(g)
    g("s_endpgm")

def wait_landed(g, sthr):
    lp = g.lab("WL"); ex = g.lab("WLX")
    g("s_cmp_ge_i32 s%d, %s" % (S_LAND, sthr))
    g("s_cbranch_scc1 " + ex)
    g(lp + ":")
    g("ds_read_b32 v%d, v%d" % (V_F, V_LR))
    g("s_waitcnt lgkmcnt(0)")
    g("v_readfirstlane_b32 s%d, v%d" % (S_LAND, V_F))
    g("s_cmp_ge_i32 s%d, %s" % (S_LAND, sthr))
    g("s_cbranch_scc1 " + ex)
    budget_exit(g, ex)
    if g.sleep_lds: g("s_sleep %d" % g.sleep_lds)
    g("s_branch " + lp)
    g(ex + ":")
def prog_set(g, val):
    g("v_mov_b32 v%d, %s" % (V_F, val))
    g("ds_write_b32 v%d, v%d" % (V_PW, V_F))
def wait_prog_c(g, val):
    lp = g.lab("WP"); ex = g.lab("WPX")
    t = V_W
    g(lp + ":")
    g("ds_read_b128 v[%d:%d], v%d" % (t, t + 3, V_PR))
    g("s_waitcnt lgkmcnt(0)")
    g("v_min3_i32 v%d, v%d, v%d, v%d" % (t, t, t + 1, t + 2))
    g("v_min_i32 v%d, v%d, v%d" % (t, t, t + 3))
    g("v_cmp_gt_i32 vcc, %s, v%d" % (val, t))
    g("s_cbranch_vccz " + ex)
    budget_exit(g, ex)
    g("s_branch " + lp)
    g(ex + ":")
def tag4(g, r):
    for k in range(4): g("v_bfi_b32 v%d, s%d, v%d, v%d" % (r + k, S_MASK, V_T + k, r + k))
def strip(g, r, n):
    for k in range(n): g("v_bfi_b32 v%d, s%d, v%d, v%d" % (r + k, S_MASK, V_MID, r + k))
def poll(g, emit_loads, regs, sleep, acc, masked_last=False, pre=False, count=False):
    lp = g.lab("PL"); ex = g.lab("PX"); ck = g.lab("PC")
    if count and g.stamps and not getattr(g, 'light', 0): g("s_mov_b32 s63, 0")
    if pre: g("s_branch " + ck)
    g(lp + ":")
    emit_loads()
    g(ck + ":")
    g("s_waitcnt vmcnt(0)")
    if count and g.stamps and not getattr(g, 'light', 0): g("s_add_u32 s63, s63, 1")
    first = True
    for idx, r in enumerate(regs):
        if masked_last and idx == len(regs) - 1: g("s_mov_b32 exec_hi, 0")
        for k in range(4):
            if first:
                g("v_xor_b32 v%d, v%d, v%d" % (acc, r + k, V_T + k)); first = False
            else:
                g("v_bitop3_b32 v%d, v%d, v%d, v%d bitop3:0xBE" % (acc, r + k, V_T + k, acc))
    if masked_last: g("s_mov_b64 exec, -1")
    g("v_and_b32 v%d, s%d, v%d" % (acc, S_MASK, acc))
    g("v_cmp_ne_u32 vcc, 0, v%d" % acc)
    g("s_cbranch_vccz " + ex)
    budget_exit(g, ex)
    if sleep: g("s_sleep %d" % sleep)
    g("s_branch " + lp)
    g(ex + ":")
    if count and g.stamps and not getattr(g, 'light', 0):
        g("s_waitcnt lgkmcnt(0)")
        g("s_mul_i32 s94, s63, 100"); g("s_add_u32 s94, s94, s64"); g("s_addc_u32 s95, s65, 0")
def poll_sel(g, loads, sleep, acc, count=False, first_allow=0):
    lp = g.lab("QL"); ex = g.lab("QX")
    if count and g.stamps and not getattr(g, 'light', 0): g("s_mov_b32 s63, 0")
    if first_allow:
        ck = g.lab("QC")
        g("s_cmp_eq_u32 s%d, 0" % S_D)
        g("s_cbranch_scc1 " + lp)
        g("s_waitcnt vmcnt(%d)" % first_allow)
        g("s_branch " + ck)
    g(lp + ":")
    g("s_waitcnt vmcnt(0)")
    if first_allow: g(ck + ":")
    if count and g.stamps and not getattr(g, 'light', 0): g("s_add_u32 s63, s63, 1")
    for u, (r, emit) in enumerate(loads):
        g("v_xor_b32 v%d, v%d, v%d" % (acc + u, r, V_T))
        for k in range(1, 4): g("v_bitop3_b32 v%d, v%d, v%d, v%d bitop3:0xBE" % (acc + u, r + k, V_T + k, acc + u))
    g("v_or3_b32 v%d, v%d, v%d, v%d" % (V_F, acc, acc + 1, acc + 2))
    g("v_or_b32 v%d, v%d, v%d" % (V_F, V_F, acc + 3))
    g("v_and_b32 v%d, s%d, v%d" % (V_F, S_MASK, V_F))
    g("v_cmp_ne_u32 vcc, 0, v%d" % V_F)
    g("s_cbranch_vccz " + ex)
    g("s_mov_b32 s46, 0")
    for u, (r, emit) in enumerate(loads):
        g("v_and_b32 v%d, s%d, v%d" % (acc + u, S_MASK, acc + u))
        g("v_cmp_ne_u32 vcc, 0, v%d" % (acc + u))
        g("s_cmp_lg_u64 vcc, 0")
        g("s_cselect_b32 s47, %d, 0" % (1 << u))
        g("s_or_b32 s46, s46, s47")
    budget_exit(g, ex)
    if sleep: g("s_sleep %d" % sleep)
    for u, (r, emit) in enumerate(loads):
        sk = g.lab("QS")
        g("s_bitcmp1_b32 s46, %d" % u)
        g("s_cbranch_scc0 " + sk)
        emit()
        g(sk + ":")
    g("s_branch " + lp)
    g(ex + ":")
    if count and g.stamps and not getattr(g, 'light', 0):
        g("s_waitcnt lgkmcnt(0)")
        g("s_mul_i32 s94, s63, 100"); g("s_add_u32 s94, s94, s64"); g("s_addc_u32 s95, s65, 0")
def T4(g, r):
    g("v_permlane16_swap_b32 v%d, v%d" % (r, r + 1))
    g("v_permlane16_swap_b32 v%d, v%d" % (r + 2, r + 3))
    g("v_add_f32 v%d, v%d, v%d" % (r, r, r + 1))
    g("v_add_f32 v%d, v%d, v%d" % (r + 2, r + 2, r + 3))
    g("v_permlane32_swap_b32 v%d, v%d" % (r, r + 2))
    g("v_add_f32 v%d, v%d, v%d" % (r, r, r + 2))
def rnd_bf16(g, dst, src):
    g("v_cvt_pk_bf16_f32 v%d, v%d, v%d" % (dst, src, src))
    g("v_and_b32 v%d, s%d, v%d" % (dst, S_HI, dst))
def allreduce16(g, op, regs):
    for sh in (8, 4, 2, 1):
        for r in regs: g("%s_dpp v%d, v%d, v%d row_ror:%d row_mask:0xf bank_mask:0xf" % (op, r, r, r, sh))
def xrow(g, op, regs, tmp):
    for w in (16, 32):
        for i, r in enumerate(regs): g("v_mov_b32 v%d, v%d" % (tmp + i, r))
        for i, r in enumerate(regs): g("v_permlane%d_swap_b32 v%d, v%d" % (w, r, tmp + i))
        for i, r in enumerate(regs): g("%s v%d, v%d, v%d" % (op, r, r, tmp + i))
def thin_tile16(g, nsteps, tr_off, vb, acc, tmp):
    for s in range(nsteps):
        g("ds_read_b64_tr_b16 v[%d:%d], v%d offset:%d" % (tmp + 4 * s, tmp + 4 * s + 1, V_TR, tr_off + s * 2048))
        g("ds_read_b64 v[%d:%d], v%d offset:%d" % (tmp + 4 * s + 2, tmp + 4 * s + 3, vb, s * 32))
    for s in range(nsteps):
        g("s_waitcnt lgkmcnt(%d)" % (2 * (nsteps - 1 - s)))
        g("v_mfma_f32_16x16x16_bf16 v[%d:%d], v[%d:%d], v[%d:%d], %s" % (acc, acc + 3, tmp + 4 * s, tmp + 4 * s + 1, tmp + 4 * s + 2, tmp + 4 * s + 3, "0" if s == 0 else "v[%d:%d]" % (acc, acc + 3)))
def store_n2(g, vaddr, r):
    g("s_mov_b64 exec, s[%d:%d]" % (S_EX, S_EX + 1))
    g("global_store_dwordx4 v%d, v[%d:%d], s[%d:%d] sc1" % (vaddr, r, r + 3, S_WS, S_WS + 1))
    g("s_mov_b64 exec, -1")
def gld(g, dst, vaddr, off=0, flags="sc1"):
    g("global_load_dwordx4 v[%d:%d], v%d, s[%d:%d]%s %s" % (dst, dst + 3, vaddr, S_WS, S_WS + 1, (" offset:%d" % off) if off else "", flags))
def part_addr(g, dst, base, s_cb, s_row):
    g("s_lshl_b32 s41, s%d, 14" % s_cb)
    g("s_lshr_b32 s42, s%d, 1" % S_CW); g("s_lshl_b32 s42, s42, 12"); g("s_add_u32 s41, s41, s42")
    g("s_lshl_b32 s42, s%d, 7" % s_row); g("s_add_u32 s41, s41, s42")
    g("s_and_b32 s42, s%d, 1" % S_CW); g("s_lshl_b32 s42, s42, 6"); g("s_add_u32 s41, s41, s42")
    g("s_add_u32 s41, s41, %d" % base)
    g("v_lshlrev_b32 v%d, 13, v%d" % (dst, V_N))
    g("v_lshl_add_u32 v%d, v%d, 4, v%d" % (dst, V_KG, dst))
    g("v_add_u32 v%d, s41, v%d" % (dst, dst))

def compute(g):
    g.c("================= compute waves =================")
    if getattr(g, "loaderonly", 0):
        g("s_waitcnt lgkmcnt(0)")
        g("s_barrier")
        g("v_mov_b32 v4, %d" % PROG); g("v_mov_b32 v8, 100"); g("v_mov_b32 v9, 100"); g("v_mov_b32 v10, 100"); g("v_mov_b32 v11, 100")
        g("ds_write_b128 v4, v[8:11]")
        g("s_waitcnt lgkmcnt(0)")
        if g.lastbar: g("s_barrier")
        if g.stamps: write_stamps(g)
        g("s_endpgm")
        return
    g("s_sub_u32 s%d, s%d, 1" % (S_CW, S_WAVE))
    g("v_min_u32 v3, 55, v0")
    g("v_lshlrev_b32 v3, 4, v3")
    g("v_and_b32 v%d, 15, v0" % V_N)
    g("v_lshrrev_b32 v%d, 4, v0" % V_KG)
    g("s_mov_b32 s%d, %d" % (S_MASK, TAGMASK))
    g("s_mov_b32 s%d, 0xffff0000" % S_HI)
    g("s_mov_b32 s%d, 0x00030003" % S_EX); g("s_mov_b32 s%d, 0x00030003" % (S_EX + 1))
    g("s_mov_b32 s%d, 0x3db8aa3b" % S_C)
    g("s_waitcnt lgkmcnt(0)")
    g("global_load_dwordx4 v[%d:%d], v3, s[%d:%d]" % (T, T + 3, S_X, S_X + 1))
    g("global_load_dwordx4 v[%d:%d], v3, s[%d:%d] offset:896" % (T + 4, T + 7, S_X, S_X + 1))
    g("s_load_dwordx2 s[%d:%d], s[%d:%d], 0" % (S_E, S_E + 1, S_WS, S_WS + 1))
    g("v_mov_b32 v%d, %d" % (V_MID, TAGMID))
    g("v_mov_b32 v%d, %d" % (V_PR, PROG))
    g("v_mov_b32 v%d, %d" % (V_LR, LAND))
    g("v_lshlrev_b32 v4, 2, v0")
    g("v_add_u32 v4, %d, v4" % JUNK)
    g("s_lshl_b32 s41, s%d, 2" % S_CW)
    g("s_add_u32 s41, s41, %d" % PROG)
    g("v_mov_b32 v5, s41")
    g("v_cmp_eq_u32 vcc, 0, v0")
    g("v_cndmask_b32 v%d, v4, v5, vcc" % V_PW)
    g("v_lshrrev_b32 v4, 2, v%d" % V_N)
    g("v_lshl_add_u32 v4, v%d, 2, v4" % V_KG)
    g("v_lshrrev_b32 v5, 1, v4")
    g("v_and_b32 v5, 3, v5")
    g("v_xor_b32 v5, s%d, v5" % S_CW)
    g("v_lshlrev_b32 v5, 5, v5")
    g("v_lshl_add_u32 v5, v4, 7, v5")
    g("v_and_b32 v6, 3, v%d" % V_N)
    g("v_lshl_add_u32 v5, v6, 3, v5")
    g("v_add_u32 v%d, %d, v5" % (V_TR, AUX))
    g("s_barrier")
    g.stamp(1)
    g.c("layernorm")
    F = T + 8
    g("v_cmp_gt_u32 vcc, 56, v0")
    g("s_waitcnt vmcnt(0)")
    for k in range(8): g("v_cndmask_b32 v%d, 0, v%d, vcc" % (T + k, T + k))
    for b in range(2):
        for k in range(4):
            g("v_lshlrev_b32 v%d, 16, v%d" % (F + 8 * b + 2 * k, T + 4 * b + k))
            g("v_and_b32 v%d, s%d, v%d" % (F + 8 * b + 2 * k + 1, S_HI, T + 4 * b + k))
    SUM = T + 24
    for b in range(2):
        f = F + 8 * b
        g("v_add_f32 v%d, v%d, v%d" % (SUM + b, f, f + 1))
        for k in range(2, 8): g("v_add_f32 v%d, v%d, v%d" % (SUM + b, SUM + b, f + k))
    allreduce16(g, "v_add_f32", [SUM, SUM + 1])
    xrow(g, "v_add_f32", [SUM, SUM + 1], SUM + 2)
    g("v_mov_b32 v4, 0x3b124925")
    for b in range(2): g("v_mul_f32 v%d, v%d, v4" % (SUM + b, SUM + b))
    VAR = T + 28
    for b in range(2):
        f = F + 8 * b
        for k in range(8):
            g("v_sub_f32 v5, v%d, v%d" % (f + k, SUM + b))
            if k == 0: g("v_mul_f32 v%d, v5, v5" % (VAR + b))
            else: g("v_fma_f32 v%d, v5, v5, v%d" % (VAR + b, VAR + b))
    for b in range(2): g("v_cndmask_b32 v%d, 0, v%d, vcc" % (VAR + b, VAR + b))
    allreduce16(g, "v_add_f32", [VAR, VAR + 1])
    xrow(g, "v_add_f32", [VAR, VAR + 1], VAR + 2)
    for b in range(2):
        g("v_mul_f32 v%d, v%d, v4" % (VAR + b, VAR + b))
        rnd_bf16(g, VAR + b, VAR + b)
        g("v_add_f32 v%d, 0x3727c5ac, v%d" % (VAR + b, VAR + b))
        rnd_bf16(g, VAR + b, VAR + b)
        g("v_sqrt_f32 v%d, v%d" % (VAR + b, VAR + b))
        rnd_bf16(g, VAR + b, VAR + b)
        g("v_rcp_f32 v%d, v%d" % (VAR + b, VAR + b))
        rnd_bf16(g, SUM + b, SUM + b)
    for b in range(2):
        f = F + 8 * b
        for k in range(0, 8, 2):
            g("v_sub_f32 v%d, v%d, v%d" % (f + k, f + k, SUM + b))
            g("v_sub_f32 v%d, v%d, v%d" % (f + k + 1, f + k + 1, SUM + b))
            g("v_cvt_pk_bf16_f32 v5, v%d, v%d" % (f + k, f + k + 1))
            g("v_lshlrev_b32 v%d, 16, v5" % (f + k))
            g("v_and_b32 v%d, s%d, v5" % (f + k + 1, S_HI))
            g("v_mul_f32 v%d, v%d, v%d" % (f + k, f + k, VAR + b))
            g("v_mul_f32 v%d, v%d, v%d" % (f + k + 1, f + k + 1, VAR + b))
            g("v_cvt_pk_bf16_f32 v%d, v%d, v%d" % (T + 4 * b + k // 2, f + k, f + k + 1))
    g("v_lshlrev_b32 v4, 4, v0")
    g("v_add_u32 v4, %d, v4" % XN)
    g("s_mov_b32 exec_hi, 0x00ffffff")
    g("ds_write_b128 v4, v[%d:%d]" % (T, T + 3))
    g("ds_write_b128 v4, v[%d:%d] offset:896" % (T + 4, T + 7))
    g("s_mov_b64 exec, -1")
    g("s_waitcnt lgkmcnt(0)")
    g("s_add_u32 s%d, s%d, 1" % (S_E, S_E))
    g("s_and_b32 s41, s%d, s%d" % (S_E, S_MASK)); g("v_mov_b32 v%d, s41" % V_T)
    g("s_lshr_b32 s41, s%d, 10" % S_E); g("s_and_b32 s41, s41, s%d" % S_MASK); g("v_mov_b32 v%d, s41" % (V_T + 1))
    g("s_lshr_b32 s41, s%d, 20" % S_E); g("s_and_b32 s41, s41, s%d" % S_MASK); g("v_mov_b32 v%d, s41" % (V_T + 2))
    g("s_lshr_b32 s41, s%d, 30" % S_E); g("s_lshl_b32 s42, s%d, 2" % (S_E + 1)); g("s_or_b32 s41, s41, s42"); g("s_and_b32 s41, s41, s%d" % S_MASK); g("v_mov_b32 v%d, s41" % (V_T + 3))
    g.stamp(2)
    g.cat = "qp"
    g.c("q partial")
    g("v_and_b32 v4, 1, v%d" % V_N)
    g("v_mul_u32_u24 v4, 896, v4")
    g("v_lshl_add_u32 v4, v%d, 3, v4" % V_KG)
    g("v_add_u32 v3, %d, v4" % XN)
    g("s_lshr_b32 s41, s%d, 3" % S_I)
    g("s_mul_i32 s41, s41, 224")
    g("v_add_u32 v4, s41, v3")
    g("v_lshlrev_b32 v5, 8, v%d" % V_N)
    g("v_lshl_add_u32 v5, v%d, 4, v5" % V_KG)
    g("s_lshl_b32 s41, s%d, 6" % S_CW)
    g("v_add_u32 v5, s41, v5")
    g("s_lshl_b32 s41, s%d, 14" % S_KVH)
    g("s_lshl_b32 s42, s%d, 9" % S_I)
    g("s_add_u32 s41, s41, s42")
    g("s_add_u32 s41, s41, %d" % QP)
    g("v_add_u32 v6, s41, v5")
    wait_landed(g, "14")
    thin_tile16(g, 7, WQ_T, 4, T + 32, T)
    tag4(g, T + 32)
    store_n2(g, 6, T + 32)
    g.stamp(3)
    prog_set(g, "1")
    g.cat = "xc"
    g("s_getreg_b32 s%d, hwreg(HW_REG_XCC_ID)" % S_XCC)
    g("s_and_b32 s%d, s%d, 15" % (S_XCC, S_XCC))
    sk = g.lab("NOXC")
    g("s_cmp_lg_u32 s%d, 0" % S_CW)
    g("s_cbranch_scc1 " + sk)
    g("s_lshl_b32 s41, s%d, 16" % S_XCC)
    for k in range(4): g("v_mov_b32 v%d, s41" % (V_X + k))
    tag4(g, V_X)
    g("s_lshl_b32 s41, s%d, 9" % S_KVH); g("s_lshl_b32 s42, s%d, 4" % S_I); g("s_add_u32 s41, s41, s42"); g("s_add_u32 s41, s41, %d" % XC)
    g("v_mov_b32 v7, s41")
    g("s_mov_b64 exec, 1")
    g("global_store_dwordx4 v7, v[%d:%d], s[%d:%d] sc1" % (V_X, V_X + 3, S_WS, S_WS + 1))
    g("s_mov_b64 exec, -1")
    g(sk + ":")
    g.cat = "gp"
    g.c("gate/up partial")
    sk = g.lab("NOGU")
    g("s_cmp_eq_u32 s%d, 0" % S_G)
    g("s_cbranch_scc1 " + sk)
    g("s_lshr_b32 s41, s%d, 1" % S_GSL)
    g("s_mul_i32 s41, s41, 224")
    g("v_add_u32 v4, s41, v3")
    g("s_lshl_b32 s41, s%d, 12" % S_GFB)
    g("s_lshl_b32 s42, s%d, 9" % S_GSL)
    g("s_add_u32 s41, s41, s42")
    g("s_add_u32 s41, s41, %d" % GP)
    g("v_add_u32 v6, s41, v5")
    wait_landed(g, "28")
    thin_tile16(g, 7, GU_T, 4, V_S, T)
    tag4(g, V_S)
    store_n2(g, 6, V_S)
    g(sk + ":")
    g("v_mov_b32 v%d, v4" % (V_S + 4))
    g("v_add_u32 v%d, 512, v6" % (V_S + 5))
    g.cat = "ldq"
    g.c("K tiles to registers")
    g("v_and_b32 v8, 7, v%d" % V_N)
    g("v_lshlrev_b32 v8, 1, v8")
    g("s_lshl_b32 s41, s%d, 13" % S_CW)
    g("v_lshlrev_b32 v9, 9, v%d" % V_N)
    g("v_add_u32 v9, s41, v9")
    for s3 in range(4):
        g("v_add_u32 v%d, %d, v%d" % (4 + s3, 4 * s3, V_KG))
        g("v_xor_b32 v%d, v%d, v8" % (4 + s3, 4 + s3))
        g("v_lshl_add_u32 v%d, v%d, 4, v9" % (4 + s3, 4 + s3))
    g("s_lshl_b32 s41, s%d, 14" % S_KVH)
    g("s_lshl_b32 s42, s%d, 10" % S_CW)
    g("s_add_u32 s41, s41, s42")
    g("s_lshl_b32 s42, s%d, 8" % S_B)
    g("s_add_u32 s41, s41, s42")
    g("s_add_u32 s41, s41, %d" % QP)
    g("v_lshlrev_b32 v10, 12, v%d" % V_KG)
    g("v_lshl_add_u32 v10, v%d, 4, v10" % V_N)
    g("v_add_u32 v10, s41, v10")
    g("s_min_u32 s41, s%d, 27" % S_DFB)
    g("s_lshl_b32 s41, s41, 12")
    g("s_and_b32 s42, s%d, 1" % S_CW)
    g("s_lshl_b32 s42, s42, 8")
    g("s_add_u32 s41, s41, s42"); g("s_add_u32 s41, s41, %d" % GP)
    g("v_lshlrev_b32 v11, 10, v%d" % V_KG)
    g("v_lshl_add_u32 v11, v%d, 4, v11" % V_N)
    g("v_add_u32 v11, s41, v11")
    g("s_lshl_b32 s41, s%d, 9" % S_KVH); g("s_add_u32 s41, s41, %d" % XC)
    g("v_and_b32 v22, 31, v0"); g("v_lshlrev_b32 v22, 4, v22"); g("v_add_u32 v22, s41, v22")
    def ldq():
        gld(g, T, 10); gld(g, T + 4, 10, 512); gld(g, V_X, 22)
    def ldg():
        gld(g, V_G, 11); gld(g, V_G + 4, 11, 512)
    for r in range(4):
        if r == g.q_issue_at: ldq()
        g("s_lshl_b32 s41, s%d, 3" % S_CW)
        g("s_add_u32 s41, s41, s%d" % S_BK)
        g("s_add_u32 s41, s41, %d" % (8 + 32 * r))
        if r >= 2: g("s_add_u32 s41, s41, s%d" % S_G2)
        wait_landed(g, "s41")
        for s in range(8):
            g("ds_read_b128 v[%d:%d], v%d offset:%d" % (V_K + 32 * r + 4 * s, V_K + 32 * r + 4 * s + 3, 4 + (s & 3), (s >> 2) * 256 + (r & 1) * 32768))
        if r == 1:
            for s3 in range(4): g("v_add_u32 v%d, 0x10000, v%d" % (4 + s3, 4 + s3))
        g("s_waitcnt lgkmcnt(0)")
        prog_set(g, str(2 + r + (1 if r >= 2 else 0)))
        if r == 1:
            sk = g.lab("NOG2")
            g("s_cmp_eq_u32 s%d, 0" % S_G2)
            g("s_cbranch_scc1 " + sk)
            g("s_add_u32 s41, s%d, s%d" % (S_BK, S_G2)); g("s_add_u32 s41, s41, 64")
            wait_landed(g, "s41")
            thin_tile16(g, 7, WQ_T, V_S + 4, V_S, V_Q)
            tag4(g, V_S)
            store_n2(g, V_S + 5, V_S)
            g(sk + ":")
            prog_set(g, "4")
    g.stamp(4)
    g.c("gather q")
    poll(g, ldq, [T, T + 4, V_X], g.sleep_mid, T + 8, pre=True)
    sk = g.lab("NOGL")
    g("s_cmp_eq_u32 s%d, 0" % S_D); g("s_cbranch_scc1 " + sk)
    g("s_cmp_ge_u32 s%d, 2" % S_CW); g("s_cbranch_scc1 " + sk)
    ldg()
    g(sk + ":")
    g("v_lshrrev_b32 v%d, 16, v%d" % (V_X, V_X))
    g("v_cmp_eq_u32 vcc, s%d, v%d" % (S_XCC, V_X))
    g("s_nop 0")
    g("s_cmp_eq_u64 vcc, exec")
    g("s_cselect_b32 s%d, %d, 0" % (S_FAST, 1 if g.fast else 0))
    strip(g, T, 8)
    T4(g, T); T4(g, T + 4)
    g("v_cvt_pk_bf16_f32 v%d, v%d, v%d" % (T, T, T + 4))
    g("s_lshr_b32 s41, s%d, 1" % S_CW); g("s_lshl_b32 s41, s41, 9")
    g("s_and_b32 s42, s%d, 1" % S_CW); g("s_lshl_b32 s42, s42, 8")
    g("s_add_u32 s41, s41, s42"); g("s_add_u32 s41, s41, %d" % QB)
    g("v_lshlrev_b32 v4, 3, v%d" % V_N)
    g("v_lshl_add_u32 v4, v%d, 1, v4" % V_KG)
    g("v_add_u32 v4, s41, v4")
    g("ds_write_b16 v4, v%d" % T)
    g("ds_write_b16_d16_hi v4, v%d offset:128" % T)
    prog_set(g, "7")
    wait_prog_c(g, "7")
    g("v_and_b32 v4, 1, v%d" % V_N)
    g("v_lshlrev_b32 v4, 9, v4")
    g("v_lshl_add_u32 v4, v%d, 4, v4" % V_KG)
    g("v_add_u32 v4, %d, v4" % QB)
    for s in range(8): g("ds_read_b128 v[%d:%d], v4 offset:%d" % (V_Q + 4 * s, V_Q + 4 * s + 3, s * 64))
    g.c("QK")
    for s in range(8):
        g("s_waitcnt lgkmcnt(%d)" % (7 - s))
        for r in range(4):
            g("v_mfma_f32_16x16x32_bf16 v[%d:%d], v[%d:%d], v[%d:%d], %s" % (V_S + 4 * r, V_S + 4 * r + 3, V_K + 32 * r + 4 * s, V_K + 32 * r + 4 * s + 3, V_Q + 4 * s, V_Q + 4 * s + 3, "0" if s == 0 else "v[%d:%d]" % (V_S + 4 * r, V_S + 4 * r + 3)))
    g.stamp(5)
    g.cat = "st"
    g.c("softmax")
    for k in range(0, 16, 2):
        g("v_cvt_pk_bf16_f32 v4, v%d, v%d" % (V_S + k, V_S + k + 1))
        g("v_lshlrev_b32 v%d, 16, v4" % (V_S + k))
        g("v_and_b32 v%d, s%d, v4" % (V_S + k + 1, S_HI))
    g("v_max3_f32 v4, v%d, v%d, v%d" % (V_S, V_S + 1, V_S + 2))
    for k in range(3, 15, 2): g("v_max3_f32 v4, v4, v%d, v%d" % (V_S + k, V_S + k + 1))
    g("v_max_f32 v4, v4, v%d" % (V_S + 15))
    xrow(g, "v_max_f32", [4], 5)
    g("v_and_b32 v6, 1, v%d" % V_N)
    g("v_lshlrev_b32 v6, 4, v6")
    g("v_add_u32 v6, %d, v6" % WM)
    g("s_lshl_b32 s41, s%d, 2" % S_CW)
    g("v_add_u32 v7, s41, v6")
    g("ds_write_b32 v7, v4")
    prog_set(g, "8")
    wait_prog_c(g, "8")
    g("ds_read_b128 v[%d:%d], v6" % (T, T + 3))
    g("s_waitcnt lgkmcnt(0)")
    g("v_max3_f32 v4, v%d, v%d, v%d" % (T, T + 1, T + 2))
    g("v_max_f32 v4, v4, v%d" % (T + 3))
    g("v_mul_f32 v5, s%d, v4" % S_C)
    for k in range(16):
        g("v_fma_f32 v%d, v%d, s%d, -v5" % (V_S + k, V_S + k, S_C))
    for k in range(16): g("v_exp_f32 v%d, v%d" % (V_S + k, V_S + k))
    g("v_add_f32 v8, v%d, v%d" % (V_S, V_S + 1))
    for k in range(2, 16): g("v_add_f32 v8, v8, v%d" % (V_S + k))
    xrow(g, "v_add_f32", [8], 9)
    g("ds_write_b32 v7, v8 offset:%d" % (WL - WM))
    g("v_and_b32 v9, 1, v%d" % V_N)
    g("v_lshlrev_b32 v9, 5, v9")
    g("v_lshl_add_u32 v9, v%d, 3, v9" % V_KG)
    g("v_add_u32 v3, %d, v9" % PB)
    g("s_lshl_b32 s41, s%d, 6" % S_CW)
    g("v_add_u32 v10, s41, v3")
    for r in range(4):
        g("v_cvt_pk_bf16_f32 v%d, v%d, v%d" % (T + 2 * r, V_S + 4 * r, V_S + 4 * r + 1))
        g("v_cvt_pk_bf16_f32 v%d, v%d, v%d" % (T + 2 * r + 1, V_S + 4 * r + 2, V_S + 4 * r + 3))
        g("ds_write_b64 v10, v[%d:%d] offset:%d" % (T + 2 * r, T + 2 * r + 1, r * 256))
    prog_set(g, "9")
    wait_prog_c(g, "9")
    sk = g.lab("NOST")
    g("s_cmp_lg_u32 s%d, 0" % S_CW)
    g("s_cbranch_scc1 " + sk)
    g("ds_read_b128 v[%d:%d], v6 offset:%d" % (T, T + 3, WL - WM))
    g("s_waitcnt lgkmcnt(0)")
    g("v_add_f32 v%d, v%d, v%d" % (T, T, T + 1))
    g("v_add_f32 v%d, v%d, v%d" % (T + 2, T + 2, T + 3))
    g("v_add_f32 v%d, v%d, v%d" % (T + 1, T, T + 2))
    g("v_mov_b32 v%d, v4" % T)
    g("v_mov_b32 v%d, v4" % (T + 2))
    g("v_mov_b32 v%d, v%d" % (T + 3, T + 1))
    tag4(g, T)
    g("s_lshl_b32 s41, s%d, 1" % S_KVH); g("s_add_u32 s41, s41, s%d" % S_B); g("s_lshl_b32 s41, s41, 4"); g("s_add_u32 s41, s41, s%d" % S_J)
    g("s_lshl_b32 s41, s41, 5"); g("s_add_u32 s41, s41, %d" % ST)
    g("v_lshlrev_b32 v5, 4, v0")
    g("v_add_u32 v5, s41, v5")
    g("s_mov_b64 exec, 3")
    g("global_store_dwordx4 v5, v[%d:%d], s[%d:%d] sc1" % (T, T + 3, S_WS, S_WS + 1))
    g("s_mov_b64 exec, -1")
    g(sk + ":")
    g.stamp(6)
    g.cat = "ffn"
    g.c("ffn down partial")
    sk = g.lab("NOFFN")
    g("s_cmp_eq_u32 s%d, 0" % S_D)
    g("s_cbranch_scc1 " + sk)
    sk2 = g.lab("NOH")
    g("s_cmp_ge_u32 s%d, 2" % S_CW)
    g("s_cbranch_scc1 " + sk2)
    poll(g, ldg, [V_G, V_G + 4], g.sleep_mid, T + 8, pre=True)
    strip(g, V_G, 8)
    T4(g, V_G); T4(g, V_G + 4)
    rnd_bf16(g, T, V_G); rnd_bf16(g, T + 4, V_G + 4)
    g("v_mul_f32 v5, v%d, v%d" % (T, T))
    g("v_mov_b32 v6, 0x3d372713")
    g("v_fma_f32 v5, v5, v6, 1.0")
    g("v_mul_f32 v5, v5, v%d" % T)
    g("v_mul_f32 v5, 0xc0135761, v5")
    g("v_exp_f32 v5, v5")
    g("v_add_f32 v5, 1.0, v5")
    g("v_rcp_f32 v5, v5")
    g("v_mul_f32 v5, v5, v%d" % T)
    rnd_bf16(g, 5, 5)
    g("v_mul_f32 v5, v5, v%d" % (T + 4))
    g("v_cvt_pk_bf16_f32 v5, v5, v5")
    g("s_lshl_b32 s41, s%d, 7" % S_CW); g("s_add_u32 s41, s41, %d" % HB)
    g("v_lshlrev_b32 v4, 3, v%d" % V_N)
    g("v_lshl_add_u32 v4, v%d, 1, v4" % V_KG)
    g("v_add_u32 v4, s41, v4")
    g("ds_write_b16 v4, v5")
    g(sk2 + ":")
    prog_set(g, "10")
    if not g.defer_wd:
        part_addr(g, 6, YP, S_DCB, S_DFB)
        g("v_and_b32 v4, 1, v%d" % V_N)
        g("v_lshlrev_b32 v4, 7, v4")
        g("v_lshl_add_u32 v4, v%d, 3, v4" % V_KG)
        g("v_add_u32 v4, %d, v4" % HB)
        wait_prog_c(g, "10")
        wait_landed(g, "s%d" % S_BV)
        thin_tile16(g, 4, WD_T, 4, T + 16, T)
        tag4(g, T + 16)
        store_n2(g, 6, T + 16)
    else:
        wait_prog_c(g, "10")
    g(sk + ":")
    g.stamp(7)
    g.c("tail addresses")
    g("s_lshl_b32 s41, s%d, 1" % S_KVH); g("s_add_u32 s41, s41, s%d" % S_B); g("s_lshl_b32 s41, s41, 4"); g("s_add_u32 s41, s41, s%d" % S_J)
    g("s_lshl_b32 s41, s41, 11")
    g("s_lshl_b32 s42, s%d, 8" % S_CW); g("s_add_u32 s41, s41, s42"); g("s_add_u32 s41, s41, %d" % OP)
    g("v_lshlrev_b32 v%d, 10, v%d" % (A_PUB, V_N))
    g("v_lshl_add_u32 v%d, v%d, 4, v%d" % (A_PUB, V_KG, A_PUB))
    g("v_add_u32 v%d, s41, v%d" % (A_PUB, A_PUB))
    g("v_bfe_u32 v23, v0, 4, 1"); g("v_lshlrev_b32 v23, 10, v23"); g("v_lshl_add_u32 v23, v%d, 4, v23" % V_N); g("v_add_u32 v23, s41, v23")
    g("s_lshl_b32 s41, s%d, 1" % S_KVH); g("s_lshr_b32 s42, s%d, 1" % S_CW); g("s_add_u32 s41, s41, s42"); g("s_lshl_b32 s41, s41, 15")
    g("s_and_b32 s42, s%d, 3" % S_RBL); g("s_lshl_b32 s42, s42, 9"); g("s_add_u32 s41, s41, s42")
    g("s_and_b32 s42, s%d, 1" % S_CW); g("s_lshl_b32 s42, s42, 8"); g("s_add_u32 s41, s41, s42")
    g("s_add_u32 s41, s41, %d" % OP)
    g("v_lshlrev_b32 v%d, 11, v%d" % (A_G0, V_KG))
    g("v_lshl_add_u32 v%d, v%d, 4, v%d" % (A_G0, V_N, A_G0))
    g("v_add_u32 v%d, s41, v%d" % (A_G0, A_G0))
    for u in range(1, 4): g("v_add_u32 v%d, %d, v%d" % (A_G0 + u, 8192 * u, A_G0))
    g("v_lshrrev_b32 v8, 3, v%d" % V_N); g("v_lshlrev_b32 v8, 5, v8")
    g("v_and_b32 v9, 3, v%d" % V_N); g("v_lshl_add_u32 v8, v9, 3, v8")
    g("v_bfe_u32 v9, v%d, 2, 1" % V_N); g("v_lshl_add_u32 v8, v9, 2, v8")
    g("v_add_u32 v8, v8, v%d" % V_KG); g("v_lshlrev_b32 v8, 1, v8")
    g("s_lshr_b32 s41, s%d, 1" % S_CW); g("s_lshl_b32 s41, s41, 8")
    g("s_and_b32 s42, s%d, 1" % S_CW); g("s_lshl_b32 s42, s42, 7"); g("s_add_u32 s41, s41, s42"); g("s_add_u32 s41, s41, %d" % OB)
    g("v_add_u32 v%d, s41, v8" % A_OBW)
    g("v_and_b32 v9, 1, v%d" % V_N); g("v_lshlrev_b32 v9, 8, v9"); g("v_lshl_add_u32 v9, v%d, 4, v9" % V_KG); g("v_add_u32 v%d, %d, v9" % (A_OBR, OB))
    g("s_lshl_b32 s45, s%d, 2" % S_KVH); g("s_add_u32 s45, s45, s%d" % S_RBL); g("s_and_b32 s45, s45, 31")
    g("s_min_u32 s46, s%d, 6" % S_CB)
    part_addr(g, A_SP, SP, 46, 45)
    g("s_lshl_b32 s41, s%d, 10" % S_KVH)
    g("s_lshr_b32 s42, s%d, 1" % S_RBL); g("s_and_b32 s42, s42, 1"); g("s_lshl_b32 s42, s42, 4"); g("s_add_u32 s41, s41, s42")
    g("s_add_u32 s41, s41, %d" % ST)
    g("v_and_b32 v%d, 31, v0" % A_STA)
    g("v_lshlrev_b32 v%d, 5, v%d" % (A_STA, A_STA))
    g("v_add_u32 v%d, s41, v%d" % (A_STA, A_STA))
    g("s_min_u32 s47, s%d, 27" % S_F)
    g("s_cmp_ge_u32 s47, 14"); g("s_cselect_b32 s42, 1, 0")
    g("s_mul_i32 s43, s42, 14"); g("s_sub_u32 s43, s47, s43")
    g("s_lshr_b32 s44, s43, 1")
    g("s_and_b32 s43, s43, 1")
    g("s_lshl_b32 s41, s44, 1"); g("s_add_u32 s41, s41, s42"); g("s_lshl_b32 s41, s41, 1"); g("s_add_u32 s41, s41, s43"); g("s_lshl_b32 s41, s41, 12")
    g("v_lshlrev_b32 v%d, 4, v0" % A_PART)
    g("v_add_u32 v%d, s41, v%d" % (A_PART, A_PART))
    g("s_mul_i32 s42, s42, 448"); g("s_lshl_b32 s44, s44, 6"); g("s_add_u32 s42, s42, s44"); g("s_lshl_b32 s43, s43, 5"); g("s_add_u32 s42, s42, s43")
    g("v_and_b32 v%d, 7, v0" % A_OUT)
    g("v_lshl_add_u32 v%d, v%d, 2, v%d" % (A_OUT, A_OUT, V_KG))
    g("v_add_u32 v%d, s42, v%d" % (A_OUT, A_OUT))
    g("v_lshlrev_b32 v%d, 1, v%d" % (A_OUT, A_OUT))
    if g.defer_wd:
        part_addr(g, A_YP, YP, S_DCB, S_DFB)
        g("v_and_b32 v%d, 1, v%d" % (A_HB, V_N))
        g("v_lshlrev_b32 v%d, 7, v%d" % (A_HB, A_HB))
        g("v_lshl_add_u32 v%d, v%d, 3, v%d" % (A_HB, V_KG, A_HB))
        g("v_add_u32 v%d, %d, v%d" % (A_HB, HB, A_HB))
    g.cat = "pre"
    g.c("PV")
    g("v_lshrrev_b32 v8, 2, v%d" % V_N)
    g("v_lshl_add_u32 v8, v%d, 2, v8" % V_KG)
    g("v_and_b32 v9, 7, v8")
    g("v_lshlrev_b32 v8, 9, v8")
    g("v_and_b32 v10, 3, v%d" % V_N)
    g("v_lshl_add_u32 v8, v10, 3, v8")
    g("s_lshl_b32 s41, s%d, 2" % S_CW)
    for mt in range(4):
        g("s_add_u32 s42, s41, %d" % mt)
        g("v_xor_b32 v%d, s42, v9" % (4 + mt))
        g("v_lshl_add_u32 v%d, v%d, 5, v8" % (4 + mt, 4 + mt))
    for k in range(16): g("v_mov_b32 v%d, 0" % (V_ACC + k))
    g("s_add_u32 s%d, s%d, 8" % (S_THR, S_BV))
    def pv_body():
        for mt in range(4): g("ds_read_b64_tr_b16 v[%d:%d], v%d" % (T + 2 + 2 * mt, T + 3 + 2 * mt, 4 + mt))
    def pv_mfma():
        for mt in range(4):
            g("s_waitcnt lgkmcnt(%d)" % (3 - mt))
            g("v_mfma_f32_16x16x16_bf16 v[%d:%d], v[%d:%d], v[%d:%d], v[%d:%d]" % (V_ACC + 4 * mt, V_ACC + 4 * mt + 3, T + 2 + 2 * mt, T + 3 + 2 * mt, T, T + 1, V_ACC + 4 * mt, V_ACC + 4 * mt + 3))
    def pv_loop(n):
        g("s_mov_b32 s%d, %d" % (S_CNT, n))
        lp = g.lab("PV")
        g(lp + ":")
        wait_landed(g, "s%d" % S_THR)
        g("ds_read_b64 v[%d:%d], v3" % (T, T + 1))
        pv_body()
        for mt in range(4): g("v_add_u32 v%d, 8192, v%d" % (4 + mt, 4 + mt))
        g("v_add_u32 v3, 64, v3")
        g("s_add_u32 s%d, s%d, 8" % (S_THR, S_THR))
        g("s_sub_u32 s%d, s%d, 1" % (S_CNT, S_CNT))
        pv_mfma()
        g("s_cmp_lg_u32 s%d, 0" % S_CNT)
        g("s_cbranch_scc1 " + lp)
    pv_loop(g.stat_at)
    fin = g.lab("PFIN"); jn = g.lab("PJN")
    g("s_cmp_eq_u32 s%d, 0" % S_O)
    g("s_cbranch_scc1 " + fin)
    gld(g, V_ST, A_STA)
    g(fin + ":")
    if g.ldpre < 0: gld(g, V_G, 23)
    g.stamp(8)
    if g.lastbar:
        pv_loop(15 - g.stat_at)
        g("ds_read_b64 v[%d:%d], v3" % (T, T + 1))
        g("s_waitcnt lgkmcnt(0)")
        g("s_barrier")
        pv_body()
        pv_mfma()
    else:
        pv_loop(16 - g.stat_at)
    g.stamp(9)
    g.cat = "op"
    g.c("publish o")
    for mt in range(4): tag4(g, V_ACC + 4 * mt)
    g("s_mov_b64 exec, s[%d:%d]" % (S_EX, S_EX + 1))
    slow = g.lab("OSLOW"); dn = g.lab("ODONE")
    g("s_cmp_eq_u32 s%d, 0" % S_FAST)
    g("s_cbranch_scc1 " + slow)
    for mt in range(4):
        g("global_store_dwordx4 v%d, v[%d:%d], s[%d:%d] offset:%d" % (A_PUB, V_ACC + 4 * mt, V_ACC + 4 * mt + 3, S_WS, S_WS + 1, mt * 64))
    g("s_branch " + dn)
    g(slow + ":")
    for mt in range(4):
        g("global_store_dwordx4 v%d, v[%d:%d], s[%d:%d] offset:%d sc1" % (A_PUB, V_ACC + 4 * mt, V_ACC + 4 * mt + 3, S_WS, S_WS + 1, mt * 64))
    g(dn + ":")
    g("s_mov_b64 exec, -1")
    g.stamp(10)
    fin = g.lab("FIN2"); end = g.lab("CEND")
    g("s_cmp_eq_u32 s%d, 0" % S_O)
    g("s_cbranch_scc1 " + fin)
    g.cat = "tail"
    g.c("stats")
    lp = g.lab("SL"); ex = g.lab("SX")
    g("s_waitcnt vmcnt(4)")
    g(lp + ":")
    g("v_xor_b32 v57, v%d, v%d" % (V_ST, V_T))
    for k in range(1, 4): g("v_bitop3_b32 v57, v%d, v%d, v57 bitop3:0xBE" % (V_ST + k, V_T + k))
    g("v_and_b32 v57, s%d, v57" % S_MASK)
    g("v_cmp_ne_u32 vcc, 0, v57")
    g("s_cbranch_vccz " + ex)
    budget_exit(g, ex)
    gld(g, V_ST, A_STA)
    g("s_waitcnt vmcnt(0)")
    g("s_branch " + lp)
    g(ex + ":")
    def ldo():
        for u in range(4): gld(g, T + 4 * u, A_G0 + u)
    ldo()
    Z = V_ST
    g("v_and_b32 v%d, s%d, v%d" % (Z, S_HI, Z))
    strip(g, Z + 1, 1)
    g("v_mov_b32 v57, v%d" % Z)
    allreduce16(g, "v_max_f32", [57])
    g("v_sub_f32 v57, v%d, v57" % Z)
    g("v_mul_f32 v57, s%d, v57" % S_C)
    g("v_exp_f32 v57, v57")
    g("v_mul_f32 v58, v57, v%d" % (Z + 1))
    allreduce16(g, "v_add_f32", [58])
    g("v_rcp_f32 v58, v58")
    g("v_mul_f32 v57, v57, v58")
    g("s_lshr_b32 s41, s%d, 1" % S_CW); g("s_lshl_b32 s41, s41, 6")
    g("v_lshlrev_b32 v58, 2, v%d" % V_KG)
    g("v_add_u32 v58, s41, v58")
    for u in range(4):
        g("v_add_u32 v59, %d, v58" % (16 * u))
        g("ds_bpermute_b32 v%d, v59, v57" % (V_C + u))
    if g.defer_wd:
        sk = g.lab("NOYP")
        g("s_cmp_eq_u32 s%d, 0" % S_D)
        g("s_cbranch_scc1 " + sk)
        g("s_add_u32 s41, s%d, 136" % S_BV)
        wait_landed(g, "s41")
        thin_tile16(g, 4, WD_T, A_HB, 192, 160)
        tag4(g, 192)
        store_n2(g, A_YP, 192)
        g(sk + ":")
    g("s_add_u32 s41, s%d, 144" % S_BV)
    if g.defer_wd: g("s_add_u32 s41, s41, s%d" % S_D)
    wait_landed(g, "s41")
    A = V_Q
    for s in range(4):
        g("ds_read_b64_tr_b16 v[%d:%d], v%d offset:%d" % (A + 8 * s, A + 8 * s + 1, V_TR, WO_T + s * 4096))
        g("ds_read_b64_tr_b16 v[%d:%d], v%d offset:%d" % (A + 8 * s + 2, A + 8 * s + 3, V_TR, WO_T + s * 4096 + 2048))
    g.c("gather o")
    if g.selpoll:
        poll_sel(g, [(T + 4 * u, (lambda u=u: gld(g, T + 4 * u, A_G0 + u))) for u in range(4)], g.sleep_tail, T + 16, count=True, first_allow=(1 if g.defer_wd else 0))
    else:
        poll(g, ldo, [T, T + 4, T + 8, T + 12], g.sleep_tail, T + 16, pre=True, count=True)
    g.stamp(12)
    if not g.nostrip: strip(g, T, 16)
    g("s_waitcnt lgkmcnt(0)")
    for k in range(4): g("v_mul_f32 v%d, v%d, v%d" % (T + k, T + k, V_C))
    for u in range(1, 4):
        for k in range(4): g("v_fma_f32 v%d, v%d, v%d, v%d" % (T + k, T + 4 * u + k, V_C + u, T + k))
    T4(g, T)
    g("v_cvt_pk_bf16_f32 v%d, v%d, v%d" % (T, T, T))
    g("ds_write_b16 v%d, v%d" % (A_OBW, T))
    g("s_waitcnt lgkmcnt(0)")
    g("s_barrier")
    g.stamp(13)
    for s in range(4):
        g("ds_read_b128 v[%d:%d], v%d offset:%d" % (A + 8 * s + 4, A + 8 * s + 7, A_OBR, s * 64))
    for s in range(4):
        g("s_waitcnt lgkmcnt(%d)" % (3 - s))
        g("v_mfma_f32_16x16x32_bf16 v[%d:%d], v[%d:%d], v[%d:%d], %s" % (T, T + 3, A + 8 * s, A + 8 * s + 3, A + 8 * s + 4, A + 8 * s + 7, "0" if s == 0 else "v[%d:%d]" % (T, T + 3)))
    tag4(g, T)
    store_n2(g, A_SP, T)
    if g.wbl2:
        sk = g.lab("NOWB")
        g("s_cmp_lg_u32 s%d, 0" % S_CW); g("s_cbranch_scc1 " + sk)
        if g.wbl2 == 1:
            g("s_cmp_lg_u32 s%d, 0" % S_I); g("s_cbranch_scc1 " + sk)
        g("buffer_wbl2 sc1")
        g(sk + ":")
    g.stamp(11)
    g("s_branch " + end)
    g(fin + ":")
    g("s_cmp_lg_u32 s%d, 0" % S_CW); g("s_cbranch_scc1 " + end)
    g("s_cmp_ge_u32 s%d, 28" % S_F); g("s_cbranch_scc1 " + end)
    g("global_load_ushort v11, v%d, s[%d:%d]" % (A_OUT, S_X, S_X + 1))
    g("v_add_u32 v4, %d, v%d" % (YP, A_PART))
    for k in range(4): g("v_mov_b32 v%d, 0" % (T + 12 + k))
    def ld4(last_mask):
        def f():
            for u in range(3): gld(g, T + 4 * u, 4, 1024 * u)
            if last_mask: g("s_mov_b32 exec_hi, 0")
            gld(g, T + 12, 4, 3072)
            if last_mask: g("s_mov_b64 exec, -1")
        return f
    def red32(dst):
        if not g.nostrip: strip(g, T, 16)
        for k in range(4):
            g("v_add_f32 v%d, v%d, v%d" % (T + k, T + k, T + 4 + k))
            g("v_add_f32 v%d, v%d, v%d" % (T + 8 + k, T + 8 + k, T + 12 + k))
        for k in range(4): g("v_add_f32 v%d, v%d, v%d" % (T + k, T + k, T + 8 + k))
        for k in range(4): g("v_add_f32_dpp v%d, v%d, v%d row_ror:8 row_mask:0xf bank_mask:0xf" % (T + k, T + k, T + k))
        T4(g, T)
        rnd_bf16(g, dst, T)
    poll(g, ld4(True), [T, T + 4, T + 8, T + 12], (g.sleep_y if g.defer_wd else g.sleep_mid), T + 16, masked_last=True)
    red32(10)
    g("v_mul_f32 v5, 0xbfb8aa3b, v10")
    g("v_exp_f32 v5, v5")
    g("v_add_f32 v5, 1.0, v5")
    g("v_rcp_f32 v5, v5")
    g("v_mul_f32 v10, v10, v5")
    rnd_bf16(g, 10, 10)
    g("v_lshlrev_b32 v11, 16, v11")
    g("v_add_u32 v4, %d, v%d" % (SP, A_PART))
    g("s_mov_b32 s42, 0x00ff00ff"); g("s_mov_b32 s43, 0x00ff00ff")
    if g.selfin:
        ld4(False)()
        poll_sel(g, [(T + 4 * u, (lambda u=u: gld(g, T + 4 * u, 4, 1024 * u))) for u in range(4)], g.sleep_fin, T + 16, count=True)
    else:
        poll(g, ld4(False), [T, T + 4, T + 8, T + 12], g.sleep_fin, T + 16, count=True)
    g.stamp(12)
    red32(5)
    g("v_mul_f32 v5, v5, v10")
    rnd_bf16(g, 5, 5)
    g("v_add_f32 v5, v5, v11")
    g("v_cvt_pk_bf16_f32 v5, v5, v5")
    g("s_mov_b64 exec, s[42:43]")
    g("global_store_short v%d, v5, s[%d:%d]" % (A_OUT, S_OUT, S_OUT + 1))
    g("s_mov_b64 exec, -1")
    g.stamp(11)
    g("s_cmp_lg_u32 s%d, 0" % S_F); g("s_cbranch_scc1 " + end)
    g("v_mov_b32 v4, 0"); g("v_mov_b32 v5, s%d" % S_E)
    g("s_mov_b64 exec, 1")
    g("global_store_dword v4, v5, s[%d:%d] sc1" % (S_WS, S_WS + 1))
    g("s_mov_b64 exec, -1")
    g(end + ":")
    if g.dbgclk:
        sk = g.lab("NODBG")
        g("s_cmp_lg_u32 s%d, 0" % S_CW); g("s_cbranch_scc1 " + sk)
        g("s_cmp_ge_u32 s%d, 8" % S_F); g("s_cbranch_scc1 " + sk)
        g("s_memtime s[64:65]"); g("s_memrealtime s[66:67]")
        g("s_load_dwordx2 s[100:101], s[0:1], 80")
        g("s_waitcnt lgkmcnt(0)")
        g("s_sub_u32 s64, s64, s96"); g("s_sub_u32 s66, s66, s98")
        g("s_lshl_b32 s41, s%d, 3" % S_F)
        g("v_mov_b32 v4, s41"); g("v_mov_b32 v6, s64"); g("v_mov_b32 v7, s66")
        g("s_mov_b64 exec, 1")
        g("global_store_dwordx2 v4, v[6:7], s[100:101]")
        g("s_mov_b64 exec, -1")
        g(sk + ":")
    if g.stamps: write_stamps(g)
    g("s_endpgm")

def diag_filter(g, lines):
    drop = getattr(g, "drop", None)
    if drop:
        out = []
        for l in lines:
            t = l.strip()
            if "cat=" in t and t.split("cat=")[1].strip() in drop: continue
            if t.startswith("v_cmp_ne_u32 vcc, 0,"):
                out.append("  s_mov_b64 vcc, 0"); continue
            out.append(l)
        return out
    if not getattr(g, "nomem", 0): return lines
    out = []; incomp = False
    for l in lines:
        if l.startswith("L_compute:"): incomp = True
        t = l.strip()
        if incomp and (t.startswith("global_load_dwordx4") and "sc1" in t):
            if g.nomem & 1: continue
        if incomp and t.startswith("global_store") and ("s[24:25]" in t) and "v100" not in t and "v[104:107]" not in t:
            if g.nomem & 2: continue
        if incomp and (g.nomem & 1) and t.startswith("v_cmp_ne_u32 vcc, 0,"):
            out.append("  s_mov_b64 vcc, 0"); continue
        out.append(l)
    return out


DOC = """; ---------------------------------------------------------------------------------------------
;   Stores are write-through (sc1) and loads bypass L1 (sc1); only when a run-time check
; ---------------------------------------------------------------------------------------------
"""

def build(**kw):
    g = G(**kw)
    g("s_cmp_ge_u32 s2, 256")
    g("s_cbranch_scc1 L_exit")
    g.stamp(0)
    if g.dbgclk:
        g("s_memtime s[96:97]"); g("s_memrealtime s[98:99]")
    g("s_load_dwordx8 s[4:11], s[0:1], 0")
    g("s_load_dwordx2 s[12:13], s[0:1], 32")
    g("s_load_dwordx4 s[16:19], s[0:1], 48")
    g("s_load_dwordx4 s[20:23], s[0:1], 64")
    g("s_load_dwordx2 s[24:25], s[0:1], 88")
    g("v_lshrrev_b32 v1, 6, v0")
    g("v_and_b32 v0, 63, v0")
    g("s_and_b32 s%d, s2, 7" % S_KVH)
    g("v_readfirstlane_b32 s%d, v1" % S_WAVE)
    g("s_lshr_b32 s%d, s2, 3" % S_I)
    g("s_lshr_b32 s%d, s%d, 4" % (S_B, S_I))
    g("s_and_b32 s%d, s%d, 15" % (S_J, S_I))
    g("s_cmp_lt_u32 s%d, 28" % S_I)
    g("s_cselect_b32 s%d, 14, 0" % S_G)
    g("s_cselect_b32 s%d, 16, 0" % S_O)
    g("s_cselect_b32 s%d, 8, 0" % S_D)
    g("s_cmp_lt_u32 s%d, 7" % S_KVH)
    g("s_cselect_b32 s%d, s%d, 0" % (S_D, S_D))
    if g.ffnlocal:
        g("s_cselect_b32 s%d, 14, 0" % S_G)
    if g.evenodd:
        g("s_bitcmp1_b32 s2, 0")
        g("s_cselect_b32 s%d, 0, s%d" % (S_G, S_G))
        g("s_mov_b32 s%d, s%d" % (S_G2, S_G))
    else:
        g("s_mov_b32 s%d, 0" % S_G2)
    g("s_add_u32 s%d, s%d, 14" % (S_BK, S_G))
    if g.defer_wd: g("s_mov_b32 s%d, s%d" % (S_BV, S_BK))
    else: g("s_add_u32 s%d, s%d, s%d" % (S_BV, S_BK, S_D))
    g("s_add_u32 s%d, s%d, s%d" % (S_BV, S_BV, S_G2))
    g("s_add_u32 s%d, s%d, 128" % (S_BV, S_BV))
    g("s_mul_i32 s%d, s%d, 37" % (S_RBL, S_I))
    g("s_lshr_b32 s%d, s%d, 8" % (S_RBL, S_RBL))
    g("s_mul_i32 s41, s%d, 7" % S_RBL)
    g("s_sub_u32 s%d, s%d, s41" % (S_CB, S_I))
    if g.ffnlocal:
        g("s_lshr_b32 s41, s%d, 3" % S_I); g("s_lshl_b32 s42, s%d, 2" % S_KVH)
        g("s_add_u32 s%d, s41, s42" % S_GFB); g("s_and_b32 s%d, s%d, 7" % (S_GSL, S_I))
        g("s_add_u32 s%d, s42, s%d" % (S_DFB, S_RBL)); g("s_mov_b32 s%d, s%d" % (S_DCB, S_CB))
    else:
        g("s_mov_b32 s%d, s%d" % (S_GFB, S_I)); g("s_mov_b32 s%d, s%d" % (S_GSL, S_KVH))
        g("s_mov_b32 s%d, s%d" % (S_DFB, S_I)); g("s_mov_b32 s%d, s%d" % (S_DCB, S_KVH))
    g("s_lshl_b32 s%d, s%d, 2" % (S_F, S_KVH))
    g("s_add_u32 s%d, s%d, s%d" % (S_F, S_F, S_I))
    g("s_sub_u32 s%d, s%d, 28" % (S_F, S_F))
    g("s_mov_b32 s%d, %d" % (S_BUD, 1 << 21))
    g("s_mov_b32 s%d, 0xC0000000" % S_LAND)
    if g.stamps:
        for k in range(1, 16): g("s_mov_b64 s[%d:%d], 0" % (64 + 2 * k, 65 + 2 * k))
    g("s_cmp_eq_u32 s%d, 0" % S_WAVE)
    g("s_cbranch_scc0 L_compute")
    loader(g)
    g("L_compute:")
    compute(g)
    g("L_exit:")
    g("s_endpgm")
    lines = hz.fix(diag_filter(g, g.l))
    name = KN + "_kernel"
    s = HDR + "; @launch grid=(256,1,1) block=(320,1,1) lds=%d\n" % LDS_BYTES
    s += DOC
    s += '.amdgcn_target "amdgcn-amd-amdhsa--gfx950"\n.text\n.globl %s\n.p2align 8\n.type %s,@function\n%s:\n' % (name, name, name)
    s += "\n".join(lines) + "\n"
    s += '.section .rodata,"a"\n.p2align 6\n.amdhsa_kernel %s\n' % name
    s += "  .amdhsa_next_free_vgpr 256\n  .amdhsa_next_free_sgpr 102\n  .amdhsa_accum_offset 256\n"
    s += "  .amdhsa_group_segment_fixed_size 0\n  .amdhsa_kernarg_size 96\n  .amdhsa_user_sgpr_count 2\n"
    s += "  .amdhsa_user_sgpr_kernarg_segment_ptr 1\n  .amdhsa_system_sgpr_workgroup_id_x 1\n"
    s += "  .amdhsa_float_denorm_mode_32 3\n"
    s += ".end_amdhsa_kernel\n"
    return s

if __name__ == "__main__":
    ap = argparse.ArgumentParser()
    ap.add_argument("-o", default="k.s")
    ap.add_argument("--stamps", action="store_true")
    ap.add_argument("--set", action="append", default=[])
    a = ap.parse_args()
    kw = {x.split("=")[0]: (int(x.split("=")[1]) if x.split("=")[1].lstrip("-").isdigit() else x.split("=")[1].split(",")) for x in a.set}
    open(a.o, "w").write(build(stamps=a.stamps, **kw))
```

```python
import sys, argparse
from asmlib import HDR, KN
import hz

KV = 0
AUX = 131072
WQ_T = 0; GU_T = 14336; WD_T = 0; WO_T = 8192
MISC = 159744
XN = MISC; PB = MISC
QB = MISC + 1792; OB = QB
HB = MISC + 2816
WM = MISC + 3072; WL = MISC + 3104
PROG = MISC + 3136
LAND = MISC + 3200
JUNK = MISC + 3456
LDS_BYTES = 163840
QP = 0x1000; GP = 0x21000; ST = 0x3D000; XC = 0x3F000; YP = 0x40000; SP = 0x60000; OP = 0x80000
STAMP = 512 << 20
TAGMASK = 0x3FF; TAGMID = 0x200

S_X, S_K, S_V, S_WQ, S_WO, S_WG, S_WU, S_WD, S_OUT, S_WS = 4, 6, 8, 10, 12, 16, 18, 20, 22, 24
S_KVH, S_I, S_B, S_J, S_WAVE, S_CW = 26, 27, 28, 29, 30, 31
S_E = 32
S_G, S_D, S_O = 34, 35, 36
S_BK, S_BV = 37, 38
S_MASK = 39; S_BUD = 40
S_RBL, S_CB, S_F, S_XCC = 50, 51, 52, 53
S_EX = 54
S_C = 56; S_HI = 57; S_FAST = 59; S_LAND = 60
S_THR, S_CNT = 61, 62
S_GFB, S_GSL, S_DFB, S_DCB = 14, 15, 3, 96
S_G2 = 58
V_N, V_KG = 1, 2
V_T = 12
V_MID, V_PW, V_PR, V_LR, V_TR, V_F = 16, 17, 18, 19, 20, 21
T = 24
V_ST = 40
V_G = 44
V_C = 52
V_X = 56
V_W = 60
V_Q = 64
V_S = 96
V_ACC = 112
V_K = 128
A_PUB, A_G0, A_OBW, A_OBR, A_SP, A_STA, A_OUT, A_PART, A_YP, A_HB = 128, 129, 133, 134, 135, 136, 137, 138, 139, 140

class G:
    def __init__(self, **kw):
        self.l = []; self.n = 0
        self.W = 16; self.stamps = False; self.sleep_mid = 8; self.sleep_tail = 2; self.sleep_fin = 0
        self.fast = 1; self.stat_at = 12; self.q_issue_at = 2; self.dbgspan = 0; self.lastbar = 1; self.spline = 0; self.ffnlocal = 1; self.Wmid = 0; self.dbgclk = 0; self.WK = 40; self.selfin = 1; self.evenodd = 0; self.defer_wd = 0; self.sleep_y = 2; self.wbl2 = 0; self.ldpre = -1; self.selpoll = 1; self.sleep_lds = 0; self.nostrip = 0
        for k, v in kw.items(): setattr(self, k, v)
    def __call__(self, s):
        for x in s.split("\n"):
            x = x.strip()
            if x.startswith("global_") and getattr(self, "cat", None): x += " ; cat=" + self.cat
            self.l.append(x if x.endswith(":") else "  " + x)
    def lab(self, b="L"):
        self.n += 1; return "%s_%d" % (b, self.n)
    def c(self, s): self.l.append("  ; " + s)
    def stamp(self, k):
        if self.stamps and (not getattr(self, "light", 0) or k in (0, 3, 9, 11)):
            self("s_memrealtime s[%d:%d]" % (64 + 2 * k, 65 + 2 * k))

def budget_exit(g, lab):
    g("s_cmp_eq_u32 s%d, 0" % S_BUD)
    g("s_cbranch_scc1 %s" % lab)
    g("s_sub_u32 s%d, s%d, 1" % (S_BUD, S_BUD))

def write_stamps(g):
    g("s_waitcnt lgkmcnt(0)")
    g("s_mul_i32 s41, s2, 5")
    g("s_add_u32 s41, s41, s%d" % S_WAVE)
    g("s_lshl_b32 s41, s41, 7")
    g("s_add_u32 s41, s41, %d" % STAMP)
    g("v_mov_b32 v100, s41")
    for q in range(8):
        for k in range(4): g("v_mov_b32 v%d, s%d" % (104 + k, 64 + 4 * q + k))
        g("s_mov_b64 exec, 1")
        g("global_store_dwordx4 v100, v[104:107], s[%d:%d] offset:%d" % (S_WS, S_WS + 1, 16 * q))
        g("s_mov_b64 exec, -1")
        g("s_nop 1")

def loader(g):
    W = g.W
    g.c("================= loader wave =================")
    g("s_setprio 3")
    g("v_lshlrev_b32 v16, 2, v0")
    g("v_add_u32 v16, %d, v16" % LAND)
    g("v_mov_b32 v5, 0xC0000000")
    g("ds_write_b32 v16, v5")
    g("v_mov_b32 v17, %d" % PROG)
    g("v_mov_b32 v6, 0"); g("v_mov_b32 v7, 0"); g("v_mov_b32 v8, 0"); g("v_mov_b32 v9, 0")
    g("ds_write_b128 v17, v[6:9]")
    g("v_lshrrev_b32 v2, 3, v0")
    g("v_and_b32 v3, 7, v0")
    g("v_lshrrev_b32 v4, 4, v0")
    g("v_lshlrev_b32 v4, 1, v4")
    g("v_xor_b32 v3, v3, v4")
    g("v_lshlrev_b32 v3, 4, v3")
    g("v_lshl_add_u32 v5, v2, 13, v3")
    g("s_lshr_b32 s41, s%d, 3" % S_I)
    g("s_mul_i32 s41, s41, %d" % (112 * 8192))
    g("s_lshl_b32 s42, s%d, 10" % S_KVH)
    g("s_add_u32 s41, s41, s42")
    g("s_and_b32 s42, s%d, 7" % S_I)
    g("s_lshl_b32 s42, s42, 7")
    g("s_add_u32 s41, s41, s42")
    g("s_mov_b32 m0, %d" % (AUX + WQ_T))
    g("s_mov_b32 s46, 14")
    g("s_waitcnt lgkmcnt(0)")
    g("s_add_u32 s44, s%d, s41" % S_WQ)
    g("s_addc_u32 s45, s%d, 0" % (S_WQ + 1))
    lp = g.lab("WQ")
    g(lp + ":")
    g("global_load_lds_dwordx4 v5, s[44:45] nt")
    g("s_add_u32 s44, s44, 65536")
    g("s_addc_u32 s45, s45, 0")
    g("s_add_u32 m0, m0, 1024")
    g("s_sub_u32 s46, s46, 1")
    g("s_cmp_lg_u32 s46, 0")
    g("s_cbranch_scc1 " + lp)
    g("s_barrier")
    g("v_mul_u32_u24 v6, 3584, v2")
    g("v_add_u32 v6, v6, v3")
    g("v_mul_u32_u24 v7, 896, v2")
    g("v_add_u32 v7, v7, v3")
    sk = g.lab("NOGU")
    g("s_cmp_eq_u32 s%d, 0" % S_G)
    g("s_cbranch_scc1 " + sk)
    g("s_and_b32 s41, s%d, 1" % S_GSL)
    g("s_cmp_eq_u32 s41, 0")
    g("s_cselect_b32 s44, s%d, s%d" % (S_WG, S_WU))
    g("s_cselect_b32 s45, s%d, s%d" % (S_WG + 1, S_WU + 1))
    g("s_lshr_b32 s41, s%d, 1" % S_GSL)
    g("s_mul_i32 s41, s41, %d" % (112 * 3584))
    g("s_lshl_b32 s42, s%d, 7" % S_GFB)
    g("s_add_u32 s41, s41, s42")
    g("s_add_u32 s44, s44, s41")
    g("s_addc_u32 s45, s45, 0")
    g("s_mov_b32 m0, %d" % (AUX + GU_T))
    g("s_mov_b32 s46, 14")
    lp = g.lab("GU")
    g(lp + ":")
    g("global_load_lds_dwordx4 v6, s[44:45] nt")
    g("s_add_u32 s44, s44, %d" % (8 * 3584))
    g("s_addc_u32 s45, s45, 0")
    g("s_add_u32 m0, m0, 1024")
    g("s_sub_u32 s46, s46, 1")
    g("s_cmp_lg_u32 s46, 0")
    g("s_cbranch_scc1 " + lp)
    g(sk + ":")
    g("v_lshrrev_b32 v8, 5, v0")
    g("v_and_b32 v9, 31, v0")
    g("v_lshlrev_b32 v10, 1, v8")
    g("v_xor_b32 v9, v9, v10")
    g("v_lshlrev_b32 v9, 4, v9")
    g("v_lshlrev_b32 v8, 9, v8")
    for u in range(4):
        g("v_xor_b32 v%d, %d, v9" % (12 + u, u * 64))
        g("v_add_u32 v%d, v%d, v8" % (12 + u, 12 + u))
    g("s_lshl_b32 s41, s%d, 3" % S_B)
    g("s_add_u32 s41, s41, s%d" % S_KVH)
    g("s_lshl_b32 s41, s41, 24")
    g("s_add_u32 s41, s41, %d" % (28672 * 512))
    g("s_lshl_b32 s42, s%d, 13" % S_J)
    g("s_add_u32 s41, s41, s42")
    g("s_add_u32 s44, s%d, s41" % S_K)
    g("s_addc_u32 s45, s%d, 0" % (S_K + 1))
    g("s_add_u32 s48, s%d, s41" % S_V)
    g("s_addc_u32 s49, s%d, 0" % (S_V + 1))
    g("s_add_u32 s47, s%d, 14" % S_G)
    g("s_mov_b32 m0, %d" % KV)
    def tile(sb, mid=None):
        for u in range(8):
            if u == 4:
                g("s_add_u32 s%d, s%d, 4096" % (sb, sb)); g("s_addc_u32 s%d, s%d, 0" % (sb + 1, sb + 1)); g("s_add_u32 m0, m0, 4096"); g("s_nop 0")
                if mid is not None: g("s_waitcnt vmcnt(%d)" % mid)
            g("global_load_lds_dwordx4 v%d, s[%d:%d] offset:%d nt" % (12 + (u & 3), sb, sb + 1, (u & 3) * 1024))
        g("s_add_u32 s%d, s%d, %d" % (sb, sb, 131072 - 4096)); g("s_addc_u32 s%d, s%d, 0" % (sb + 1, sb + 1)); g("s_add_u32 m0, m0, 4096")
        g("s_add_u32 s47, s47, 8")
    def flag(n):
        g("s_waitcnt vmcnt(%d)" % n)
        g("s_sub_u32 s46, s47, %d" % n)
        g("v_mov_b32 v18, s46")
        g("ds_write_b32 v16, v18")
    tile(44)
    has = g.lab("HASGU"); j2 = g.lab("J")
    g("s_cmp_eq_u32 s%d, 0" % S_G)
    g("s_cbranch_scc0 " + has)
    flag(8)
    tile(44)
    g("s_branch " + j2)
    g(has + ":")
    flag(22)
    tile(44)
    flag(16)
    g(j2 + ":")
    def kloop(n):
        lp = g.lab("KL")
        g("s_mov_b32 s43, %d" % n)
        g(lp + ":")
        tile(44)
        flag(g.WK or W)
        g("s_sub_u32 s43, s43, 1")
        g("s_cmp_lg_u32 s43, 0")
        g("s_cbranch_scc1 " + lp)
    def wait_prog(sthr):
        lp = g.lab("WP"); ex = g.lab("WPX")
        g("s_cmp_ge_i32 s%d, %s" % (S_LAND, sthr))
        g("s_cbranch_scc1 " + ex)
        g(lp + ":")
        g("ds_read_b128 v[20:23], v17")
        g("s_waitcnt lgkmcnt(0)")
        g("v_min3_i32 v20, v20, v21, v22")
        g("v_min_i32 v20, v20, v23")
        g("v_readfirstlane_b32 s%d, v20" % S_LAND)
        g("s_cmp_ge_i32 s%d, %s" % (S_LAND, sthr))
        g("s_cbranch_scc1 " + ex)
        budget_exit(g, ex)
        g("s_branch " + lp)
        g(ex + ":")
    kloop(6)
    sk = g.lab("NOG2")
    g("s_cmp_eq_u32 s%d, 0" % S_G2)
    g("s_cbranch_scc1 " + sk)
    wait_prog("1")
    g("s_mov_b32 s42, m0")
    g("s_lshr_b32 s41, s%d, 1" % S_KVH)
    g("s_mul_i32 s41, s41, %d" % (112 * 3584))
    g("s_lshl_b32 s46, s%d, 7" % S_I)
    g("s_add_u32 s41, s41, s46")
    g("s_add_u32 s62, s%d, s41" % S_WU)
    g("s_addc_u32 s63, s%d, 0" % (S_WU + 1))
    g("s_mov_b32 m0, %d" % (AUX + WQ_T))
    g("s_mov_b32 s46, 14")
    lp = g.lab("G2")
    g(lp + ":")
    g("global_load_lds_dwordx4 v6, s[62:63] nt")
    g("s_add_u32 s62, s62, %d" % (8 * 3584))
    g("s_addc_u32 s63, s63, 0")
    g("s_add_u32 m0, m0, 1024")
    g("s_sub_u32 s46, s46, 1")
    g("s_cmp_lg_u32 s46, 0")
    g("s_cbranch_scc1 " + lp)
    g("s_mov_b32 m0, s42")
    g("s_add_u32 s47, s47, 14")
    flag(W)
    g(sk + ":")
    kloop(8)
    g.stamp(1)
    def rows896(n, ptr, lds):
        g("s_add_u32 s62, s%d, s41" % ptr)
        g("s_addc_u32 s63, s%d, 0" % (ptr + 1))
        g("s_mov_b32 m0, %d" % lds)
        g("s_mov_b32 s46, %d" % n)
        lp = g.lab("RW")
        g(lp + ":")
        g("global_load_lds_dwordx4 v7, s[62:63] nt")
        g("s_add_u32 s62, s62, 7168")
        g("s_addc_u32 s63, s63, 0")
        g("s_add_u32 m0, m0, 1024")
        g("s_sub_u32 s46, s46, 1")
        g("s_cmp_lg_u32 s46, 0")
        g("s_cbranch_scc1 " + lp)
        g("s_add_u32 s47, s47, %d" % n)
    def wd_tile():
        g("s_mul_i32 s41, s%d, %d" % (S_DFB, 64 * 896))
        g("s_lshl_b32 s42, s%d, 7" % S_DCB)
        g("s_add_u32 s41, s41, s42")
        rows896(8, S_WD, AUX + WD_T)
    if not g.defer_wd:
        sk = g.lab("NOWD")
        g("s_cmp_eq_u32 s%d, 0" % S_D)
        g("s_cbranch_scc1 " + sk)
        wait_prog("4")
        wd_tile()
        flag(W)
        g(sk + ":")
    g("s_mov_b32 m0, %d" % KV)
    lp = g.lab("VL")
    g("s_mov_b32 s43, 0")
    g(lp + ":")
    g("s_lshr_b32 s41, s43, 2")
    g("s_lshr_b32 s42, s43, 3")
    g("s_add_u32 s41, s41, s42")
    g("s_add_u32 s41, s41, 2")
    wait_prog("s41")
    tile(48, g.Wmid if g.Wmid else None)
    if g.ldpre >= 0:
        sk = g.lab("NPT")
        g("s_cmp_lg_u32 s43, %d" % g.ldpre)
        g("s_cbranch_scc1 " + sk)
        g("s_lshl_b32 s41, s%d, 1" % S_KVH); g("s_add_u32 s41, s41, s%d" % S_B); g("s_lshl_b32 s41, s41, 4"); g("s_add_u32 s41, s41, s%d" % S_J)
        g("s_lshl_b32 s41, s41, 11"); g("s_add_u32 s41, s41, %d" % OP)
        g("v_lshlrev_b32 v19, 4, v0"); g("v_add_u32 v19, s41, v19")
        g("global_load_dwordx4 v[24:27], v19, s[%d:%d]" % (S_WS, S_WS + 1))
        g("global_load_dwordx4 v[28:31], v19, s[%d:%d] offset:1024" % (S_WS, S_WS + 1))
        g(sk + ":")
    flag(W)
    g("s_add_u32 s43, s43, 1")
    g("s_cmp_lg_u32 s43, 16")
    g("s_cbranch_scc1 " + lp)
    g.stamp(2)
    sk = g.lab("NOWO"); dn = g.lab("LDONE"); nod = g.lab("NODW")
    last = 8 if g.lastbar else 0
    def wo_tile():
        g("s_lshl_b32 s41, s%d, 2" % S_KVH)
        g("s_add_u32 s41, s41, s%d" % S_RBL)
        g("s_mul_i32 s41, s41, %d" % (128 * 896))
        g("s_lshl_b32 s42, s%d, 7" % S_CB)
        g("s_add_u32 s41, s41, s42")
        rows896(16, S_WO, AUX + WO_T)
    def drain(extra):
        n = W - 8 + extra
        while n > extra + last:
            flag(n); n -= 8
        flag(extra + last)
        if g.lastbar:
            g("s_waitcnt vmcnt(%d)" % extra)
            g("s_barrier")
    g("s_cmp_eq_u32 s%d, 0" % S_O)
    g("s_cbranch_scc1 " + sk)
    if g.defer_wd:
        g("s_cmp_eq_u32 s%d, 0" % S_D)
        g("s_cbranch_scc1 " + nod)
        wd_tile()
        wo_tile()
        drain(24)
        flag(16)
        flag(0)
        g("s_branch " + dn)
        g(nod + ":")
    wo_tile()
    drain(16)
    flag(0)
    g("s_branch " + dn)
    g(sk + ":")
    drain(0)
    g(dn + ":")
    g.stamp(3)
    g("s_waitcnt lgkmcnt(0)")
    if g.stamps: write_stamps(g)
    g("s_endpgm")

def wait_landed(g, sthr):
    lp = g.lab("WL"); ex = g.lab("WLX")
    g("s_cmp_ge_i32 s%d, %s" % (S_LAND, sthr))
    g("s_cbranch_scc1 " + ex)
    g(lp + ":")
    g("ds_read_b32 v%d, v%d" % (V_F, V_LR))
    g("s_waitcnt lgkmcnt(0)")
    g("v_readfirstlane_b32 s%d, v%d" % (S_LAND, V_F))
    g("s_cmp_ge_i32 s%d, %s" % (S_LAND, sthr))
    g("s_cbranch_scc1 " + ex)
    budget_exit(g, ex)
    if g.sleep_lds: g("s_sleep %d" % g.sleep_lds)
    g("s_branch " + lp)
    g(ex + ":")
def prog_set(g, val):
    g("v_mov_b32 v%d, %s" % (V_F, val))
    g("ds_write_b32 v%d, v%d" % (V_PW, V_F))
def wait_prog_c(g, val):
    lp = g.lab("WP"); ex = g.lab("WPX")
    t = V_W
    g(lp + ":")
    g("ds_read_b128 v[%d:%d], v%d" % (t, t + 3, V_PR))
    g("s_waitcnt lgkmcnt(0)")
    g("v_min3_i32 v%d, v%d, v%d, v%d" % (t, t, t + 1, t + 2))
    g("v_min_i32 v%d, v%d, v%d" % (t, t, t + 3))
    g("v_cmp_gt_i32 vcc, %s, v%d" % (val, t))
    g("s_cbranch_vccz " + ex)
    budget_exit(g, ex)
    g("s_branch " + lp)
    g(ex + ":")
def tag4(g, r):
    for k in range(4): g("v_bfi_b32 v%d, s%d, v%d, v%d" % (r + k, S_MASK, V_T + k, r + k))
def strip(g, r, n):
    for k in range(n): g("v_bfi_b32 v%d, s%d, v%d, v%d" % (r + k, S_MASK, V_MID, r + k))
def poll(g, emit_loads, regs, sleep, acc, masked_last=False, pre=False, count=False):
    lp = g.lab("PL"); ex = g.lab("PX"); ck = g.lab("PC")
    if count and g.stamps and not getattr(g, 'light', 0): g("s_mov_b32 s63, 0")
    if pre: g("s_branch " + ck)
    g(lp + ":")
    emit_loads()
    g(ck + ":")
    g("s_waitcnt vmcnt(0)")
    if count and g.stamps and not getattr(g, 'light', 0): g("s_add_u32 s63, s63, 1")
    first = True
    for idx, r in enumerate(regs):
        if masked_last and idx == len(regs) - 1: g("s_mov_b32 exec_hi, 0")
        for k in range(4):
            if first:
                g("v_xor_b32 v%d, v%d, v%d" % (acc, r + k, V_T + k)); first = False
            else:
                g("v_bitop3_b32 v%d, v%d, v%d, v%d bitop3:0xBE" % (acc, r + k, V_T + k, acc))
    if masked_last: g("s_mov_b64 exec, -1")
    g("v_and_b32 v%d, s%d, v%d" % (acc, S_MASK, acc))
    g("v_cmp_ne_u32 vcc, 0, v%d" % acc)
    g("s_cbranch_vccz " + ex)
    budget_exit(g, ex)
    if sleep: g("s_sleep %d" % sleep)
    g("s_branch " + lp)
    g(ex + ":")
    if count and g.stamps and not getattr(g, 'light', 0):
        g("s_waitcnt lgkmcnt(0)")
        g("s_mul_i32 s94, s63, 100"); g("s_add_u32 s94, s94, s64"); g("s_addc_u32 s95, s65, 0")
def poll_sel(g, loads, sleep, acc, count=False, first_allow=0):
    lp = g.lab("QL"); ex = g.lab("QX")
    if count and g.stamps and not getattr(g, 'light', 0): g("s_mov_b32 s63, 0")
    if first_allow:
        ck = g.lab("QC")
        g("s_cmp_eq_u32 s%d, 0" % S_D)
        g("s_cbranch_scc1 " + lp)
        g("s_waitcnt vmcnt(%d)" % first_allow)
        g("s_branch " + ck)
    g(lp + ":")
    g("s_waitcnt vmcnt(0)")
    if first_allow: g(ck + ":")
    if count and g.stamps and not getattr(g, 'light', 0): g("s_add_u32 s63, s63, 1")
    for u, (r, emit) in enumerate(loads):
        g("v_xor_b32 v%d, v%d, v%d" % (acc + u, r, V_T))
        for k in range(1, 4): g("v_bitop3_b32 v%d, v%d, v%d, v%d bitop3:0xBE" % (acc + u, r + k, V_T + k, acc + u))
    g("v_or3_b32 v%d, v%d, v%d, v%d" % (V_F, acc, acc + 1, acc + 2))
    g("v_or_b32 v%d, v%d, v%d" % (V_F, V_F, acc + 3))
    g("v_and_b32 v%d, s%d, v%d" % (V_F, S_MASK, V_F))
    g("v_cmp_ne_u32 vcc, 0, v%d" % V_F)
    g("s_cbranch_vccz " + ex)
    g("s_mov_b32 s46, 0")
    for u, (r, emit) in enumerate(loads):
        g("v_and_b32 v%d, s%d, v%d" % (acc + u, S_MASK, acc + u))
        g("v_cmp_ne_u32 vcc, 0, v%d" % (acc + u))
        g("s_cmp_lg_u64 vcc, 0")
        g("s_cselect_b32 s47, %d, 0" % (1 << u))
        g("s_or_b32 s46, s46, s47")
    budget_exit(g, ex)
    if sleep: g("s_sleep %d" % sleep)
    for u, (r, emit) in enumerate(loads):
        sk = g.lab("QS")
        g("s_bitcmp1_b32 s46, %d" % u)
        g("s_cbranch_scc0 " + sk)
        emit()
        g(sk + ":")
    g("s_branch " + lp)
    g(ex + ":")
    if count and g.stamps and not getattr(g, 'light', 0):
        g("s_waitcnt lgkmcnt(0)")
        g("s_mul_i32 s94, s63, 100"); g("s_add_u32 s94, s94, s64"); g("s_addc_u32 s95, s65, 0")
def T4(g, r):
    g("v_permlane16_swap_b32 v%d, v%d" % (r, r + 1))
    g("v_permlane16_swap_b32 v%d, v%d" % (r + 2, r + 3))
    g("v_add_f32 v%d, v%d, v%d" % (r, r, r + 1))
    g("v_add_f32 v%d, v%d, v%d" % (r + 2, r + 2, r + 3))
    g("v_permlane32_swap_b32 v%d, v%d" % (r, r + 2))
    g("v_add_f32 v%d, v%d, v%d" % (r, r, r + 2))
def rnd_bf16(g, dst, src):
    g("v_cvt_pk_bf16_f32 v%d, v%d, v%d" % (dst, src, src))
    g("v_and_b32 v%d, s%d, v%d" % (dst, S_HI, dst))
def allreduce16(g, op, regs):
    for sh in (8, 4, 2, 1):
        for r in regs: g("%s_dpp v%d, v%d, v%d row_ror:%d row_mask:0xf bank_mask:0xf" % (op, r, r, r, sh))
def xrow(g, op, regs, tmp):
    for w in (16, 32):
        for i, r in enumerate(regs): g("v_mov_b32 v%d, v%d" % (tmp + i, r))
        for i, r in enumerate(regs): g("v_permlane%d_swap_b32 v%d, v%d" % (w, r, tmp + i))
        for i, r in enumerate(regs): g("%s v%d, v%d, v%d" % (op, r, r, tmp + i))
def thin_tile16(g, nsteps, tr_off, vb, acc, tmp):
    for s in range(nsteps):
        g("ds_read_b64_tr_b16 v[%d:%d], v%d offset:%d" % (tmp + 4 * s, tmp + 4 * s + 1, V_TR, tr_off + s * 2048))
        g("ds_read_b64 v[%d:%d], v%d offset:%d" % (tmp + 4 * s + 2, tmp + 4 * s + 3, vb, s * 32))
    for s in range(nsteps):
        g("s_waitcnt lgkmcnt(%d)" % (2 * (nsteps - 1 - s)))
        g("v_mfma_f32_16x16x16_bf16 v[%d:%d], v[%d:%d], v[%d:%d], %s" % (acc, acc + 3, tmp + 4 * s, tmp + 4 * s + 1, tmp + 4 * s + 2, tmp + 4 * s + 3, "0" if s == 0 else "v[%d:%d]" % (acc, acc + 3)))
def store_n2(g, vaddr, r):
    g("s_mov_b64 exec, s[%d:%d]" % (S_EX, S_EX + 1))
    g("global_store_dwordx4 v%d, v[%d:%d], s[%d:%d] sc1" % (vaddr, r, r + 3, S_WS, S_WS + 1))
    g("s_mov_b64 exec, -1")
def gld(g, dst, vaddr, off=0, flags="sc1"):
    g("global_load_dwordx4 v[%d:%d], v%d, s[%d:%d]%s %s" % (dst, dst + 3, vaddr, S_WS, S_WS + 1, (" offset:%d" % off) if off else "", flags))
def part_addr(g, dst, base, s_cb, s_row):
    if g.spline:
        g("s_lshl_b32 s41, s%d, 14" % s_cb)
        g("s_lshl_b32 s42, s%d, 12" % S_CW); g("s_add_u32 s41, s41, s42")
        g("s_lshl_b32 s42, s%d, 7" % s_row); g("s_add_u32 s41, s41, s42")
        g("s_add_u32 s41, s41, %d" % base)
        g("v_lshlrev_b32 v%d, 6, v%d" % (dst, V_N))
        g("v_lshl_add_u32 v%d, v%d, 4, v%d" % (dst, V_KG, dst))
        g("v_add_u32 v%d, s41, v%d" % (dst, dst))
        return
    g("s_lshl_b32 s41, s%d, 14" % s_cb)
    g("s_lshr_b32 s42, s%d, 1" % S_CW); g("s_lshl_b32 s42, s42, 12"); g("s_add_u32 s41, s41, s42")
    g("s_lshl_b32 s42, s%d, 7" % s_row); g("s_add_u32 s41, s41, s42")
    g("s_and_b32 s42, s%d, 1" % S_CW); g("s_lshl_b32 s42, s42, 6"); g("s_add_u32 s41, s41, s42")
    g("s_add_u32 s41, s41, %d" % base)
    g("v_lshlrev_b32 v%d, 13, v%d" % (dst, V_N))
    g("v_lshl_add_u32 v%d, v%d, 4, v%d" % (dst, V_KG, dst))
    g("v_add_u32 v%d, s41, v%d" % (dst, dst))

def compute(g):
    g.c("================= compute waves =================")
    if getattr(g, "loaderonly", 0):
        g("s_waitcnt lgkmcnt(0)")
        g("s_barrier")
        g("v_mov_b32 v4, %d" % PROG); g("v_mov_b32 v8, 100"); g("v_mov_b32 v9, 100"); g("v_mov_b32 v10, 100"); g("v_mov_b32 v11, 100")
        g("ds_write_b128 v4, v[8:11]")
        g("s_waitcnt lgkmcnt(0)")
        if g.lastbar: g("s_barrier")
        if g.stamps: write_stamps(g)
        g("s_endpgm")
        return
    g("s_sub_u32 s%d, s%d, 1" % (S_CW, S_WAVE))
    g("v_min_u32 v3, 55, v0")
    g("v_lshlrev_b32 v3, 4, v3")
    g("v_and_b32 v%d, 15, v0" % V_N)
    g("v_lshrrev_b32 v%d, 4, v0" % V_KG)
    g("s_mov_b32 s%d, %d" % (S_MASK, TAGMASK))
    g("s_mov_b32 s%d, 0xffff0000" % S_HI)
    g("s_mov_b32 s%d, 0x00030003" % S_EX); g("s_mov_b32 s%d, 0x00030003" % (S_EX + 1))
    g("s_mov_b32 s%d, 0x3db8aa3b" % S_C)
    g("s_waitcnt lgkmcnt(0)")
    g("global_load_dwordx4 v[%d:%d], v3, s[%d:%d]" % (T, T + 3, S_X, S_X + 1))
    g("global_load_dwordx4 v[%d:%d], v3, s[%d:%d] offset:896" % (T + 4, T + 7, S_X, S_X + 1))
    g("s_load_dwordx2 s[%d:%d], s[%d:%d], 0" % (S_E, S_E + 1, S_WS, S_WS + 1))
    g("v_mov_b32 v%d, %d" % (V_MID, TAGMID))
    g("v_mov_b32 v%d, %d" % (V_PR, PROG))
    g("v_mov_b32 v%d, %d" % (V_LR, LAND))
    g("v_lshlrev_b32 v4, 2, v0")
    g("v_add_u32 v4, %d, v4" % JUNK)
    g("s_lshl_b32 s41, s%d, 2" % S_CW)
    g("s_add_u32 s41, s41, %d" % PROG)
    g("v_mov_b32 v5, s41")
    g("v_cmp_eq_u32 vcc, 0, v0")
    g("v_cndmask_b32 v%d, v4, v5, vcc" % V_PW)
    g("v_lshrrev_b32 v4, 2, v%d" % V_N)
    g("v_lshl_add_u32 v4, v%d, 2, v4" % V_KG)
    g("v_lshrrev_b32 v5, 1, v4")
    g("v_and_b32 v5, 3, v5")
    g("v_xor_b32 v5, s%d, v5" % S_CW)
    g("v_lshlrev_b32 v5, 5, v5")
    g("v_lshl_add_u32 v5, v4, 7, v5")
    g("v_and_b32 v6, 3, v%d" % V_N)
    g("v_lshl_add_u32 v5, v6, 3, v5")
    g("v_add_u32 v%d, %d, v5" % (V_TR, AUX))
    g("s_barrier")
    g.stamp(1)
    g.c("layernorm")
    F = T + 8
    g("v_cmp_gt_u32 vcc, 56, v0")
    g("s_waitcnt vmcnt(0)")
    for k in range(8): g("v_cndmask_b32 v%d, 0, v%d, vcc" % (T + k, T + k))
    for b in range(2):
        for k in range(4):
            g("v_lshlrev_b32 v%d, 16, v%d" % (F + 8 * b + 2 * k, T + 4 * b + k))
            g("v_and_b32 v%d, s%d, v%d" % (F + 8 * b + 2 * k + 1, S_HI, T + 4 * b + k))
    SUM = T + 24
    for b in range(2):
        f = F + 8 * b
        g("v_add_f32 v%d, v%d, v%d" % (SUM + b, f, f + 1))
        for k in range(2, 8): g("v_add_f32 v%d, v%d, v%d" % (SUM + b, SUM + b, f + k))
    allreduce16(g, "v_add_f32", [SUM, SUM + 1])
    xrow(g, "v_add_f32", [SUM, SUM + 1], SUM + 2)
    g("v_mov_b32 v4, 0x3b124925")
    for b in range(2): g("v_mul_f32 v%d, v%d, v4" % (SUM + b, SUM + b))
    VAR = T + 28
    for b in range(2):
        f = F + 8 * b
        for k in range(8):
            g("v_sub_f32 v5, v%d, v%d" % (f + k, SUM + b))
            if k == 0: g("v_mul_f32 v%d, v5, v5" % (VAR + b))
            else: g("v_fma_f32 v%d, v5, v5, v%d" % (VAR + b, VAR + b))
    for b in range(2): g("v_cndmask_b32 v%d, 0, v%d, vcc" % (VAR + b, VAR + b))
    allreduce16(g, "v_add_f32", [VAR, VAR + 1])
    xrow(g, "v_add_f32", [VAR, VAR + 1], VAR + 2)
    for b in range(2):
        g("v_mul_f32 v%d, v%d, v4" % (VAR + b, VAR + b))
        rnd_bf16(g, VAR + b, VAR + b)
        g("v_add_f32 v%d, 0x3727c5ac, v%d" % (VAR + b, VAR + b))
        rnd_bf16(g, VAR + b, VAR + b)
        g("v_sqrt_f32 v%d, v%d" % (VAR + b, VAR + b))
        rnd_bf16(g, VAR + b, VAR + b)
        g("v_rcp_f32 v%d, v%d" % (VAR + b, VAR + b))
        rnd_bf16(g, SUM + b, SUM + b)
    for b in range(2):
        f = F + 8 * b
        for k in range(0, 8, 2):
            g("v_sub_f32 v%d, v%d, v%d" % (f + k, f + k, SUM + b))
            g("v_sub_f32 v%d, v%d, v%d" % (f + k + 1, f + k + 1, SUM + b))
            g("v_cvt_pk_bf16_f32 v5, v%d, v%d" % (f + k, f + k + 1))
            g("v_lshlrev_b32 v%d, 16, v5" % (f + k))
            g("v_and_b32 v%d, s%d, v5" % (f + k + 1, S_HI))
            g("v_mul_f32 v%d, v%d, v%d" % (f + k, f + k, VAR + b))
            g("v_mul_f32 v%d, v%d, v%d" % (f + k + 1, f + k + 1, VAR + b))
            g("v_cvt_pk_bf16_f32 v%d, v%d, v%d" % (T + 4 * b + k // 2, f + k, f + k + 1))
    g("v_lshlrev_b32 v4, 4, v0")
    g("v_add_u32 v4, %d, v4" % XN)
    g("s_mov_b32 exec_hi, 0x00ffffff")
    g("ds_write_b128 v4, v[%d:%d]" % (T, T + 3))
    g("ds_write_b128 v4, v[%d:%d] offset:896" % (T + 4, T + 7))
    g("s_mov_b64 exec, -1")
    g("s_waitcnt lgkmcnt(0)")
    g("s_add_u32 s%d, s%d, 1" % (S_E, S_E))
    g("s_and_b32 s41, s%d, s%d" % (S_E, S_MASK)); g("v_mov_b32 v%d, s41" % V_T)
    g("s_lshr_b32 s41, s%d, 10" % S_E); g("s_and_b32 s41, s41, s%d" % S_MASK); g("v_mov_b32 v%d, s41" % (V_T + 1))
    g("s_lshr_b32 s41, s%d, 20" % S_E); g("s_and_b32 s41, s41, s%d" % S_MASK); g("v_mov_b32 v%d, s41" % (V_T + 2))
    g("s_lshr_b32 s41, s%d, 30" % S_E); g("s_lshl_b32 s42, s%d, 2" % (S_E + 1)); g("s_or_b32 s41, s41, s42"); g("s_and_b32 s41, s41, s%d" % S_MASK); g("v_mov_b32 v%d, s41" % (V_T + 3))
    g.stamp(2)
    g.cat = "qp"
    g.c("q partial")
    g("v_and_b32 v4, 1, v%d" % V_N)
    g("v_mul_u32_u24 v4, 896, v4")
    g("v_lshl_add_u32 v4, v%d, 3, v4" % V_KG)
    g("v_add_u32 v3, %d, v4" % XN)
    g("s_lshr_b32 s41, s%d, 3" % S_I)
    g("s_mul_i32 s41, s41, 224")
    g("v_add_u32 v4, s41, v3")
    g("v_lshlrev_b32 v5, 8, v%d" % V_N)
    g("v_lshl_add_u32 v5, v%d, 4, v5" % V_KG)
    g("s_lshl_b32 s41, s%d, 6" % S_CW)
    g("v_add_u32 v5, s41, v5")
    g("s_lshl_b32 s41, s%d, 14" % S_KVH)
    g("s_lshl_b32 s42, s%d, 9" % S_I)
    g("s_add_u32 s41, s41, s42")
    g("s_add_u32 s41, s41, %d" % QP)
    g("v_add_u32 v6, s41, v5")
    wait_landed(g, "14")
    thin_tile16(g, 7, WQ_T, 4, T + 32, T)
    tag4(g, T + 32)
    store_n2(g, 6, T + 32)
    g.stamp(3)
    prog_set(g, "1")
    g.cat = "xc"
    g("s_getreg_b32 s%d, hwreg(HW_REG_XCC_ID)" % S_XCC)
    g("s_and_b32 s%d, s%d, 15" % (S_XCC, S_XCC))
    sk = g.lab("NOXC")
    g("s_cmp_lg_u32 s%d, 0" % S_CW)
    g("s_cbranch_scc1 " + sk)
    g("s_lshl_b32 s41, s%d, 16" % S_XCC)
    for k in range(4): g("v_mov_b32 v%d, s41" % (V_X + k))
    tag4(g, V_X)
    g("s_lshl_b32 s41, s%d, 9" % S_KVH); g("s_lshl_b32 s42, s%d, 4" % S_I); g("s_add_u32 s41, s41, s42"); g("s_add_u32 s41, s41, %d" % XC)
    g("v_mov_b32 v7, s41")
    g("s_mov_b64 exec, 1")
    g("global_store_dwordx4 v7, v[%d:%d], s[%d:%d] sc1" % (V_X, V_X + 3, S_WS, S_WS + 1))
    g("s_mov_b64 exec, -1")
    g(sk + ":")
    g.cat = "gp"
    g.c("gate/up partial")
    sk = g.lab("NOGU")
    g("s_cmp_eq_u32 s%d, 0" % S_G)
    g("s_cbranch_scc1 " + sk)
    g("s_lshr_b32 s41, s%d, 1" % S_GSL)
    g("s_mul_i32 s41, s41, 224")
    g("v_add_u32 v4, s41, v3")
    g("s_lshl_b32 s41, s%d, 12" % S_GFB)
    g("s_lshl_b32 s42, s%d, 9" % S_GSL)
    g("s_add_u32 s41, s41, s42")
    g("s_add_u32 s41, s41, %d" % GP)
    g("v_add_u32 v6, s41, v5")
    wait_landed(g, "28")
    thin_tile16(g, 7, GU_T, 4, V_S, T)
    tag4(g, V_S)
    store_n2(g, 6, V_S)
    g(sk + ":")
    g("v_mov_b32 v%d, v4" % (V_S + 4))
    g("v_add_u32 v%d, 512, v6" % (V_S + 5))
    g.cat = "ldq"
    g.c("K tiles to registers")
    g("v_and_b32 v8, 7, v%d" % V_N)
    g("v_lshlrev_b32 v8, 1, v8")
    g("s_lshl_b32 s41, s%d, 13" % S_CW)
    g("v_lshlrev_b32 v9, 9, v%d" % V_N)
    g("v_add_u32 v9, s41, v9")
    for s3 in range(4):
        g("v_add_u32 v%d, %d, v%d" % (4 + s3, 4 * s3, V_KG))
        g("v_xor_b32 v%d, v%d, v8" % (4 + s3, 4 + s3))
        g("v_lshl_add_u32 v%d, v%d, 4, v9" % (4 + s3, 4 + s3))
    g("s_lshl_b32 s41, s%d, 14" % S_KVH)
    g("s_lshl_b32 s42, s%d, 10" % S_CW)
    g("s_add_u32 s41, s41, s42")
    g("s_lshl_b32 s42, s%d, 8" % S_B)
    g("s_add_u32 s41, s41, s42")
    g("s_add_u32 s41, s41, %d" % QP)
    g("v_lshlrev_b32 v10, 12, v%d" % V_KG)
    g("v_lshl_add_u32 v10, v%d, 4, v10" % V_N)
    g("v_add_u32 v10, s41, v10")
    g("s_min_u32 s41, s%d, 27" % S_DFB)
    g("s_lshl_b32 s41, s41, 12")
    g("s_and_b32 s42, s%d, 1" % S_CW)
    g("s_lshl_b32 s42, s42, 8")
    g("s_add_u32 s41, s41, s42"); g("s_add_u32 s41, s41, %d" % GP)
    g("v_lshlrev_b32 v11, 10, v%d" % V_KG)
    g("v_lshl_add_u32 v11, v%d, 4, v11" % V_N)
    g("v_add_u32 v11, s41, v11")
    g("s_lshl_b32 s41, s%d, 9" % S_KVH); g("s_add_u32 s41, s41, %d" % XC)
    g("v_and_b32 v22, 31, v0"); g("v_lshlrev_b32 v22, 4, v22"); g("v_add_u32 v22, s41, v22")
    def ldq():
        gld(g, T, 10); gld(g, T + 4, 10, 512); gld(g, V_X, 22)
    def ldg():
        gld(g, V_G, 11); gld(g, V_G + 4, 11, 512)
    for r in range(4):
        if r == g.q_issue_at: ldq()
        g("s_lshl_b32 s41, s%d, 3" % S_CW)
        g("s_add_u32 s41, s41, s%d" % S_BK)
        g("s_add_u32 s41, s41, %d" % (8 + 32 * r))
        if r >= 2: g("s_add_u32 s41, s41, s%d" % S_G2)
        wait_landed(g, "s41")
        for s in range(8):
            g("ds_read_b128 v[%d:%d], v%d offset:%d" % (V_K + 32 * r + 4 * s, V_K + 32 * r + 4 * s + 3, 4 + (s & 3), (s >> 2) * 256 + (r & 1) * 32768))
        if r == 1:
            for s3 in range(4): g("v_add_u32 v%d, 0x10000, v%d" % (4 + s3, 4 + s3))
        g("s_waitcnt lgkmcnt(0)")
        prog_set(g, str(2 + r + (1 if r >= 2 else 0)))
        if r == 1:
            sk = g.lab("NOG2")
            g("s_cmp_eq_u32 s%d, 0" % S_G2)
            g("s_cbranch_scc1 " + sk)
            g("s_add_u32 s41, s%d, s%d" % (S_BK, S_G2)); g("s_add_u32 s41, s41, 64")
            wait_landed(g, "s41")
            thin_tile16(g, 7, WQ_T, V_S + 4, V_S, V_Q)
            tag4(g, V_S)
            store_n2(g, V_S + 5, V_S)
            g(sk + ":")
            prog_set(g, "4")
    g.stamp(4)
    g.c("gather q")
    poll(g, ldq, [T, T + 4, V_X], g.sleep_mid, T + 8, pre=True)
    sk = g.lab("NOGL")
    g("s_cmp_eq_u32 s%d, 0" % S_D); g("s_cbranch_scc1 " + sk)
    g("s_cmp_ge_u32 s%d, 2" % S_CW); g("s_cbranch_scc1 " + sk)
    ldg()
    g(sk + ":")
    g("v_lshrrev_b32 v%d, 16, v%d" % (V_X, V_X))
    g("v_cmp_eq_u32 vcc, s%d, v%d" % (S_XCC, V_X))
    g("s_nop 0")
    g("s_cmp_eq_u64 vcc, exec")
    g("s_cselect_b32 s%d, %d, 0" % (S_FAST, 1 if g.fast else 0))
    strip(g, T, 8)
    T4(g, T); T4(g, T + 4)
    g("v_cvt_pk_bf16_f32 v%d, v%d, v%d" % (T, T, T + 4))
    g("s_lshr_b32 s41, s%d, 1" % S_CW); g("s_lshl_b32 s41, s41, 9")
    g("s_and_b32 s42, s%d, 1" % S_CW); g("s_lshl_b32 s42, s42, 8")
    g("s_add_u32 s41, s41, s42"); g("s_add_u32 s41, s41, %d" % QB)
    g("v_lshlrev_b32 v4, 3, v%d" % V_N)
    g("v_lshl_add_u32 v4, v%d, 1, v4" % V_KG)
    g("v_add_u32 v4, s41, v4")
    g("ds_write_b16 v4, v%d" % T)
    g("ds_write_b16_d16_hi v4, v%d offset:128" % T)
    prog_set(g, "7")
    wait_prog_c(g, "7")
    g("v_and_b32 v4, 1, v%d" % V_N)
    g("v_lshlrev_b32 v4, 9, v4")
    g("v_lshl_add_u32 v4, v%d, 4, v4" % V_KG)
    g("v_add_u32 v4, %d, v4" % QB)
    for s in range(8): g("ds_read_b128 v[%d:%d], v4 offset:%d" % (V_Q + 4 * s, V_Q + 4 * s + 3, s * 64))
    g.c("QK")
    for s in range(8):
        g("s_waitcnt lgkmcnt(%d)" % (7 - s))
        for r in range(4):
            g("v_mfma_f32_16x16x32_bf16 v[%d:%d], v[%d:%d], v[%d:%d], %s" % (V_S + 4 * r, V_S + 4 * r + 3, V_K + 32 * r + 4 * s, V_K + 32 * r + 4 * s + 3, V_Q + 4 * s, V_Q + 4 * s + 3, "0" if s == 0 else "v[%d:%d]" % (V_S + 4 * r, V_S + 4 * r + 3)))
    g.stamp(5)
    g.cat = "st"
    g.c("softmax")
    for k in range(0, 16, 2):
        g("v_cvt_pk_bf16_f32 v4, v%d, v%d" % (V_S + k, V_S + k + 1))
        g("v_lshlrev_b32 v%d, 16, v4" % (V_S + k))
        g("v_and_b32 v%d, s%d, v4" % (V_S + k + 1, S_HI))
    g("v_max3_f32 v4, v%d, v%d, v%d" % (V_S, V_S + 1, V_S + 2))
    for k in range(3, 15, 2): g("v_max3_f32 v4, v4, v%d, v%d" % (V_S + k, V_S + k + 1))
    g("v_max_f32 v4, v4, v%d" % (V_S + 15))
    xrow(g, "v_max_f32", [4], 5)
    g("v_and_b32 v6, 1, v%d" % V_N)
    g("v_lshlrev_b32 v6, 4, v6")
    g("v_add_u32 v6, %d, v6" % WM)
    g("s_lshl_b32 s41, s%d, 2" % S_CW)
    g("v_add_u32 v7, s41, v6")
    g("ds_write_b32 v7, v4")
    prog_set(g, "8")
    wait_prog_c(g, "8")
    g("ds_read_b128 v[%d:%d], v6" % (T, T + 3))
    g("s_waitcnt lgkmcnt(0)")
    g("v_max3_f32 v4, v%d, v%d, v%d" % (T, T + 1, T + 2))
    g("v_max_f32 v4, v4, v%d" % (T + 3))
    g("v_mul_f32 v5, s%d, v4" % S_C)
    for k in range(16):
        g("v_fma_f32 v%d, v%d, s%d, -v5" % (V_S + k, V_S + k, S_C))
    for k in range(16): g("v_exp_f32 v%d, v%d" % (V_S + k, V_S + k))
    g("v_add_f32 v8, v%d, v%d" % (V_S, V_S + 1))
    for k in range(2, 16): g("v_add_f32 v8, v8, v%d" % (V_S + k))
    xrow(g, "v_add_f32", [8], 9)
    g("ds_write_b32 v7, v8 offset:%d" % (WL - WM))
    g("v_and_b32 v9, 1, v%d" % V_N)
    g("v_lshlrev_b32 v9, 5, v9")
    g("v_lshl_add_u32 v9, v%d, 3, v9" % V_KG)
    g("v_add_u32 v3, %d, v9" % PB)
    g("s_lshl_b32 s41, s%d, 6" % S_CW)
    g("v_add_u32 v10, s41, v3")
    for r in range(4):
        g("v_cvt_pk_bf16_f32 v%d, v%d, v%d" % (T + 2 * r, V_S + 4 * r, V_S + 4 * r + 1))
        g("v_cvt_pk_bf16_f32 v%d, v%d, v%d" % (T + 2 * r + 1, V_S + 4 * r + 2, V_S + 4 * r + 3))
        g("ds_write_b64 v10, v[%d:%d] offset:%d" % (T + 2 * r, T + 2 * r + 1, r * 256))
    prog_set(g, "9")
    wait_prog_c(g, "9")
    sk = g.lab("NOST")
    g("s_cmp_lg_u32 s%d, 0" % S_CW)
    g("s_cbranch_scc1 " + sk)
    g("ds_read_b128 v[%d:%d], v6 offset:%d" % (T, T + 3, WL - WM))
    g("s_waitcnt lgkmcnt(0)")
    g("v_add_f32 v%d, v%d, v%d" % (T, T, T + 1))
    g("v_add_f32 v%d, v%d, v%d" % (T + 2, T + 2, T + 3))
    g("v_add_f32 v%d, v%d, v%d" % (T + 1, T, T + 2))
    g("v_mov_b32 v%d, v4" % T)
    g("v_mov_b32 v%d, v4" % (T + 2))
    g("v_mov_b32 v%d, v%d" % (T + 3, T + 1))
    tag4(g, T)
    g("s_lshl_b32 s41, s%d, 1" % S_KVH); g("s_add_u32 s41, s41, s%d" % S_B); g("s_lshl_b32 s41, s41, 4"); g("s_add_u32 s41, s41, s%d" % S_J)
    g("s_lshl_b32 s41, s41, 5"); g("s_add_u32 s41, s41, %d" % ST)
    g("v_lshlrev_b32 v5, 4, v0")
    g("v_add_u32 v5, s41, v5")
    g("s_mov_b64 exec, 3")
    g("global_store_dwordx4 v5, v[%d:%d], s[%d:%d] sc1" % (T, T + 3, S_WS, S_WS + 1))
    g("s_mov_b64 exec, -1")
    g(sk + ":")
    g.stamp(6)
    g.cat = "ffn"
    g.c("ffn down partial")
    sk = g.lab("NOFFN")
    g("s_cmp_eq_u32 s%d, 0" % S_D)
    g("s_cbranch_scc1 " + sk)
    sk2 = g.lab("NOH")
    g("s_cmp_ge_u32 s%d, 2" % S_CW)
    g("s_cbranch_scc1 " + sk2)
    poll(g, ldg, [V_G, V_G + 4], g.sleep_mid, T + 8, pre=True)
    strip(g, V_G, 8)
    T4(g, V_G); T4(g, V_G + 4)
    rnd_bf16(g, T, V_G); rnd_bf16(g, T + 4, V_G + 4)
    g("v_mul_f32 v5, v%d, v%d" % (T, T))
    g("v_mov_b32 v6, 0x3d372713")
    g("v_fma_f32 v5, v5, v6, 1.0")
    g("v_mul_f32 v5, v5, v%d" % T)
    g("v_mul_f32 v5, 0xc0135761, v5")
    g("v_exp_f32 v5, v5")
    g("v_add_f32 v5, 1.0, v5")
    g("v_rcp_f32 v5, v5")
    g("v_mul_f32 v5, v5, v%d" % T)
    rnd_bf16(g, 5, 5)
    g("v_mul_f32 v5, v5, v%d" % (T + 4))
    g("v_cvt_pk_bf16_f32 v5, v5, v5")
    g("s_lshl_b32 s41, s%d, 7" % S_CW); g("s_add_u32 s41, s41, %d" % HB)
    g("v_lshlrev_b32 v4, 3, v%d" % V_N)
    g("v_lshl_add_u32 v4, v%d, 1, v4" % V_KG)
    g("v_add_u32 v4, s41, v4")
    g("ds_write_b16 v4, v5")
    g(sk2 + ":")
    prog_set(g, "10")
    if not g.defer_wd:
        part_addr(g, 6, YP, S_DCB, S_DFB)
        g("v_and_b32 v4, 1, v%d" % V_N)
        g("v_lshlrev_b32 v4, 7, v4")
        g("v_lshl_add_u32 v4, v%d, 3, v4" % V_KG)
        g("v_add_u32 v4, %d, v4" % HB)
        wait_prog_c(g, "10")
        wait_landed(g, "s%d" % S_BV)
        thin_tile16(g, 4, WD_T, 4, T + 16, T)
        tag4(g, T + 16)
        store_n2(g, 6, T + 16)
    else:
        wait_prog_c(g, "10")
    g(sk + ":")
    g.stamp(7)
    g.c("tail addresses")
    g("s_lshl_b32 s41, s%d, 1" % S_KVH); g("s_add_u32 s41, s41, s%d" % S_B); g("s_lshl_b32 s41, s41, 4"); g("s_add_u32 s41, s41, s%d" % S_J)
    g("s_lshl_b32 s41, s41, 11")
    g("s_lshl_b32 s42, s%d, 8" % S_CW); g("s_add_u32 s41, s41, s42"); g("s_add_u32 s41, s41, %d" % OP)
    g("v_lshlrev_b32 v%d, 10, v%d" % (A_PUB, V_N))
    g("v_lshl_add_u32 v%d, v%d, 4, v%d" % (A_PUB, V_KG, A_PUB))
    g("v_add_u32 v%d, s41, v%d" % (A_PUB, A_PUB))
    g("v_bfe_u32 v23, v0, 4, 1"); g("v_lshlrev_b32 v23, 10, v23"); g("v_lshl_add_u32 v23, v%d, 4, v23" % V_N); g("v_add_u32 v23, s41, v23")
    g("s_lshl_b32 s41, s%d, 1" % S_KVH); g("s_lshr_b32 s42, s%d, 1" % S_CW); g("s_add_u32 s41, s41, s42"); g("s_lshl_b32 s41, s41, 15")
    g("s_and_b32 s42, s%d, 3" % S_RBL); g("s_lshl_b32 s42, s42, 9"); g("s_add_u32 s41, s41, s42")
    g("s_and_b32 s42, s%d, 1" % S_CW); g("s_lshl_b32 s42, s42, 8"); g("s_add_u32 s41, s41, s42")
    g("s_add_u32 s41, s41, %d" % OP)
    g("v_lshlrev_b32 v%d, 11, v%d" % (A_G0, V_KG))
    g("v_lshl_add_u32 v%d, v%d, 4, v%d" % (A_G0, V_N, A_G0))
    g("v_add_u32 v%d, s41, v%d" % (A_G0, A_G0))
    for u in range(1, 4): g("v_add_u32 v%d, %d, v%d" % (A_G0 + u, 8192 * u, A_G0))
    g("v_lshrrev_b32 v8, 3, v%d" % V_N); g("v_lshlrev_b32 v8, 5, v8")
    g("v_and_b32 v9, 3, v%d" % V_N); g("v_lshl_add_u32 v8, v9, 3, v8")
    g("v_bfe_u32 v9, v%d, 2, 1" % V_N); g("v_lshl_add_u32 v8, v9, 2, v8")
    g("v_add_u32 v8, v8, v%d" % V_KG); g("v_lshlrev_b32 v8, 1, v8")
    g("s_lshr_b32 s41, s%d, 1" % S_CW); g("s_lshl_b32 s41, s41, 8")
    g("s_and_b32 s42, s%d, 1" % S_CW); g("s_lshl_b32 s42, s42, 7"); g("s_add_u32 s41, s41, s42"); g("s_add_u32 s41, s41, %d" % OB)
    g("v_add_u32 v%d, s41, v8" % A_OBW)
    g("v_and_b32 v9, 1, v%d" % V_N); g("v_lshlrev_b32 v9, 8, v9"); g("v_lshl_add_u32 v9, v%d, 4, v9" % V_KG); g("v_add_u32 v%d, %d, v9" % (A_OBR, OB))
    g("s_lshl_b32 s45, s%d, 2" % S_KVH); g("s_add_u32 s45, s45, s%d" % S_RBL); g("s_and_b32 s45, s45, 31")
    g("s_min_u32 s46, s%d, 6" % S_CB)
    part_addr(g, A_SP, SP, 46, 45)
    g("s_lshl_b32 s41, s%d, 10" % S_KVH)
    g("s_lshr_b32 s42, s%d, 1" % S_RBL); g("s_and_b32 s42, s42, 1"); g("s_lshl_b32 s42, s42, 4"); g("s_add_u32 s41, s41, s42")
    g("s_add_u32 s41, s41, %d" % ST)
    g("v_and_b32 v%d, 31, v0" % A_STA)
    g("v_lshlrev_b32 v%d, 5, v%d" % (A_STA, A_STA))
    g("v_add_u32 v%d, s41, v%d" % (A_STA, A_STA))
    if g.spline:
        g("s_min_u32 s47, s%d, 27" % S_F)
        g("s_lshl_b32 s41, s47, 12")
        g("v_lshlrev_b32 v%d, 4, v0" % A_PART)
        g("v_add_u32 v%d, s41, v%d" % (A_PART, A_PART))
        g("v_bfe_u32 v8, v0, 2, 1"); g("v_mul_u32_u24 v8, 448, v8")
        g("v_and_b32 v9, 3, v0"); g("v_lshl_add_u32 v8, v9, 2, v8"); g("v_add_u32 v8, v8, v%d" % V_KG)
        g("s_lshl_b32 s42, s47, 4")
        g("v_add_u32 v8, s42, v8")
        g("v_lshlrev_b32 v%d, 1, v8" % A_OUT)
    else:
        g("s_min_u32 s47, s%d, 27" % S_F)
        g("s_cmp_ge_u32 s47, 14"); g("s_cselect_b32 s42, 1, 0")
        g("s_mul_i32 s43, s42, 14"); g("s_sub_u32 s43, s47, s43")
        g("s_lshr_b32 s44, s43, 1")
        g("s_and_b32 s43, s43, 1")
        g("s_lshl_b32 s41, s44, 1"); g("s_add_u32 s41, s41, s42"); g("s_lshl_b32 s41, s41, 1"); g("s_add_u32 s41, s41, s43"); g("s_lshl_b32 s41, s41, 12")
        g("v_lshlrev_b32 v%d, 4, v0" % A_PART)
        g("v_add_u32 v%d, s41, v%d" % (A_PART, A_PART))
        g("s_mul_i32 s42, s42, 448"); g("s_lshl_b32 s44, s44, 6"); g("s_add_u32 s42, s42, s44"); g("s_lshl_b32 s43, s43, 5"); g("s_add_u32 s42, s42, s43")
        g("v_and_b32 v%d, 7, v0" % A_OUT)
        g("v_lshl_add_u32 v%d, v%d, 2, v%d" % (A_OUT, A_OUT, V_KG))
        g("v_add_u32 v%d, s42, v%d" % (A_OUT, A_OUT))
        g("v_lshlrev_b32 v%d, 1, v%d" % (A_OUT, A_OUT))
    if g.defer_wd:
        part_addr(g, A_YP, YP, S_DCB, S_DFB)
        g("v_and_b32 v%d, 1, v%d" % (A_HB, V_N))
        g("v_lshlrev_b32 v%d, 7, v%d" % (A_HB, A_HB))
        g("v_lshl_add_u32 v%d, v%d, 3, v%d" % (A_HB, V_KG, A_HB))
        g("v_add_u32 v%d, %d, v%d" % (A_HB, HB, A_HB))
    g.cat = "pre"
    g.c("PV")
    g("v_lshrrev_b32 v8, 2, v%d" % V_N)
    g("v_lshl_add_u32 v8, v%d, 2, v8" % V_KG)
    g("v_and_b32 v9, 7, v8")
    g("v_lshlrev_b32 v8, 9, v8")
    g("v_and_b32 v10, 3, v%d" % V_N)
    g("v_lshl_add_u32 v8, v10, 3, v8")
    g("s_lshl_b32 s41, s%d, 2" % S_CW)
    for mt in range(4):
        g("s_add_u32 s42, s41, %d" % mt)
        g("v_xor_b32 v%d, s42, v9" % (4 + mt))
        g("v_lshl_add_u32 v%d, v%d, 5, v8" % (4 + mt, 4 + mt))
    for k in range(16): g("v_mov_b32 v%d, 0" % (V_ACC + k))
    g("s_add_u32 s%d, s%d, 8" % (S_THR, S_BV))
    def pv_body():
        for mt in range(4): g("ds_read_b64_tr_b16 v[%d:%d], v%d" % (T + 2 + 2 * mt, T + 3 + 2 * mt, 4 + mt))
    def pv_mfma():
        for mt in range(4):
            g("s_waitcnt lgkmcnt(%d)" % (3 - mt))
            g("v_mfma_f32_16x16x16_bf16 v[%d:%d], v[%d:%d], v[%d:%d], v[%d:%d]" % (V_ACC + 4 * mt, V_ACC + 4 * mt + 3, T + 2 + 2 * mt, T + 3 + 2 * mt, T, T + 1, V_ACC + 4 * mt, V_ACC + 4 * mt + 3))
    def pv_loop(n):
        g("s_mov_b32 s%d, %d" % (S_CNT, n))
        lp = g.lab("PV")
        g(lp + ":")
        wait_landed(g, "s%d" % S_THR)
        g("ds_read_b64 v[%d:%d], v3" % (T, T + 1))
        pv_body()
        for mt in range(4): g("v_add_u32 v%d, 8192, v%d" % (4 + mt, 4 + mt))
        g("v_add_u32 v3, 64, v3")
        g("s_add_u32 s%d, s%d, 8" % (S_THR, S_THR))
        g("s_sub_u32 s%d, s%d, 1" % (S_CNT, S_CNT))
        pv_mfma()
        g("s_cmp_lg_u32 s%d, 0" % S_CNT)
        g("s_cbranch_scc1 " + lp)
    pv_loop(g.stat_at)
    fin = g.lab("PFIN"); jn = g.lab("PJN")
    g("s_cmp_eq_u32 s%d, 0" % S_O)
    g("s_cbranch_scc1 " + fin)
    gld(g, V_ST, A_STA)
    g(fin + ":")
    if g.ldpre < 0: gld(g, V_G, 23)
    g.stamp(8)
    if g.lastbar:
        pv_loop(15 - g.stat_at)
        g("ds_read_b64 v[%d:%d], v3" % (T, T + 1))
        g("s_waitcnt lgkmcnt(0)")
        g("s_barrier")
        pv_body()
        pv_mfma()
    else:
        pv_loop(16 - g.stat_at)
    g.stamp(9)
    g.cat = "op"
    g.c("publish o")
    for mt in range(4): tag4(g, V_ACC + 4 * mt)
    g("s_mov_b64 exec, s[%d:%d]" % (S_EX, S_EX + 1))
    slow = g.lab("OSLOW"); dn = g.lab("ODONE")
    g("s_cmp_eq_u32 s%d, 0" % S_FAST)
    g("s_cbranch_scc1 " + slow)
    for mt in range(4):
        g("global_store_dwordx4 v%d, v[%d:%d], s[%d:%d] offset:%d" % (A_PUB, V_ACC + 4 * mt, V_ACC + 4 * mt + 3, S_WS, S_WS + 1, mt * 64))
    g("s_branch " + dn)
    g(slow + ":")
    for mt in range(4):
        g("global_store_dwordx4 v%d, v[%d:%d], s[%d:%d] offset:%d sc1" % (A_PUB, V_ACC + 4 * mt, V_ACC + 4 * mt + 3, S_WS, S_WS + 1, mt * 64))
    g(dn + ":")
    g("s_mov_b64 exec, -1")
    g.stamp(10)
    fin = g.lab("FIN2"); end = g.lab("CEND")
    g("s_cmp_eq_u32 s%d, 0" % S_O)
    g("s_cbranch_scc1 " + fin)
    g.cat = "tail"
    g.c("stats")
    lp = g.lab("SL"); ex = g.lab("SX")
    g("s_waitcnt vmcnt(4)")
    g(lp + ":")
    g("v_xor_b32 v57, v%d, v%d" % (V_ST, V_T))
    for k in range(1, 4): g("v_bitop3_b32 v57, v%d, v%d, v57 bitop3:0xBE" % (V_ST + k, V_T + k))
    g("v_and_b32 v57, s%d, v57" % S_MASK)
    g("v_cmp_ne_u32 vcc, 0, v57")
    g("s_cbranch_vccz " + ex)
    budget_exit(g, ex)
    gld(g, V_ST, A_STA)
    g("s_waitcnt vmcnt(0)")
    g("s_branch " + lp)
    g(ex + ":")
    def ldo():
        for u in range(4): gld(g, T + 4 * u, A_G0 + u)
    ldo()
    Z = V_ST
    g("v_and_b32 v%d, s%d, v%d" % (Z, S_HI, Z))
    strip(g, Z + 1, 1)
    g("v_mov_b32 v57, v%d" % Z)
    allreduce16(g, "v_max_f32", [57])
    g("v_sub_f32 v57, v%d, v57" % Z)
    g("v_mul_f32 v57, s%d, v57" % S_C)
    g("v_exp_f32 v57, v57")
    g("v_mul_f32 v58, v57, v%d" % (Z + 1))
    allreduce16(g, "v_add_f32", [58])
    g("v_rcp_f32 v58, v58")
    g("v_mul_f32 v57, v57, v58")
    g("s_lshr_b32 s41, s%d, 1" % S_CW); g("s_lshl_b32 s41, s41, 6")
    g("v_lshlrev_b32 v58, 2, v%d" % V_KG)
    g("v_add_u32 v58, s41, v58")
    for u in range(4):
        g("v_add_u32 v59, %d, v58" % (16 * u))
        g("ds_bpermute_b32 v%d, v59, v57" % (V_C + u))
    if g.defer_wd:
        sk = g.lab("NOYP")
        g("s_cmp_eq_u32 s%d, 0" % S_D)
        g("s_cbranch_scc1 " + sk)
        g("s_add_u32 s41, s%d, 136" % S_BV)
        wait_landed(g, "s41")
        thin_tile16(g, 4, WD_T, A_HB, 192, 160)
        tag4(g, 192)
        store_n2(g, A_YP, 192)
        g(sk + ":")
    g("s_add_u32 s41, s%d, 144" % S_BV)
    if g.defer_wd: g("s_add_u32 s41, s41, s%d" % S_D)
    wait_landed(g, "s41")
    A = V_Q
    for s in range(4):
        g("ds_read_b64_tr_b16 v[%d:%d], v%d offset:%d" % (A + 8 * s, A + 8 * s + 1, V_TR, WO_T + s * 4096))
        g("ds_read_b64_tr_b16 v[%d:%d], v%d offset:%d" % (A + 8 * s + 2, A + 8 * s + 3, V_TR, WO_T + s * 4096 + 2048))
    g.c("gather o")
    if g.selpoll:
        poll_sel(g, [(T + 4 * u, (lambda u=u: gld(g, T + 4 * u, A_G0 + u))) for u in range(4)], g.sleep_tail, T + 16, count=True, first_allow=(1 if g.defer_wd else 0))
    else:
        poll(g, ldo, [T, T + 4, T + 8, T + 12], g.sleep_tail, T + 16, pre=True, count=True)
    g.stamp(12)
    if not g.nostrip: strip(g, T, 16)
    g("s_waitcnt lgkmcnt(0)")
    for k in range(4): g("v_mul_f32 v%d, v%d, v%d" % (T + k, T + k, V_C))
    for u in range(1, 4):
        for k in range(4): g("v_fma_f32 v%d, v%d, v%d, v%d" % (T + k, T + 4 * u + k, V_C + u, T + k))
    T4(g, T)
    g("v_cvt_pk_bf16_f32 v%d, v%d, v%d" % (T, T, T))
    g("ds_write_b16 v%d, v%d" % (A_OBW, T))
    g("s_waitcnt lgkmcnt(0)")
    g("s_barrier")
    g.stamp(13)
    for s in range(4):
        g("ds_read_b128 v[%d:%d], v%d offset:%d" % (A + 8 * s + 4, A + 8 * s + 7, A_OBR, s * 64))
    for s in range(4):
        g("s_waitcnt lgkmcnt(%d)" % (3 - s))
        g("v_mfma_f32_16x16x32_bf16 v[%d:%d], v[%d:%d], v[%d:%d], %s" % (T, T + 3, A + 8 * s, A + 8 * s + 3, A + 8 * s + 4, A + 8 * s + 7, "0" if s == 0 else "v[%d:%d]" % (T, T + 3)))
    tag4(g, T)
    store_n2(g, A_SP, T)
    if g.wbl2:
        sk = g.lab("NOWB")
        g("s_cmp_lg_u32 s%d, 0" % S_CW); g("s_cbranch_scc1 " + sk)
        if g.wbl2 == 1:
            g("s_cmp_lg_u32 s%d, 0" % S_I); g("s_cbranch_scc1 " + sk)
        g("buffer_wbl2 sc1")
        g(sk + ":")
    g.stamp(11)
    g("s_branch " + end)
    g(fin + ":")
    g("s_cmp_lg_u32 s%d, 0" % S_CW); g("s_cbranch_scc1 " + end)
    g("s_cmp_ge_u32 s%d, 28" % S_F); g("s_cbranch_scc1 " + end)
    g("global_load_ushort v11, v%d, s[%d:%d]" % (A_OUT, S_X, S_X + 1))
    g("v_add_u32 v4, %d, v%d" % (YP, A_PART))
    for k in range(4): g("v_mov_b32 v%d, 0" % (T + 12 + k))
    def ld4(last_mask):
        def f():
            for u in range(3): gld(g, T + 4 * u, 4, 1024 * u)
            if last_mask: g("s_mov_b32 exec_hi, 0")
            gld(g, T + 12, 4, 3072)
            if last_mask: g("s_mov_b64 exec, -1")
        return f
    def red32(dst):
        if not g.nostrip: strip(g, T, 16)
        for k in range(4):
            g("v_add_f32 v%d, v%d, v%d" % (T + k, T + k, T + 4 + k))
            g("v_add_f32 v%d, v%d, v%d" % (T + 8 + k, T + 8 + k, T + 12 + k))
        for k in range(4): g("v_add_f32 v%d, v%d, v%d" % (T + k, T + k, T + 8 + k))
        for k in range(4): g("v_add_f32_dpp v%d, v%d, v%d row_ror:8 row_mask:0xf bank_mask:0xf" % (T + k, T + k, T + k))
        T4(g, T)
        rnd_bf16(g, dst, T)
    poll(g, ld4(True), [T, T + 4, T + 8, T + 12], (g.sleep_y if g.defer_wd else g.sleep_mid), T + 16, masked_last=True)
    red32(10)
    g("v_mul_f32 v5, 0xbfb8aa3b, v10")
    g("v_exp_f32 v5, v5")
    g("v_add_f32 v5, 1.0, v5")
    g("v_rcp_f32 v5, v5")
    g("v_mul_f32 v10, v10, v5")
    rnd_bf16(g, 10, 10)
    g("v_lshlrev_b32 v11, 16, v11")
    g("v_add_u32 v4, %d, v%d" % (SP, A_PART))
    g("s_mov_b32 s42, 0x00ff00ff"); g("s_mov_b32 s43, 0x00ff00ff")
    if g.selfin:
        ld4(False)()
        poll_sel(g, [(T + 4 * u, (lambda u=u: gld(g, T + 4 * u, 4, 1024 * u))) for u in range(4)], g.sleep_fin, T + 16, count=True)
    else:
        poll(g, ld4(False), [T, T + 4, T + 8, T + 12], g.sleep_fin, T + 16, count=True)
    g.stamp(12)
    red32(5)
    g("v_mul_f32 v5, v5, v10")
    rnd_bf16(g, 5, 5)
    g("v_add_f32 v5, v5, v11")
    g("v_cvt_pk_bf16_f32 v5, v5, v5")
    g("s_mov_b64 exec, s[42:43]")
    g("global_store_short v%d, v5, s[%d:%d]" % (A_OUT, S_OUT, S_OUT + 1))
    g("s_mov_b64 exec, -1")
    g.stamp(11)
    g("s_cmp_lg_u32 s%d, 0" % S_F); g("s_cbranch_scc1 " + end)
    g("v_mov_b32 v4, 0"); g("v_mov_b32 v5, s%d" % S_E)
    g("s_mov_b64 exec, 1")
    g("global_store_dword v4, v5, s[%d:%d] sc1" % (S_WS, S_WS + 1))
    g("s_mov_b64 exec, -1")
    g(end + ":")
    if g.dbgclk:
        sk = g.lab("NODBG")
        g("s_cmp_lg_u32 s%d, 0" % S_CW); g("s_cbranch_scc1 " + sk)
        g("s_cmp_ge_u32 s%d, 8" % S_F); g("s_cbranch_scc1 " + sk)
        g("s_memtime s[64:65]"); g("s_memrealtime s[66:67]")
        g("s_load_dwordx2 s[100:101], s[0:1], 80")
        g("s_waitcnt lgkmcnt(0)")
        g("s_sub_u32 s64, s64, s96"); g("s_sub_u32 s66, s66, s98")
        g("s_lshl_b32 s41, s%d, 3" % S_F)
        g("v_mov_b32 v4, s41"); g("v_mov_b32 v6, s64"); g("v_mov_b32 v7, s66")
        g("s_mov_b64 exec, 1")
        g("global_store_dwordx2 v4, v[6:7], s[100:101]")
        g("s_mov_b64 exec, -1")
        g(sk + ":")
    if g.stamps: write_stamps(g)
    g("s_endpgm")

def diag_filter(g, lines):
    drop = getattr(g, "drop", None)
    if drop:
        out = []
        for l in lines:
            t = l.strip()
            if "cat=" in t and t.split("cat=")[1].strip() in drop: continue
            if t.startswith("v_cmp_ne_u32 vcc, 0,"):
                out.append("  s_mov_b64 vcc, 0"); continue
            out.append(l)
        return out
    if not getattr(g, "nomem", 0): return lines
    out = []; incomp = False
    for l in lines:
        if l.startswith("L_compute:"): incomp = True
        t = l.strip()
        if incomp and (t.startswith("global_load_dwordx4") and "sc1" in t):
            if g.nomem & 1: continue
        if incomp and t.startswith("global_store") and ("s[24:25]" in t) and "v100" not in t and "v[104:107]" not in t:
            if g.nomem & 2: continue
        if incomp and (g.nomem & 1) and t.startswith("v_cmp_ne_u32 vcc, 0,"):
            out.append("  s_mov_b64 vcc, 0"); continue
        out.append(l)
    return out


DOC = """; ---------------------------------------------------------------------------------------------
;   Stores are write-through (sc1) and loads bypass L1 (sc1); only when a run-time check
; ---------------------------------------------------------------------------------------------
"""

def build(**kw):
    g = G(**kw)
    g("s_cmp_ge_u32 s2, 256")
    g("s_cbranch_scc1 L_exit")
    g.stamp(0)
    if g.dbgclk:
        g("s_memtime s[96:97]"); g("s_memrealtime s[98:99]")
    g("s_load_dwordx8 s[4:11], s[0:1], 0")
    g("s_load_dwordx2 s[12:13], s[0:1], 32")
    g("s_load_dwordx4 s[16:19], s[0:1], 48")
    g("s_load_dwordx4 s[20:23], s[0:1], 64")
    g("s_load_dwordx2 s[24:25], s[0:1], 88")
    g("v_lshrrev_b32 v1, 6, v0")
    g("v_and_b32 v0, 63, v0")
    g("s_and_b32 s%d, s2, 7" % S_KVH)
    g("v_readfirstlane_b32 s%d, v1" % S_WAVE)
    g("s_lshr_b32 s%d, s2, 3" % S_I)
    g("s_lshr_b32 s%d, s%d, 4" % (S_B, S_I))
    g("s_and_b32 s%d, s%d, 15" % (S_J, S_I))
    g("s_cmp_lt_u32 s%d, 28" % S_I)
    g("s_cselect_b32 s%d, 14, 0" % S_G)
    g("s_cselect_b32 s%d, 16, 0" % S_O)
    g("s_cselect_b32 s%d, 8, 0" % S_D)
    g("s_cmp_lt_u32 s%d, 7" % S_KVH)
    g("s_cselect_b32 s%d, s%d, 0" % (S_D, S_D))
    if g.ffnlocal:
        g("s_cselect_b32 s%d, 14, 0" % S_G)
    if g.evenodd:
        g("s_bitcmp1_b32 s2, 0")
        g("s_cselect_b32 s%d, 0, s%d" % (S_G, S_G))
        g("s_mov_b32 s%d, s%d" % (S_G2, S_G))
    else:
        g("s_mov_b32 s%d, 0" % S_G2)
    g("s_add_u32 s%d, s%d, 14" % (S_BK, S_G))
    if g.defer_wd: g("s_mov_b32 s%d, s%d" % (S_BV, S_BK))
    else: g("s_add_u32 s%d, s%d, s%d" % (S_BV, S_BK, S_D))
    g("s_add_u32 s%d, s%d, s%d" % (S_BV, S_BV, S_G2))
    g("s_add_u32 s%d, s%d, 128" % (S_BV, S_BV))
    g("s_mul_i32 s%d, s%d, 37" % (S_RBL, S_I))
    g("s_lshr_b32 s%d, s%d, 8" % (S_RBL, S_RBL))
    g("s_mul_i32 s41, s%d, 7" % S_RBL)
    g("s_sub_u32 s%d, s%d, s41" % (S_CB, S_I))
    if g.ffnlocal:
        g("s_lshr_b32 s41, s%d, 3" % S_I); g("s_lshl_b32 s42, s%d, 2" % S_KVH)
        g("s_add_u32 s%d, s41, s42" % S_GFB); g("s_and_b32 s%d, s%d, 7" % (S_GSL, S_I))
        g("s_add_u32 s%d, s42, s%d" % (S_DFB, S_RBL)); g("s_mov_b32 s%d, s%d" % (S_DCB, S_CB))
    else:
        g("s_mov_b32 s%d, s%d" % (S_GFB, S_I)); g("s_mov_b32 s%d, s%d" % (S_GSL, S_KVH))
        g("s_mov_b32 s%d, s%d" % (S_DFB, S_I)); g("s_mov_b32 s%d, s%d" % (S_DCB, S_KVH))
    g("s_lshl_b32 s%d, s%d, 2" % (S_F, S_KVH))
    g("s_add_u32 s%d, s%d, s%d" % (S_F, S_F, S_I))
    g("s_sub_u32 s%d, s%d, 28" % (S_F, S_F))
    g("s_mov_b32 s%d, %d" % (S_BUD, 1 << 21))
    g("s_mov_b32 s%d, 0xC0000000" % S_LAND)
    if g.stamps:
        for k in range(1, 16): g("s_mov_b64 s[%d:%d], 0" % (64 + 2 * k, 65 + 2 * k))
    g("s_cmp_eq_u32 s%d, 0" % S_WAVE)
    g("s_cbranch_scc0 L_compute")
    loader(g)
    g("L_compute:")
    compute(g)
    g("L_exit:")
    g("s_endpgm")
    lines = hz.fix(diag_filter(g, g.l))
    name = KN + "_kernel"
    s = HDR + "; @launch grid=(256,1,1) block=(320,1,1) lds=%d\n" % LDS_BYTES
    s += DOC
    s += '.amdgcn_target "amdgcn-amd-amdhsa--gfx950"\n.text\n.globl %s\n.p2align 8\n.type %s,@function\n%s:\n' % (name, name, name)
    s += "\n".join(lines) + "\n"
    s += '.section .rodata,"a"\n.p2align 6\n.amdhsa_kernel %s\n' % name
    s += "  .amdhsa_next_free_vgpr 256\n  .amdhsa_next_free_sgpr 102\n  .amdhsa_accum_offset 256\n"
    s += "  .amdhsa_group_segment_fixed_size 0\n  .amdhsa_kernarg_size 96\n  .amdhsa_user_sgpr_count 2\n"
    s += "  .amdhsa_user_sgpr_kernarg_segment_ptr 1\n  .amdhsa_system_sgpr_workgroup_id_x 1\n"
    s += "  .amdhsa_float_denorm_mode_32 3\n"
    s += ".end_amdhsa_kernel\n"
    return s

if __name__ == "__main__":
    ap = argparse.ArgumentParser()
    ap.add_argument("-o", default="k.s")
    ap.add_argument("--stamps", action="store_true")
    ap.add_argument("--set", action="append", default=[])
    a = ap.parse_args()
    kw = {x.split("=")[0]: (int(x.split("=")[1]) if x.split("=")[1].lstrip("-").isdigit() else x.split("=")[1].split(",")) for x in a.set}
    open(a.o, "w").write(build(stamps=a.stamps, **kw))
```

```python
import sys, argparse
from asmlib import HDR, KN
import hz

KV = 0
AUX = 131072
WQ_T = 0; GU_T = 14336; WD_T = 0; WO_T = 8192
MISC = 159744
XN = MISC; PB = MISC
QB = MISC + 1792; OB = QB
HB = MISC + 2816
WM = MISC + 3072; WL = MISC + 3104
PROG = MISC + 3136
LAND = MISC + 3200
JUNK = MISC + 3456
LDS_BYTES = 163840
QP = 0x1000; GP = 0x21000; ST = 0x3D000; XC = 0x3F000; YP = 0x40000; SP = 0x60000; OP = 0x80000
STAMP = 512 << 20
TAGMASK = 0x3FF; TAGMID = 0x200

S_X, S_K, S_V, S_WQ, S_WO, S_WG, S_WU, S_WD, S_OUT, S_WS = 4, 6, 8, 10, 12, 16, 18, 20, 22, 24
S_KVH, S_I, S_B, S_J, S_WAVE, S_CW = 26, 27, 28, 29, 30, 31
S_E = 32
S_G, S_D, S_O = 34, 35, 36
S_BK, S_BV = 37, 38
S_MASK = 39; S_BUD = 40
S_RBL, S_CB, S_F, S_XCC = 50, 51, 52, 53
S_EX = 54
S_C = 56; S_HI = 57; S_FAST = 59; S_LAND = 60
S_THR, S_CNT = 61, 62
S_GFB, S_GSL, S_DFB, S_DCB = 14, 15, 3, 96
S_G2 = 58
V_N, V_KG = 1, 2
V_T = 12
V_MID, V_PW, V_PR, V_LR, V_TR, V_F = 16, 17, 18, 19, 20, 21
T = 24
V_ST = 40
V_G = 44
V_C = 52
V_X = 56
V_W = 60
V_Q = 64
V_S = 96
V_ACC = 112
V_K = 128
A_PUB, A_G0, A_OBW, A_OBR, A_SP, A_STA, A_OUT, A_PART, A_YP, A_HB = 128, 129, 133, 134, 135, 136, 137, 138, 139, 140

class G:
    def __init__(self, **kw):
        self.l = []; self.n = 0
        self.W = 16; self.stamps = False; self.sleep_mid = 8; self.sleep_tail = 2; self.sleep_fin = 0
        self.fast = 1; self.stat_at = 12; self.q_issue_at = 2; self.dbgspan = 0; self.lastbar = 1; self.latebar = 1; self.spline = 0; self.ffnlocal = 1; self.Wmid = 0; self.dbgclk = 0; self.WK = 40; self.selfin = 1; self.evenodd = 0; self.defer_wd = 0; self.sleep_y = 2; self.wbl2 = 0; self.ldpre = -1; self.selpoll = 1; self.sleep_lds = 0; self.nostrip = 0
        for k, v in kw.items(): setattr(self, k, v)
    def __call__(self, s):
        for x in s.split("\n"):
            x = x.strip()
            if x.startswith("global_") and getattr(self, "cat", None) and getattr(self, "drop", None): x += " ; cat=" + self.cat
            self.l.append(x if x.endswith(":") else "  " + x)
    def lab(self, b="L"):
        self.n += 1; return "%s_%d" % (b, self.n)
    def c(self, s): self.l.append("  ; " + s)
    def stamp(self, k):
        if self.stamps and (not getattr(self, "light", 0) or k in (0, 3, 9, 11)):
            self("s_memrealtime s[%d:%d]" % (64 + 2 * k, 65 + 2 * k))

def budget_exit(g, lab):
    g("s_cmp_eq_u32 s%d, 0" % S_BUD)
    g("s_cbranch_scc1 %s" % lab)
    g("s_sub_u32 s%d, s%d, 1" % (S_BUD, S_BUD))

def write_stamps(g):
    g("s_waitcnt lgkmcnt(0)")
    g("s_mul_i32 s41, s2, 5")
    g("s_add_u32 s41, s41, s%d" % S_WAVE)
    g("s_lshl_b32 s41, s41, 7")
    g("s_add_u32 s41, s41, %d" % STAMP)
    g("v_mov_b32 v100, s41")
    for q in range(8):
        for k in range(4): g("v_mov_b32 v%d, s%d" % (104 + k, 64 + 4 * q + k))
        g("s_mov_b64 exec, 1")
        g("global_store_dwordx4 v100, v[104:107], s[%d:%d] offset:%d" % (S_WS, S_WS + 1, 16 * q))
        g("s_mov_b64 exec, -1")
        g("s_nop 1")

def loader(g):
    W = g.W
    g.c("================= loader wave =================")
    g("s_setprio 3")
    g("v_lshlrev_b32 v16, 2, v0")
    g("v_add_u32 v16, %d, v16" % LAND)
    g("v_mov_b32 v5, 0xC0000000")
    g("ds_write_b32 v16, v5")
    g("v_mov_b32 v17, %d" % PROG)
    g("v_mov_b32 v6, 0"); g("v_mov_b32 v7, 0"); g("v_mov_b32 v8, 0"); g("v_mov_b32 v9, 0")
    g("ds_write_b128 v17, v[6:9]")
    g("v_lshrrev_b32 v2, 3, v0")
    g("v_and_b32 v3, 7, v0")
    g("v_lshrrev_b32 v4, 4, v0")
    g("v_lshlrev_b32 v4, 1, v4")
    g("v_xor_b32 v3, v3, v4")
    g("v_lshlrev_b32 v3, 4, v3")
    g("v_lshl_add_u32 v5, v2, 13, v3")
    g("s_lshr_b32 s41, s%d, 3" % S_I)
    g("s_mul_i32 s41, s41, %d" % (112 * 8192))
    g("s_lshl_b32 s42, s%d, 10" % S_KVH)
    g("s_add_u32 s41, s41, s42")
    g("s_and_b32 s42, s%d, 7" % S_I)
    g("s_lshl_b32 s42, s42, 7")
    g("s_add_u32 s41, s41, s42")
    g("s_mov_b32 m0, %d" % (AUX + WQ_T))
    g("s_mov_b32 s46, 14")
    g("s_waitcnt lgkmcnt(0)")
    g("s_add_u32 s44, s%d, s41" % S_WQ)
    g("s_addc_u32 s45, s%d, 0" % (S_WQ + 1))
    lp = g.lab("WQ")
    g(lp + ":")
    g("global_load_lds_dwordx4 v5, s[44:45] nt")
    g("s_add_u32 s44, s44, 65536")
    g("s_addc_u32 s45, s45, 0")
    g("s_add_u32 m0, m0, 1024")
    g("s_sub_u32 s46, s46, 1")
    g("s_cmp_lg_u32 s46, 0")
    g("s_cbranch_scc1 " + lp)
    if not g.latebar: g("s_barrier")
    g("v_mul_u32_u24 v6, 3584, v2")
    g("v_add_u32 v6, v6, v3")
    g("v_mul_u32_u24 v7, 896, v2")
    g("v_add_u32 v7, v7, v3")
    sk = g.lab("NOGU")
    g("s_cmp_eq_u32 s%d, 0" % S_G)
    g("s_cbranch_scc1 " + sk)
    g("s_and_b32 s41, s%d, 1" % S_GSL)
    g("s_cmp_eq_u32 s41, 0")
    g("s_cselect_b32 s44, s%d, s%d" % (S_WG, S_WU))
    g("s_cselect_b32 s45, s%d, s%d" % (S_WG + 1, S_WU + 1))
    g("s_lshr_b32 s41, s%d, 1" % S_GSL)
    g("s_mul_i32 s41, s41, %d" % (112 * 3584))
    g("s_lshl_b32 s42, s%d, 7" % S_GFB)
    g("s_add_u32 s41, s41, s42")
    g("s_add_u32 s44, s44, s41")
    g("s_addc_u32 s45, s45, 0")
    g("s_mov_b32 m0, %d" % (AUX + GU_T))
    g("s_mov_b32 s46, 14")
    lp = g.lab("GU")
    g(lp + ":")
    g("global_load_lds_dwordx4 v6, s[44:45] nt")
    g("s_add_u32 s44, s44, %d" % (8 * 3584))
    g("s_addc_u32 s45, s45, 0")
    g("s_add_u32 m0, m0, 1024")
    g("s_sub_u32 s46, s46, 1")
    g("s_cmp_lg_u32 s46, 0")
    g("s_cbranch_scc1 " + lp)
    g(sk + ":")
    g("v_lshrrev_b32 v8, 5, v0")
    g("v_and_b32 v9, 31, v0")
    g("v_lshlrev_b32 v10, 1, v8")
    g("v_xor_b32 v9, v9, v10")
    g("v_lshlrev_b32 v9, 4, v9")
    g("v_lshlrev_b32 v8, 9, v8")
    for u in range(4):
        g("v_xor_b32 v%d, %d, v9" % (12 + u, u * 64))
        g("v_add_u32 v%d, v%d, v8" % (12 + u, 12 + u))
    g("s_lshl_b32 s41, s%d, 3" % S_B)
    g("s_add_u32 s41, s41, s%d" % S_KVH)
    g("s_lshl_b32 s41, s41, 24")
    g("s_add_u32 s41, s41, %d" % (28672 * 512))
    g("s_lshl_b32 s42, s%d, 13" % S_J)
    g("s_add_u32 s41, s41, s42")
    g("s_add_u32 s44, s%d, s41" % S_K)
    g("s_addc_u32 s45, s%d, 0" % (S_K + 1))
    g("s_add_u32 s48, s%d, s41" % S_V)
    g("s_addc_u32 s49, s%d, 0" % (S_V + 1))
    g("s_add_u32 s47, s%d, 14" % S_G)
    g("s_mov_b32 m0, %d" % KV)
    def tile(sb, mid=None):
        for u in range(8):
            if u == 4:
                g("s_add_u32 s%d, s%d, 4096" % (sb, sb)); g("s_addc_u32 s%d, s%d, 0" % (sb + 1, sb + 1)); g("s_add_u32 m0, m0, 4096"); g("s_nop 0")
                if mid is not None: g("s_waitcnt vmcnt(%d)" % mid)
            g("global_load_lds_dwordx4 v%d, s[%d:%d] offset:%d nt" % (12 + (u & 3), sb, sb + 1, (u & 3) * 1024))
        g("s_add_u32 s%d, s%d, %d" % (sb, sb, 131072 - 4096)); g("s_addc_u32 s%d, s%d, 0" % (sb + 1, sb + 1)); g("s_add_u32 m0, m0, 4096")
        g("s_add_u32 s47, s47, 8")
    def flag(n):
        g("s_waitcnt vmcnt(%d)" % n)
        g("s_sub_u32 s46, s47, %d" % n)
        g("v_mov_b32 v18, s46")
        g("ds_write_b32 v16, v18")
    tile(44)
    if g.latebar: g("s_barrier")
    has = g.lab("HASGU"); j2 = g.lab("J")
    g("s_cmp_eq_u32 s%d, 0" % S_G)
    g("s_cbranch_scc0 " + has)
    flag(8)
    tile(44)
    g("s_branch " + j2)
    g(has + ":")
    flag(22)
    tile(44)
    flag(16)
    g(j2 + ":")
    def kloop(n):
        lp = g.lab("KL")
        g("s_mov_b32 s43, %d" % n)
        g(lp + ":")
        tile(44)
        flag(g.WK or W)
        g("s_sub_u32 s43, s43, 1")
        g("s_cmp_lg_u32 s43, 0")
        g("s_cbranch_scc1 " + lp)
    def wait_prog(sthr):
        lp = g.lab("WP"); ex = g.lab("WPX")
        g("s_cmp_ge_i32 s%d, %s" % (S_LAND, sthr))
        g("s_cbranch_scc1 " + ex)
        g(lp + ":")
        g("ds_read_b128 v[20:23], v17")
        g("s_waitcnt lgkmcnt(0)")
        g("v_min3_i32 v20, v20, v21, v22")
        g("v_min_i32 v20, v20, v23")
        g("v_readfirstlane_b32 s%d, v20" % S_LAND)
        g("s_cmp_ge_i32 s%d, %s" % (S_LAND, sthr))
        g("s_cbranch_scc1 " + ex)
        budget_exit(g, ex)
        g("s_branch " + lp)
        g(ex + ":")
    kloop(6)
    sk = g.lab("NOG2")
    g("s_cmp_eq_u32 s%d, 0" % S_G2)
    g("s_cbranch_scc1 " + sk)
    wait_prog("1")
    g("s_mov_b32 s42, m0")
    g("s_lshr_b32 s41, s%d, 1" % S_KVH)
    g("s_mul_i32 s41, s41, %d" % (112 * 3584))
    g("s_lshl_b32 s46, s%d, 7" % S_I)
    g("s_add_u32 s41, s41, s46")
    g("s_add_u32 s62, s%d, s41" % S_WU)
    g("s_addc_u32 s63, s%d, 0" % (S_WU + 1))
    g("s_mov_b32 m0, %d" % (AUX + WQ_T))
    g("s_mov_b32 s46, 14")
    lp = g.lab("G2")
    g(lp + ":")
    g("global_load_lds_dwordx4 v6, s[62:63] nt")
    g("s_add_u32 s62, s62, %d" % (8 * 3584))
    g("s_addc_u32 s63, s63, 0")
    g("s_add_u32 m0, m0, 1024")
    g("s_sub_u32 s46, s46, 1")
    g("s_cmp_lg_u32 s46, 0")
    g("s_cbranch_scc1 " + lp)
    g("s_mov_b32 m0, s42")
    g("s_add_u32 s47, s47, 14")
    flag(W)
    g(sk + ":")
    kloop(8)
    g.stamp(1)
    def rows896(n, ptr, lds):
        g("s_add_u32 s62, s%d, s41" % ptr)
        g("s_addc_u32 s63, s%d, 0" % (ptr + 1))
        g("s_mov_b32 m0, %d" % lds)
        g("s_mov_b32 s46, %d" % n)
        lp = g.lab("RW")
        g(lp + ":")
        g("global_load_lds_dwordx4 v7, s[62:63] nt")
        g("s_add_u32 s62, s62, 7168")
        g("s_addc_u32 s63, s63, 0")
        g("s_add_u32 m0, m0, 1024")
        g("s_sub_u32 s46, s46, 1")
        g("s_cmp_lg_u32 s46, 0")
        g("s_cbranch_scc1 " + lp)
        g("s_add_u32 s47, s47, %d" % n)
    def wd_tile():
        g("s_mul_i32 s41, s%d, %d" % (S_DFB, 64 * 896))
        g("s_lshl_b32 s42, s%d, 7" % S_DCB)
        g("s_add_u32 s41, s41, s42")
        rows896(8, S_WD, AUX + WD_T)
    if not g.defer_wd:
        sk = g.lab("NOWD")
        g("s_cmp_eq_u32 s%d, 0" % S_D)
        g("s_cbranch_scc1 " + sk)
        wait_prog("4")
        wd_tile()
        flag(W)
        g(sk + ":")
    g("s_mov_b32 m0, %d" % KV)
    lp = g.lab("VL")
    g("s_mov_b32 s43, 0")
    g(lp + ":")
    g("s_lshr_b32 s41, s43, 2")
    g("s_lshr_b32 s42, s43, 3")
    g("s_add_u32 s41, s41, s42")
    g("s_add_u32 s41, s41, 2")
    wait_prog("s41")
    tile(48, g.Wmid if g.Wmid else None)
    if g.ldpre >= 0:
        sk = g.lab("NPT")
        g("s_cmp_lg_u32 s43, %d" % g.ldpre)
        g("s_cbranch_scc1 " + sk)
        g("s_lshl_b32 s41, s%d, 1" % S_KVH); g("s_add_u32 s41, s41, s%d" % S_B); g("s_lshl_b32 s41, s41, 4"); g("s_add_u32 s41, s41, s%d" % S_J)
        g("s_lshl_b32 s41, s41, 11"); g("s_add_u32 s41, s41, %d" % OP)
        g("v_lshlrev_b32 v19, 4, v0"); g("v_add_u32 v19, s41, v19")
        g("global_load_dwordx4 v[24:27], v19, s[%d:%d]" % (S_WS, S_WS + 1))
        g("global_load_dwordx4 v[28:31], v19, s[%d:%d] offset:1024" % (S_WS, S_WS + 1))
        g(sk + ":")
    flag(W)
    g("s_add_u32 s43, s43, 1")
    g("s_cmp_lg_u32 s43, 16")
    g("s_cbranch_scc1 " + lp)
    g.stamp(2)
    sk = g.lab("NOWO"); dn = g.lab("LDONE"); nod = g.lab("NODW")
    last = 8 if g.lastbar else 0
    def wo_tile():
        g("s_lshl_b32 s41, s%d, 2" % S_KVH)
        g("s_add_u32 s41, s41, s%d" % S_RBL)
        g("s_mul_i32 s41, s41, %d" % (128 * 896))
        g("s_lshl_b32 s42, s%d, 7" % S_CB)
        g("s_add_u32 s41, s41, s42")
        rows896(16, S_WO, AUX + WO_T)
    def drain(extra):
        n = W - 8 + extra
        while n > extra + last:
            flag(n); n -= 8
        flag(extra + last)
        if g.lastbar:
            g("s_waitcnt vmcnt(%d)" % extra)
            g("s_barrier")
    g("s_cmp_eq_u32 s%d, 0" % S_O)
    g("s_cbranch_scc1 " + sk)
    if g.defer_wd:
        g("s_cmp_eq_u32 s%d, 0" % S_D)
        g("s_cbranch_scc1 " + nod)
        wd_tile()
        wo_tile()
        drain(24)
        flag(16)
        flag(0)
        g("s_branch " + dn)
        g(nod + ":")
    wo_tile()
    drain(16)
    flag(0)
    g("s_branch " + dn)
    g(sk + ":")
    drain(0)
    g(dn + ":")
    g.stamp(3)
    g("s_waitcnt lgkmcnt(0)")
    if g.stamps: write_stamps(g)
    g("s_endpgm")

def wait_landed(g, sthr):
    lp = g.lab("WL"); ex = g.lab("WLX")
    g("s_cmp_ge_i32 s%d, %s" % (S_LAND, sthr))
    g("s_cbranch_scc1 " + ex)
    g(lp + ":")
    g("ds_read_b32 v%d, v%d" % (V_F, V_LR))
    g("s_waitcnt lgkmcnt(0)")
    g("v_readfirstlane_b32 s%d, v%d" % (S_LAND, V_F))
    g("s_cmp_ge_i32 s%d, %s" % (S_LAND, sthr))
    g("s_cbranch_scc1 " + ex)
    budget_exit(g, ex)
    if g.sleep_lds: g("s_sleep %d" % g.sleep_lds)
    g("s_branch " + lp)
    g(ex + ":")
def prog_set(g, val):
    g("v_mov_b32 v%d, %s" % (V_F, val))
    g("ds_write_b32 v%d, v%d" % (V_PW, V_F))
def wait_prog_c(g, val):
    lp = g.lab("WP"); ex = g.lab("WPX")
    t = V_W
    g(lp + ":")
    g("ds_read_b128 v[%d:%d], v%d" % (t, t + 3, V_PR))
    g("s_waitcnt lgkmcnt(0)")
    g("v_min3_i32 v%d, v%d, v%d, v%d" % (t, t, t + 1, t + 2))
    g("v_min_i32 v%d, v%d, v%d" % (t, t, t + 3))
    g("v_cmp_gt_i32 vcc, %s, v%d" % (val, t))
    g("s_cbranch_vccz " + ex)
    budget_exit(g, ex)
    g("s_branch " + lp)
    g(ex + ":")
def tag4(g, r):
    for k in range(4): g("v_bfi_b32 v%d, s%d, v%d, v%d" % (r + k, S_MASK, V_T + k, r + k))
def strip(g, r, n):
    for k in range(n): g("v_bfi_b32 v%d, s%d, v%d, v%d" % (r + k, S_MASK, V_MID, r + k))
def poll(g, emit_loads, regs, sleep, acc, masked_last=False, pre=False, count=False):
    lp = g.lab("PL"); ex = g.lab("PX"); ck = g.lab("PC")
    if count and g.stamps and not getattr(g, 'light', 0): g("s_mov_b32 s63, 0")
    if pre: g("s_branch " + ck)
    g(lp + ":")
    emit_loads()
    g(ck + ":")
    g("s_waitcnt vmcnt(0)")
    if count and g.stamps and not getattr(g, 'light', 0): g("s_add_u32 s63, s63, 1")
    first = True
    for idx, r in enumerate(regs):
        if masked_last and idx == len(regs) - 1: g("s_mov_b32 exec_hi, 0")
        for k in range(4):
            if first:
                g("v_xor_b32 v%d, v%d, v%d" % (acc, r + k, V_T + k)); first = False
            else:
                g("v_bitop3_b32 v%d, v%d, v%d, v%d bitop3:0xBE" % (acc, r + k, V_T + k, acc))
    if masked_last: g("s_mov_b64 exec, -1")
    g("v_and_b32 v%d, s%d, v%d" % (acc, S_MASK, acc))
    g("v_cmp_ne_u32 vcc, 0, v%d" % acc)
    g("s_cbranch_vccz " + ex)
    budget_exit(g, ex)
    if sleep: g("s_sleep %d" % sleep)
    g("s_branch " + lp)
    g(ex + ":")
    if count and g.stamps and not getattr(g, 'light', 0):
        g("s_waitcnt lgkmcnt(0)")
        g("s_mul_i32 s94, s63, 100"); g("s_add_u32 s94, s94, s64"); g("s_addc_u32 s95, s65, 0")
def poll_sel(g, loads, sleep, acc, count=False, first_allow=0):
    lp = g.lab("QL"); ex = g.lab("QX")
    if count and g.stamps and not getattr(g, 'light', 0): g("s_mov_b32 s63, 0")
    if first_allow:
        ck = g.lab("QC")
        g("s_cmp_eq_u32 s%d, 0" % S_D)
        g("s_cbranch_scc1 " + lp)
        g("s_waitcnt vmcnt(%d)" % first_allow)
        g("s_branch " + ck)
    g(lp + ":")
    g("s_waitcnt vmcnt(0)")
    if first_allow: g(ck + ":")
    if count and g.stamps and not getattr(g, 'light', 0): g("s_add_u32 s63, s63, 1")
    for u, (r, emit) in enumerate(loads):
        g("v_xor_b32 v%d, v%d, v%d" % (acc + u, r, V_T))
        for k in range(1, 4): g("v_bitop3_b32 v%d, v%d, v%d, v%d bitop3:0xBE" % (acc + u, r + k, V_T + k, acc + u))
    g("v_or3_b32 v%d, v%d, v%d, v%d" % (V_F, acc, acc + 1, acc + 2))
    g("v_or_b32 v%d, v%d, v%d" % (V_F, V_F, acc + 3))
    g("v_and_b32 v%d, s%d, v%d" % (V_F, S_MASK, V_F))
    g("v_cmp_ne_u32 vcc, 0, v%d" % V_F)
    g("s_cbranch_vccz " + ex)
    g("s_mov_b32 s46, 0")
    for u, (r, emit) in enumerate(loads):
        g("v_and_b32 v%d, s%d, v%d" % (acc + u, S_MASK, acc + u))
        g("v_cmp_ne_u32 vcc, 0, v%d" % (acc + u))
        g("s_cmp_lg_u64 vcc, 0")
        g("s_cselect_b32 s47, %d, 0" % (1 << u))
        g("s_or_b32 s46, s46, s47")
    budget_exit(g, ex)
    if sleep: g("s_sleep %d" % sleep)
    for u, (r, emit) in enumerate(loads):
        sk = g.lab("QS")
        g("s_bitcmp1_b32 s46, %d" % u)
        g("s_cbranch_scc0 " + sk)
        emit()
        g(sk + ":")
    g("s_branch " + lp)
    g(ex + ":")
    if count and g.stamps and not getattr(g, 'light', 0):
        g("s_waitcnt lgkmcnt(0)")
        g("s_mul_i32 s94, s63, 100"); g("s_add_u32 s94, s94, s64"); g("s_addc_u32 s95, s65, 0")
def T4(g, r):
    g("v_permlane16_swap_b32 v%d, v%d" % (r, r + 1))
    g("v_permlane16_swap_b32 v%d, v%d" % (r + 2, r + 3))
    g("v_add_f32 v%d, v%d, v%d" % (r, r, r + 1))
    g("v_add_f32 v%d, v%d, v%d" % (r + 2, r + 2, r + 3))
    g("v_permlane32_swap_b32 v%d, v%d" % (r, r + 2))
    g("v_add_f32 v%d, v%d, v%d" % (r, r, r + 2))
def rnd_bf16(g, dst, src):
    g("v_cvt_pk_bf16_f32 v%d, v%d, v%d" % (dst, src, src))
    g("v_and_b32 v%d, s%d, v%d" % (dst, S_HI, dst))
def allreduce16(g, op, regs):
    for sh in (8, 4, 2, 1):
        for r in regs: g("%s_dpp v%d, v%d, v%d row_ror:%d row_mask:0xf bank_mask:0xf" % (op, r, r, r, sh))
def xrow(g, op, regs, tmp):
    for w in (16, 32):
        for i, r in enumerate(regs): g("v_mov_b32 v%d, v%d" % (tmp + i, r))
        for i, r in enumerate(regs): g("v_permlane%d_swap_b32 v%d, v%d" % (w, r, tmp + i))
        for i, r in enumerate(regs): g("%s v%d, v%d, v%d" % (op, r, r, tmp + i))
def thin_tile16(g, nsteps, tr_off, vb, acc, tmp):
    for s in range(nsteps):
        g("ds_read_b64_tr_b16 v[%d:%d], v%d offset:%d" % (tmp + 4 * s, tmp + 4 * s + 1, V_TR, tr_off + s * 2048))
        g("ds_read_b64 v[%d:%d], v%d offset:%d" % (tmp + 4 * s + 2, tmp + 4 * s + 3, vb, s * 32))
    for s in range(nsteps):
        g("s_waitcnt lgkmcnt(%d)" % (2 * (nsteps - 1 - s)))
        g("v_mfma_f32_16x16x16_bf16 v[%d:%d], v[%d:%d], v[%d:%d], %s" % (acc, acc + 3, tmp + 4 * s, tmp + 4 * s + 1, tmp + 4 * s + 2, tmp + 4 * s + 3, "0" if s == 0 else "v[%d:%d]" % (acc, acc + 3)))
def store_n2(g, vaddr, r):
    g("s_mov_b64 exec, s[%d:%d]" % (S_EX, S_EX + 1))
    g("global_store_dwordx4 v%d, v[%d:%d], s[%d:%d] sc1" % (vaddr, r, r + 3, S_WS, S_WS + 1))
    g("s_mov_b64 exec, -1")
def gld(g, dst, vaddr, off=0, flags="sc1"):
    g("global_load_dwordx4 v[%d:%d], v%d, s[%d:%d]%s %s" % (dst, dst + 3, vaddr, S_WS, S_WS + 1, (" offset:%d" % off) if off else "", flags))
def part_addr(g, dst, base, s_cb, s_row):
    if g.spline:
        g("s_lshl_b32 s41, s%d, 14" % s_cb)
        g("s_lshl_b32 s42, s%d, 12" % S_CW); g("s_add_u32 s41, s41, s42")
        g("s_lshl_b32 s42, s%d, 7" % s_row); g("s_add_u32 s41, s41, s42")
        g("s_add_u32 s41, s41, %d" % base)
        g("v_lshlrev_b32 v%d, 6, v%d" % (dst, V_N))
        g("v_lshl_add_u32 v%d, v%d, 4, v%d" % (dst, V_KG, dst))
        g("v_add_u32 v%d, s41, v%d" % (dst, dst))
        return
    g("s_lshl_b32 s41, s%d, 14" % s_cb)
    g("s_lshr_b32 s42, s%d, 1" % S_CW); g("s_lshl_b32 s42, s42, 12"); g("s_add_u32 s41, s41, s42")
    g("s_lshl_b32 s42, s%d, 7" % s_row); g("s_add_u32 s41, s41, s42")
    g("s_and_b32 s42, s%d, 1" % S_CW); g("s_lshl_b32 s42, s42, 6"); g("s_add_u32 s41, s41, s42")
    g("s_add_u32 s41, s41, %d" % base)
    g("v_lshlrev_b32 v%d, 13, v%d" % (dst, V_N))
    g("v_lshl_add_u32 v%d, v%d, 4, v%d" % (dst, V_KG, dst))
    g("v_add_u32 v%d, s41, v%d" % (dst, dst))

def compute(g):
    g.c("================= compute waves =================")
    if getattr(g, "loaderonly", 0):
        g("s_waitcnt lgkmcnt(0)")
        g("s_barrier")
        g("v_mov_b32 v4, %d" % PROG); g("v_mov_b32 v8, 100"); g("v_mov_b32 v9, 100"); g("v_mov_b32 v10, 100"); g("v_mov_b32 v11, 100")
        g("ds_write_b128 v4, v[8:11]")
        g("s_waitcnt lgkmcnt(0)")
        if g.lastbar: g("s_barrier")
        if g.stamps: write_stamps(g)
        g("s_endpgm")
        return
    g("s_sub_u32 s%d, s%d, 1" % (S_CW, S_WAVE))
    g("v_min_u32 v3, 55, v0")
    g("v_lshlrev_b32 v3, 4, v3")
    g("v_and_b32 v%d, 15, v0" % V_N)
    g("v_lshrrev_b32 v%d, 4, v0" % V_KG)
    g("s_mov_b32 s%d, %d" % (S_MASK, TAGMASK))
    g("s_mov_b32 s%d, 0xffff0000" % S_HI)
    g("s_mov_b32 s%d, 0x00030003" % S_EX); g("s_mov_b32 s%d, 0x00030003" % (S_EX + 1))
    g("s_mov_b32 s%d, 0x3db8aa3b" % S_C)
    g("s_waitcnt lgkmcnt(0)")
    g("global_load_dwordx4 v[%d:%d], v3, s[%d:%d]" % (T, T + 3, S_X, S_X + 1))
    g("global_load_dwordx4 v[%d:%d], v3, s[%d:%d] offset:896" % (T + 4, T + 7, S_X, S_X + 1))
    g("s_load_dwordx2 s[%d:%d], s[%d:%d], 0" % (S_E, S_E + 1, S_WS, S_WS + 1))
    g("v_mov_b32 v%d, %d" % (V_MID, TAGMID))
    g("v_mov_b32 v%d, %d" % (V_PR, PROG))
    g("v_mov_b32 v%d, %d" % (V_LR, LAND))
    g("v_lshlrev_b32 v4, 2, v0")
    g("v_add_u32 v4, %d, v4" % JUNK)
    g("s_lshl_b32 s41, s%d, 2" % S_CW)
    g("s_add_u32 s41, s41, %d" % PROG)
    g("v_mov_b32 v5, s41")
    g("v_cmp_eq_u32 vcc, 0, v0")
    g("v_cndmask_b32 v%d, v4, v5, vcc" % V_PW)
    g("v_lshrrev_b32 v4, 2, v%d" % V_N)
    g("v_lshl_add_u32 v4, v%d, 2, v4" % V_KG)
    g("v_lshrrev_b32 v5, 1, v4")
    g("v_and_b32 v5, 3, v5")
    g("v_xor_b32 v5, s%d, v5" % S_CW)
    g("v_lshlrev_b32 v5, 5, v5")
    g("v_lshl_add_u32 v5, v4, 7, v5")
    g("v_and_b32 v6, 3, v%d" % V_N)
    g("v_lshl_add_u32 v5, v6, 3, v5")
    g("v_add_u32 v%d, %d, v5" % (V_TR, AUX))
    g("s_barrier")
    g.stamp(1)
    g.c("layernorm")
    F = T + 8
    g("v_cmp_gt_u32 vcc, 56, v0")
    g("s_waitcnt vmcnt(0)")
    for k in range(8): g("v_cndmask_b32 v%d, 0, v%d, vcc" % (T + k, T + k))
    for b in range(2):
        for k in range(4):
            g("v_lshlrev_b32 v%d, 16, v%d" % (F + 8 * b + 2 * k, T + 4 * b + k))
            g("v_and_b32 v%d, s%d, v%d" % (F + 8 * b + 2 * k + 1, S_HI, T + 4 * b + k))
    SUM = T + 24
    for b in range(2):
        f = F + 8 * b
        g("v_add_f32 v%d, v%d, v%d" % (SUM + b, f, f + 1))
        for k in range(2, 8): g("v_add_f32 v%d, v%d, v%d" % (SUM + b, SUM + b, f + k))
    allreduce16(g, "v_add_f32", [SUM, SUM + 1])
    xrow(g, "v_add_f32", [SUM, SUM + 1], SUM + 2)
    g("v_mov_b32 v4, 0x3b124925")
    for b in range(2): g("v_mul_f32 v%d, v%d, v4" % (SUM + b, SUM + b))
    VAR = T + 28
    for b in range(2):
        f = F + 8 * b
        for k in range(8):
            g("v_sub_f32 v5, v%d, v%d" % (f + k, SUM + b))
            if k == 0: g("v_mul_f32 v%d, v5, v5" % (VAR + b))
            else: g("v_fma_f32 v%d, v5, v5, v%d" % (VAR + b, VAR + b))
    for b in range(2): g("v_cndmask_b32 v%d, 0, v%d, vcc" % (VAR + b, VAR + b))
    allreduce16(g, "v_add_f32", [VAR, VAR + 1])
    xrow(g, "v_add_f32", [VAR, VAR + 1], VAR + 2)
    for b in range(2):
        g("v_mul_f32 v%d, v%d, v4" % (VAR + b, VAR + b))
        rnd_bf16(g, VAR + b, VAR + b)
        g("v_add_f32 v%d, 0x3727c5ac, v%d" % (VAR + b, VAR + b))
        rnd_bf16(g, VAR + b, VAR + b)
        g("v_sqrt_f32 v%d, v%d" % (VAR + b, VAR + b))
        rnd_bf16(g, VAR + b, VAR + b)
        g("v_rcp_f32 v%d, v%d" % (VAR + b, VAR + b))
        rnd_bf16(g, SUM + b, SUM + b)
    for b in range(2):
        f = F + 8 * b
        for k in range(0, 8, 2):
            g("v_sub_f32 v%d, v%d, v%d" % (f + k, f + k, SUM + b))
            g("v_sub_f32 v%d, v%d, v%d" % (f + k + 1, f + k + 1, SUM + b))
            g("v_cvt_pk_bf16_f32 v5, v%d, v%d" % (f + k, f + k + 1))
            g("v_lshlrev_b32 v%d, 16, v5" % (f + k))
            g("v_and_b32 v%d, s%d, v5" % (f + k + 1, S_HI))
            g("v_mul_f32 v%d, v%d, v%d" % (f + k, f + k, VAR + b))
            g("v_mul_f32 v%d, v%d, v%d" % (f + k + 1, f + k + 1, VAR + b))
            g("v_cvt_pk_bf16_f32 v%d, v%d, v%d" % (T + 4 * b + k // 2, f + k, f + k + 1))
    g("v_lshlrev_b32 v4, 4, v0")
    g("v_add_u32 v4, %d, v4" % XN)
    g("s_mov_b32 exec_hi, 0x00ffffff")
    g("ds_write_b128 v4, v[%d:%d]" % (T, T + 3))
    g("ds_write_b128 v4, v[%d:%d] offset:896" % (T + 4, T + 7))
    g("s_mov_b64 exec, -1")
    g("s_waitcnt lgkmcnt(0)")
    g("s_add_u32 s%d, s%d, 1" % (S_E, S_E))
    g("s_and_b32 s41, s%d, s%d" % (S_E, S_MASK)); g("v_mov_b32 v%d, s41" % V_T)
    g("s_lshr_b32 s41, s%d, 10" % S_E); g("s_and_b32 s41, s41, s%d" % S_MASK); g("v_mov_b32 v%d, s41" % (V_T + 1))
    g("s_lshr_b32 s41, s%d, 20" % S_E); g("s_and_b32 s41, s41, s%d" % S_MASK); g("v_mov_b32 v%d, s41" % (V_T + 2))
    g("s_lshr_b32 s41, s%d, 30" % S_E); g("s_lshl_b32 s42, s%d, 2" % (S_E + 1)); g("s_or_b32 s41, s41, s42"); g("s_and_b32 s41, s41, s%d" % S_MASK); g("v_mov_b32 v%d, s41" % (V_T + 3))
    g.stamp(2)
    g.cat = "qp"
    g.c("q partial")
    g("v_and_b32 v4, 1, v%d" % V_N)
    g("v_mul_u32_u24 v4, 896, v4")
    g("v_lshl_add_u32 v4, v%d, 3, v4" % V_KG)
    g("v_add_u32 v3, %d, v4" % XN)
    g("s_lshr_b32 s41, s%d, 3" % S_I)
    g("s_mul_i32 s41, s41, 224")
    g("v_add_u32 v4, s41, v3")
    g("v_lshlrev_b32 v5, 8, v%d" % V_N)
    g("v_lshl_add_u32 v5, v%d, 4, v5" % V_KG)
    g("s_lshl_b32 s41, s%d, 6" % S_CW)
    g("v_add_u32 v5, s41, v5")
    g("s_lshl_b32 s41, s%d, 14" % S_KVH)
    g("s_lshl_b32 s42, s%d, 9" % S_I)
    g("s_add_u32 s41, s41, s42")
    g("s_add_u32 s41, s41, %d" % QP)
    g("v_add_u32 v6, s41, v5")
    wait_landed(g, "14")
    thin_tile16(g, 7, WQ_T, 4, T + 32, T)
    tag4(g, T + 32)
    store_n2(g, 6, T + 32)
    g.stamp(3)
    prog_set(g, "1")
    g.cat = "xc"
    g("s_getreg_b32 s%d, hwreg(HW_REG_XCC_ID)" % S_XCC)
    g("s_and_b32 s%d, s%d, 15" % (S_XCC, S_XCC))
    sk = g.lab("NOXC")
    g("s_cmp_lg_u32 s%d, 0" % S_CW)
    g("s_cbranch_scc1 " + sk)
    g("s_lshl_b32 s41, s%d, 16" % S_XCC)
    for k in range(4): g("v_mov_b32 v%d, s41" % (V_X + k))
    tag4(g, V_X)
    g("s_lshl_b32 s41, s%d, 9" % S_KVH); g("s_lshl_b32 s42, s%d, 4" % S_I); g("s_add_u32 s41, s41, s42"); g("s_add_u32 s41, s41, %d" % XC)
    g("v_mov_b32 v7, s41")
    g("s_mov_b64 exec, 1")
    g("global_store_dwordx4 v7, v[%d:%d], s[%d:%d] sc1" % (V_X, V_X + 3, S_WS, S_WS + 1))
    g("s_mov_b64 exec, -1")
    g(sk + ":")
    g.cat = "gp"
    g.c("gate/up partial")
    sk = g.lab("NOGU")
    g("s_cmp_eq_u32 s%d, 0" % S_G)
    g("s_cbranch_scc1 " + sk)
    g("s_lshr_b32 s41, s%d, 1" % S_GSL)
    g("s_mul_i32 s41, s41, 224")
    g("v_add_u32 v4, s41, v3")
    g("s_lshl_b32 s41, s%d, 12" % S_GFB)
    g("s_lshl_b32 s42, s%d, 9" % S_GSL)
    g("s_add_u32 s41, s41, s42")
    g("s_add_u32 s41, s41, %d" % GP)
    g("v_add_u32 v6, s41, v5")
    wait_landed(g, "28")
    thin_tile16(g, 7, GU_T, 4, V_S, T)
    tag4(g, V_S)
    store_n2(g, 6, V_S)
    g(sk + ":")
    g("v_mov_b32 v%d, v4" % (V_S + 4))
    g("v_add_u32 v%d, 512, v6" % (V_S + 5))
    g.cat = "ldq"
    g.c("K tiles to registers")
    g("v_and_b32 v8, 7, v%d" % V_N)
    g("v_lshlrev_b32 v8, 1, v8")
    g("s_lshl_b32 s41, s%d, 13" % S_CW)
    g("v_lshlrev_b32 v9, 9, v%d" % V_N)
    g("v_add_u32 v9, s41, v9")
    for s3 in range(4):
        g("v_add_u32 v%d, %d, v%d" % (4 + s3, 4 * s3, V_KG))
        g("v_xor_b32 v%d, v%d, v8" % (4 + s3, 4 + s3))
        g("v_lshl_add_u32 v%d, v%d, 4, v9" % (4 + s3, 4 + s3))
    g("s_lshl_b32 s41, s%d, 14" % S_KVH)
    g("s_lshl_b32 s42, s%d, 10" % S_CW)
    g("s_add_u32 s41, s41, s42")
    g("s_lshl_b32 s42, s%d, 8" % S_B)
    g("s_add_u32 s41, s41, s42")
    g("s_add_u32 s41, s41, %d" % QP)
    g("v_lshlrev_b32 v10, 12, v%d" % V_KG)
    g("v_lshl_add_u32 v10, v%d, 4, v10" % V_N)
    g("v_add_u32 v10, s41, v10")
    g("s_min_u32 s41, s%d, 27" % S_DFB)
    g("s_lshl_b32 s41, s41, 12")
    g("s_and_b32 s42, s%d, 1" % S_CW)
    g("s_lshl_b32 s42, s42, 8")
    g("s_add_u32 s41, s41, s42"); g("s_add_u32 s41, s41, %d" % GP)
    g("v_lshlrev_b32 v11, 10, v%d" % V_KG)
    g("v_lshl_add_u32 v11, v%d, 4, v11" % V_N)
    g("v_add_u32 v11, s41, v11")
    g("s_lshl_b32 s41, s%d, 9" % S_KVH); g("s_add_u32 s41, s41, %d" % XC)
    g("v_and_b32 v22, 31, v0"); g("v_lshlrev_b32 v22, 4, v22"); g("v_add_u32 v22, s41, v22")
    def ldq():
        gld(g, T, 10); gld(g, T + 4, 10, 512); gld(g, V_X, 22)
    def ldg():
        gld(g, V_G, 11); gld(g, V_G + 4, 11, 512)
    for r in range(4):
        if r == g.q_issue_at: ldq()
        g("s_lshl_b32 s41, s%d, 3" % S_CW)
        g("s_add_u32 s41, s41, s%d" % S_BK)
        g("s_add_u32 s41, s41, %d" % (8 + 32 * r))
        if r >= 2: g("s_add_u32 s41, s41, s%d" % S_G2)
        wait_landed(g, "s41")
        for s in range(8):
            g("ds_read_b128 v[%d:%d], v%d offset:%d" % (V_K + 32 * r + 4 * s, V_K + 32 * r + 4 * s + 3, 4 + (s & 3), (s >> 2) * 256 + (r & 1) * 32768))
        if r == 1:
            for s3 in range(4): g("v_add_u32 v%d, 0x10000, v%d" % (4 + s3, 4 + s3))
        g("s_waitcnt lgkmcnt(0)")
        prog_set(g, str(2 + r + (1 if r >= 2 else 0)))
        if r == 1:
            sk = g.lab("NOG2")
            g("s_cmp_eq_u32 s%d, 0" % S_G2)
            g("s_cbranch_scc1 " + sk)
            g("s_add_u32 s41, s%d, s%d" % (S_BK, S_G2)); g("s_add_u32 s41, s41, 64")
            wait_landed(g, "s41")
            thin_tile16(g, 7, WQ_T, V_S + 4, V_S, V_Q)
            tag4(g, V_S)
            store_n2(g, V_S + 5, V_S)
            g(sk + ":")
            prog_set(g, "4")
    g.stamp(4)
    g.c("gather q")
    poll(g, ldq, [T, T + 4, V_X], g.sleep_mid, T + 8, pre=True)
    sk = g.lab("NOGL")
    g("s_cmp_eq_u32 s%d, 0" % S_D); g("s_cbranch_scc1 " + sk)
    g("s_cmp_ge_u32 s%d, 2" % S_CW); g("s_cbranch_scc1 " + sk)
    ldg()
    g(sk + ":")
    g("v_lshrrev_b32 v%d, 16, v%d" % (V_X, V_X))
    g("v_cmp_eq_u32 vcc, s%d, v%d" % (S_XCC, V_X))
    g("s_nop 0")
    g("s_cmp_eq_u64 vcc, exec")
    g("s_cselect_b32 s%d, %d, 0" % (S_FAST, 1 if g.fast else 0))
    strip(g, T, 8)
    T4(g, T); T4(g, T + 4)
    g("v_cvt_pk_bf16_f32 v%d, v%d, v%d" % (T, T, T + 4))
    g("s_lshr_b32 s41, s%d, 1" % S_CW); g("s_lshl_b32 s41, s41, 9")
    g("s_and_b32 s42, s%d, 1" % S_CW); g("s_lshl_b32 s42, s42, 8")
    g("s_add_u32 s41, s41, s42"); g("s_add_u32 s41, s41, %d" % QB)
    g("v_lshlrev_b32 v4, 3, v%d" % V_N)
    g("v_lshl_add_u32 v4, v%d, 1, v4" % V_KG)
    g("v_add_u32 v4, s41, v4")
    g("ds_write_b16 v4, v%d" % T)
    g("ds_write_b16_d16_hi v4, v%d offset:128" % T)
    prog_set(g, "7")
    wait_prog_c(g, "7")
    g("v_and_b32 v4, 1, v%d" % V_N)
    g("v_lshlrev_b32 v4, 9, v4")
    g("v_lshl_add_u32 v4, v%d, 4, v4" % V_KG)
    g("v_add_u32 v4, %d, v4" % QB)
    for s in range(8): g("ds_read_b128 v[%d:%d], v4 offset:%d" % (V_Q + 4 * s, V_Q + 4 * s + 3, s * 64))
    g.c("QK")
    for s in range(8):
        g("s_waitcnt lgkmcnt(%d)" % (7 - s))
        for r in range(4):
            g("v_mfma_f32_16x16x32_bf16 v[%d:%d], v[%d:%d], v[%d:%d], %s" % (V_S + 4 * r, V_S + 4 * r + 3, V_K + 32 * r + 4 * s, V_K + 32 * r + 4 * s + 3, V_Q + 4 * s, V_Q + 4 * s + 3, "0" if s == 0 else "v[%d:%d]" % (V_S + 4 * r, V_S + 4 * r + 3)))
    g.stamp(5)
    g.cat = "st"
    g.c("softmax")
    for k in range(0, 16, 2):
        g("v_cvt_pk_bf16_f32 v4, v%d, v%d" % (V_S + k, V_S + k + 1))
        g("v_lshlrev_b32 v%d, 16, v4" % (V_S + k))
        g("v_and_b32 v%d, s%d, v4" % (V_S + k + 1, S_HI))
    g("v_max3_f32 v4, v%d, v%d, v%d" % (V_S, V_S + 1, V_S + 2))
    for k in range(3, 15, 2): g("v_max3_f32 v4, v4, v%d, v%d" % (V_S + k, V_S + k + 1))
    g("v_max_f32 v4, v4, v%d" % (V_S + 15))
    xrow(g, "v_max_f32", [4], 5)
    g("v_and_b32 v6, 1, v%d" % V_N)
    g("v_lshlrev_b32 v6, 4, v6")
    g("v_add_u32 v6, %d, v6" % WM)
    g("s_lshl_b32 s41, s%d, 2" % S_CW)
    g("v_add_u32 v7, s41, v6")
    g("ds_write_b32 v7, v4")
    prog_set(g, "8")
    wait_prog_c(g, "8")
    g("ds_read_b128 v[%d:%d], v6" % (T, T + 3))
    g("s_waitcnt lgkmcnt(0)")
    g("v_max3_f32 v4, v%d, v%d, v%d" % (T, T + 1, T + 2))
    g("v_max_f32 v4, v4, v%d" % (T + 3))
    g("v_mul_f32 v5, s%d, v4" % S_C)
    for k in range(16):
        g("v_fma_f32 v%d, v%d, s%d, -v5" % (V_S + k, V_S + k, S_C))
    for k in range(16): g("v_exp_f32 v%d, v%d" % (V_S + k, V_S + k))
    g("v_add_f32 v8, v%d, v%d" % (V_S, V_S + 1))
    for k in range(2, 16): g("v_add_f32 v8, v8, v%d" % (V_S + k))
    xrow(g, "v_add_f32", [8], 9)
    g("ds_write_b32 v7, v8 offset:%d" % (WL - WM))
    g("v_and_b32 v9, 1, v%d" % V_N)
    g("v_lshlrev_b32 v9, 5, v9")
    g("v_lshl_add_u32 v9, v%d, 3, v9" % V_KG)
    g("v_add_u32 v3, %d, v9" % PB)
    g("s_lshl_b32 s41, s%d, 6" % S_CW)
    g("v_add_u32 v10, s41, v3")
    for r in range(4):
        g("v_cvt_pk_bf16_f32 v%d, v%d, v%d" % (T + 2 * r, V_S + 4 * r, V_S + 4 * r + 1))
        g("v_cvt_pk_bf16_f32 v%d, v%d, v%d" % (T + 2 * r + 1, V_S + 4 * r + 2, V_S + 4 * r + 3))
        g("ds_write_b64 v10, v[%d:%d] offset:%d" % (T + 2 * r, T + 2 * r + 1, r * 256))
    prog_set(g, "9")
    wait_prog_c(g, "9")
    sk = g.lab("NOST")
    g("s_cmp_lg_u32 s%d, 0" % S_CW)
    g("s_cbranch_scc1 " + sk)
    g("ds_read_b128 v[%d:%d], v6 offset:%d" % (T, T + 3, WL - WM))
    g("s_waitcnt lgkmcnt(0)")
    g("v_add_f32 v%d, v%d, v%d" % (T, T, T + 1))
    g("v_add_f32 v%d, v%d, v%d" % (T + 2, T + 2, T + 3))
    g("v_add_f32 v%d, v%d, v%d" % (T + 1, T, T + 2))
    g("v_mov_b32 v%d, v4" % T)
    g("v_mov_b32 v%d, v4" % (T + 2))
    g("v_mov_b32 v%d, v%d" % (T + 3, T + 1))
    tag4(g, T)
    g("s_lshl_b32 s41, s%d, 1" % S_KVH); g("s_add_u32 s41, s41, s%d" % S_B); g("s_lshl_b32 s41, s41, 4"); g("s_add_u32 s41, s41, s%d" % S_J)
    g("s_lshl_b32 s41, s41, 5"); g("s_add_u32 s41, s41, %d" % ST)
    g("v_lshlrev_b32 v5, 4, v0")
    g("v_add_u32 v5, s41, v5")
    g("s_mov_b64 exec, 3")
    g("global_store_dwordx4 v5, v[%d:%d], s[%d:%d] sc1" % (T, T + 3, S_WS, S_WS + 1))
    g("s_mov_b64 exec, -1")
    g(sk + ":")
    g.stamp(6)
    g.cat = "ffn"
    g.c("ffn down partial")
    sk = g.lab("NOFFN")
    g("s_cmp_eq_u32 s%d, 0" % S_D)
    g("s_cbranch_scc1 " + sk)
    sk2 = g.lab("NOH")
    g("s_cmp_ge_u32 s%d, 2" % S_CW)
    g("s_cbranch_scc1 " + sk2)
    poll(g, ldg, [V_G, V_G + 4], g.sleep_mid, T + 8, pre=True)
    strip(g, V_G, 8)
    T4(g, V_G); T4(g, V_G + 4)
    rnd_bf16(g, T, V_G); rnd_bf16(g, T + 4, V_G + 4)
    g("v_mul_f32 v5, v%d, v%d" % (T, T))
    g("v_mov_b32 v6, 0x3d372713")
    g("v_fma_f32 v5, v5, v6, 1.0")
    g("v_mul_f32 v5, v5, v%d" % T)
    g("v_mul_f32 v5, 0xc0135761, v5")
    g("v_exp_f32 v5, v5")
    g("v_add_f32 v5, 1.0, v5")
    g("v_rcp_f32 v5, v5")
    g("v_mul_f32 v5, v5, v%d" % T)
    rnd_bf16(g, 5, 5)
    g("v_mul_f32 v5, v5, v%d" % (T + 4))
    g("v_cvt_pk_bf16_f32 v5, v5, v5")
    g("s_lshl_b32 s41, s%d, 7" % S_CW); g("s_add_u32 s41, s41, %d" % HB)
    g("v_lshlrev_b32 v4, 3, v%d" % V_N)
    g("v_lshl_add_u32 v4, v%d, 1, v4" % V_KG)
    g("v_add_u32 v4, s41, v4")
    g("ds_write_b16 v4, v5")
    g(sk2 + ":")
    prog_set(g, "10")
    if not g.defer_wd:
        part_addr(g, 6, YP, S_DCB, S_DFB)
        g("v_and_b32 v4, 1, v%d" % V_N)
        g("v_lshlrev_b32 v4, 7, v4")
        g("v_lshl_add_u32 v4, v%d, 3, v4" % V_KG)
        g("v_add_u32 v4, %d, v4" % HB)
        wait_prog_c(g, "10")
        wait_landed(g, "s%d" % S_BV)
        thin_tile16(g, 4, WD_T, 4, T + 16, T)
        tag4(g, T + 16)
        store_n2(g, 6, T + 16)
    else:
        wait_prog_c(g, "10")
    g(sk + ":")
    g.stamp(7)
    g.c("tail addresses")
    g("s_lshl_b32 s41, s%d, 1" % S_KVH); g("s_add_u32 s41, s41, s%d" % S_B); g("s_lshl_b32 s41, s41, 4"); g("s_add_u32 s41, s41, s%d" % S_J)
    g("s_lshl_b32 s41, s41, 11")
    g("s_lshl_b32 s42, s%d, 8" % S_CW); g("s_add_u32 s41, s41, s42"); g("s_add_u32 s41, s41, %d" % OP)
    g("v_lshlrev_b32 v%d, 10, v%d" % (A_PUB, V_N))
    g("v_lshl_add_u32 v%d, v%d, 4, v%d" % (A_PUB, V_KG, A_PUB))
    g("v_add_u32 v%d, s41, v%d" % (A_PUB, A_PUB))
    g("v_bfe_u32 v23, v0, 4, 1"); g("v_lshlrev_b32 v23, 10, v23"); g("v_lshl_add_u32 v23, v%d, 4, v23" % V_N); g("v_add_u32 v23, s41, v23")
    g("s_lshl_b32 s41, s%d, 1" % S_KVH); g("s_lshr_b32 s42, s%d, 1" % S_CW); g("s_add_u32 s41, s41, s42"); g("s_lshl_b32 s41, s41, 15")
    g("s_and_b32 s42, s%d, 3" % S_RBL); g("s_lshl_b32 s42, s42, 9"); g("s_add_u32 s41, s41, s42")
    g("s_and_b32 s42, s%d, 1" % S_CW); g("s_lshl_b32 s42, s42, 8"); g("s_add_u32 s41, s41, s42")
    g("s_add_u32 s41, s41, %d" % OP)
    g("v_lshlrev_b32 v%d, 11, v%d" % (A_G0, V_KG))
    g("v_lshl_add_u32 v%d, v%d, 4, v%d" % (A_G0, V_N, A_G0))
    g("v_add_u32 v%d, s41, v%d" % (A_G0, A_G0))
    for u in range(1, 4): g("v_add_u32 v%d, %d, v%d" % (A_G0 + u, 8192 * u, A_G0))
    g("v_lshrrev_b32 v8, 3, v%d" % V_N); g("v_lshlrev_b32 v8, 5, v8")
    g("v_and_b32 v9, 3, v%d" % V_N); g("v_lshl_add_u32 v8, v9, 3, v8")
    g("v_bfe_u32 v9, v%d, 2, 1" % V_N); g("v_lshl_add_u32 v8, v9, 2, v8")
    g("v_add_u32 v8, v8, v%d" % V_KG); g("v_lshlrev_b32 v8, 1, v8")
    g("s_lshr_b32 s41, s%d, 1" % S_CW); g("s_lshl_b32 s41, s41, 8")
    g("s_and_b32 s42, s%d, 1" % S_CW); g("s_lshl_b32 s42, s42, 7"); g("s_add_u32 s41, s41, s42"); g("s_add_u32 s41, s41, %d" % OB)
    g("v_add_u32 v%d, s41, v8" % A_OBW)
    g("v_and_b32 v9, 1, v%d" % V_N); g("v_lshlrev_b32 v9, 8, v9"); g("v_lshl_add_u32 v9, v%d, 4, v9" % V_KG); g("v_add_u32 v%d, %d, v9" % (A_OBR, OB))
    g("s_lshl_b32 s45, s%d, 2" % S_KVH); g("s_add_u32 s45, s45, s%d" % S_RBL); g("s_and_b32 s45, s45, 31")
    g("s_min_u32 s46, s%d, 6" % S_CB)
    part_addr(g, A_SP, SP, 46, 45)
    g("s_lshl_b32 s41, s%d, 10" % S_KVH)
    g("s_lshr_b32 s42, s%d, 1" % S_RBL); g("s_and_b32 s42, s42, 1"); g("s_lshl_b32 s42, s42, 4"); g("s_add_u32 s41, s41, s42")
    g("s_add_u32 s41, s41, %d" % ST)
    g("v_and_b32 v%d, 31, v0" % A_STA)
    g("v_lshlrev_b32 v%d, 5, v%d" % (A_STA, A_STA))
    g("v_add_u32 v%d, s41, v%d" % (A_STA, A_STA))
    if g.spline:
        g("s_min_u32 s47, s%d, 27" % S_F)
        g("s_lshl_b32 s41, s47, 12")
        g("v_lshlrev_b32 v%d, 4, v0" % A_PART)
        g("v_add_u32 v%d, s41, v%d" % (A_PART, A_PART))
        g("v_bfe_u32 v8, v0, 2, 1"); g("v_mul_u32_u24 v8, 448, v8")
        g("v_and_b32 v9, 3, v0"); g("v_lshl_add_u32 v8, v9, 2, v8"); g("v_add_u32 v8, v8, v%d" % V_KG)
        g("s_lshl_b32 s42, s47, 4")
        g("v_add_u32 v8, s42, v8")
        g("v_lshlrev_b32 v%d, 1, v8" % A_OUT)
    else:
        g("s_min_u32 s47, s%d, 27" % S_F)
        g("s_cmp_ge_u32 s47, 14"); g("s_cselect_b32 s42, 1, 0")
        g("s_mul_i32 s43, s42, 14"); g("s_sub_u32 s43, s47, s43")
        g("s_lshr_b32 s44, s43, 1")
        g("s_and_b32 s43, s43, 1")
        g("s_lshl_b32 s41, s44, 1"); g("s_add_u32 s41, s41, s42"); g("s_lshl_b32 s41, s41, 1"); g("s_add_u32 s41, s41, s43"); g("s_lshl_b32 s41, s41, 12")
        g("v_lshlrev_b32 v%d, 4, v0" % A_PART)
        g("v_add_u32 v%d, s41, v%d" % (A_PART, A_PART))
        g("s_mul_i32 s42, s42, 448"); g("s_lshl_b32 s44, s44, 6"); g("s_add_u32 s42, s42, s44"); g("s_lshl_b32 s43, s43, 5"); g("s_add_u32 s42, s42, s43")
        g("v_and_b32 v%d, 7, v0" % A_OUT)
        g("v_lshl_add_u32 v%d, v%d, 2, v%d" % (A_OUT, A_OUT, V_KG))
        g("v_add_u32 v%d, s42, v%d" % (A_OUT, A_OUT))
        g("v_lshlrev_b32 v%d, 1, v%d" % (A_OUT, A_OUT))
    if g.defer_wd:
        part_addr(g, A_YP, YP, S_DCB, S_DFB)
        g("v_and_b32 v%d, 1, v%d" % (A_HB, V_N))
        g("v_lshlrev_b32 v%d, 7, v%d" % (A_HB, A_HB))
        g("v_lshl_add_u32 v%d, v%d, 3, v%d" % (A_HB, V_KG, A_HB))
        g("v_add_u32 v%d, %d, v%d" % (A_HB, HB, A_HB))
    g.cat = "pre"
    g.c("PV")
    g("v_lshrrev_b32 v8, 2, v%d" % V_N)
    g("v_lshl_add_u32 v8, v%d, 2, v8" % V_KG)
    g("v_and_b32 v9, 7, v8")
    g("v_lshlrev_b32 v8, 9, v8")
    g("v_and_b32 v10, 3, v%d" % V_N)
    g("v_lshl_add_u32 v8, v10, 3, v8")
    g("s_lshl_b32 s41, s%d, 2" % S_CW)
    for mt in range(4):
        g("s_add_u32 s42, s41, %d" % mt)
        g("v_xor_b32 v%d, s42, v9" % (4 + mt))
        g("v_lshl_add_u32 v%d, v%d, 5, v8" % (4 + mt, 4 + mt))
    for k in range(16): g("v_mov_b32 v%d, 0" % (V_ACC + k))
    g("s_add_u32 s%d, s%d, 8" % (S_THR, S_BV))
    def pv_body():
        for mt in range(4): g("ds_read_b64_tr_b16 v[%d:%d], v%d" % (T + 2 + 2 * mt, T + 3 + 2 * mt, 4 + mt))
    def pv_mfma():
        for mt in range(4):
            g("s_waitcnt lgkmcnt(%d)" % (3 - mt))
            g("v_mfma_f32_16x16x16_bf16 v[%d:%d], v[%d:%d], v[%d:%d], v[%d:%d]" % (V_ACC + 4 * mt, V_ACC + 4 * mt + 3, T + 2 + 2 * mt, T + 3 + 2 * mt, T, T + 1, V_ACC + 4 * mt, V_ACC + 4 * mt + 3))
    def pv_loop(n):
        g("s_mov_b32 s%d, %d" % (S_CNT, n))
        lp = g.lab("PV")
        g(lp + ":")
        wait_landed(g, "s%d" % S_THR)
        g("ds_read_b64 v[%d:%d], v3" % (T, T + 1))
        pv_body()
        for mt in range(4): g("v_add_u32 v%d, 8192, v%d" % (4 + mt, 4 + mt))
        g("v_add_u32 v3, 64, v3")
        g("s_add_u32 s%d, s%d, 8" % (S_THR, S_THR))
        g("s_sub_u32 s%d, s%d, 1" % (S_CNT, S_CNT))
        pv_mfma()
        g("s_cmp_lg_u32 s%d, 0" % S_CNT)
        g("s_cbranch_scc1 " + lp)
    pv_loop(g.stat_at)
    fin = g.lab("PFIN"); jn = g.lab("PJN")
    g("s_cmp_eq_u32 s%d, 0" % S_O)
    g("s_cbranch_scc1 " + fin)
    gld(g, V_ST, A_STA)
    g(fin + ":")
    if g.ldpre < 0: gld(g, V_G, 23)
    g.stamp(8)
    if g.lastbar:
        pv_loop(15 - g.stat_at)
        g("ds_read_b64 v[%d:%d], v3" % (T, T + 1))
        g("s_waitcnt lgkmcnt(0)")
        g("s_barrier")
        pv_body()
        pv_mfma()
    else:
        pv_loop(16 - g.stat_at)
    g.stamp(9)
    g.cat = "op"
    g.c("publish o")
    for mt in range(4): tag4(g, V_ACC + 4 * mt)
    g("s_mov_b64 exec, s[%d:%d]" % (S_EX, S_EX + 1))
    slow = g.lab("OSLOW"); dn = g.lab("ODONE")
    g("s_cmp_eq_u32 s%d, 0" % S_FAST)
    g("s_cbranch_scc1 " + slow)
    for mt in range(4):
        g("global_store_dwordx4 v%d, v[%d:%d], s[%d:%d] offset:%d" % (A_PUB, V_ACC + 4 * mt, V_ACC + 4 * mt + 3, S_WS, S_WS + 1, mt * 64))
    g("s_branch " + dn)
    g(slow + ":")
    for mt in range(4):
        g("global_store_dwordx4 v%d, v[%d:%d], s[%d:%d] offset:%d sc1" % (A_PUB, V_ACC + 4 * mt, V_ACC + 4 * mt + 3, S_WS, S_WS + 1, mt * 64))
    g(dn + ":")
    g("s_mov_b64 exec, -1")
    g.stamp(10)
    fin = g.lab("FIN2"); end = g.lab("CEND")
    g("s_cmp_eq_u32 s%d, 0" % S_O)
    g("s_cbranch_scc1 " + fin)
    g.cat = "tail"
    g.c("stats")
    lp = g.lab("SL"); ex = g.lab("SX")
    g("s_waitcnt vmcnt(4)")
    g(lp + ":")
    g("v_xor_b32 v57, v%d, v%d" % (V_ST, V_T))
    for k in range(1, 4): g("v_bitop3_b32 v57, v%d, v%d, v57 bitop3:0xBE" % (V_ST + k, V_T + k))
    g("v_and_b32 v57, s%d, v57" % S_MASK)
    g("v_cmp_ne_u32 vcc, 0, v57")
    g("s_cbranch_vccz " + ex)
    budget_exit(g, ex)
    gld(g, V_ST, A_STA)
    g("s_waitcnt vmcnt(0)")
    g("s_branch " + lp)
    g(ex + ":")
    def ldo():
        for u in range(4): gld(g, T + 4 * u, A_G0 + u)
    ldo()
    Z = V_ST
    g("v_and_b32 v%d, s%d, v%d" % (Z, S_HI, Z))
    strip(g, Z + 1, 1)
    g("v_mov_b32 v57, v%d" % Z)
    allreduce16(g, "v_max_f32", [57])
    g("v_sub_f32 v57, v%d, v57" % Z)
    g("v_mul_f32 v57, s%d, v57" % S_C)
    g("v_exp_f32 v57, v57")
    g("v_mul_f32 v58, v57, v%d" % (Z + 1))
    allreduce16(g, "v_add_f32", [58])
    g("v_rcp_f32 v58, v58")
    g("v_mul_f32 v57, v57, v58")
    g("s_lshr_b32 s41, s%d, 1" % S_CW); g("s_lshl_b32 s41, s41, 6")
    g("v_lshlrev_b32 v58, 2, v%d" % V_KG)
    g("v_add_u32 v58, s41, v58")
    for u in range(4):
        g("v_add_u32 v59, %d, v58" % (16 * u))
        g("ds_bpermute_b32 v%d, v59, v57" % (V_C + u))
    if g.defer_wd:
        sk = g.lab("NOYP")
        g("s_cmp_eq_u32 s%d, 0" % S_D)
        g("s_cbranch_scc1 " + sk)
        g("s_add_u32 s41, s%d, 136" % S_BV)
        wait_landed(g, "s41")
        thin_tile16(g, 4, WD_T, A_HB, 192, 160)
        tag4(g, 192)
        store_n2(g, A_YP, 192)
        g(sk + ":")
    g("s_add_u32 s41, s%d, 144" % S_BV)
    if g.defer_wd: g("s_add_u32 s41, s41, s%d" % S_D)
    wait_landed(g, "s41")
    A = V_Q
    for s in range(4):
        g("ds_read_b64_tr_b16 v[%d:%d], v%d offset:%d" % (A + 8 * s, A + 8 * s + 1, V_TR, WO_T + s * 4096))
        g("ds_read_b64_tr_b16 v[%d:%d], v%d offset:%d" % (A + 8 * s + 2, A + 8 * s + 3, V_TR, WO_T + s * 4096 + 2048))
    g.c("gather o")
    if g.selpoll:
        poll_sel(g, [(T + 4 * u, (lambda u=u: gld(g, T + 4 * u, A_G0 + u))) for u in range(4)], g.sleep_tail, T + 16, count=True, first_allow=(1 if g.defer_wd else 0))
    else:
        poll(g, ldo, [T, T + 4, T + 8, T + 12], g.sleep_tail, T + 16, pre=True, count=True)
    g.stamp(12)
    if not g.nostrip: strip(g, T, 16)
    g("s_waitcnt lgkmcnt(0)")
    for k in range(4): g("v_mul_f32 v%d, v%d, v%d" % (T + k, T + k, V_C))
    for u in range(1, 4):
        for k in range(4): g("v_fma_f32 v%d, v%d, v%d, v%d" % (T + k, T + 4 * u + k, V_C + u, T + k))
    T4(g, T)
    g("v_cvt_pk_bf16_f32 v%d, v%d, v%d" % (T, T, T))
    g("ds_write_b16 v%d, v%d" % (A_OBW, T))
    g("s_waitcnt lgkmcnt(0)")
    g("s_barrier")
    g.stamp(13)
    for s in range(4):
        g("ds_read_b128 v[%d:%d], v%d offset:%d" % (A + 8 * s + 4, A + 8 * s + 7, A_OBR, s * 64))
    for s in range(4):
        g("s_waitcnt lgkmcnt(%d)" % (3 - s))
        g("v_mfma_f32_16x16x32_bf16 v[%d:%d], v[%d:%d], v[%d:%d], %s" % (T, T + 3, A + 8 * s, A + 8 * s + 3, A + 8 * s + 4, A + 8 * s + 7, "0" if s == 0 else "v[%d:%d]" % (T, T + 3)))
    tag4(g, T)
    store_n2(g, A_SP, T)
    if g.wbl2:
        sk = g.lab("NOWB")
        g("s_cmp_lg_u32 s%d, 0" % S_CW); g("s_cbranch_scc1 " + sk)
        if g.wbl2 == 1:
            g("s_cmp_lg_u32 s%d, 0" % S_I); g("s_cbranch_scc1 " + sk)
        g("buffer_wbl2 sc1")
        g(sk + ":")
    g.stamp(11)
    g("s_branch " + end)
    g(fin + ":")
    g("s_cmp_lg_u32 s%d, 0" % S_CW); g("s_cbranch_scc1 " + end)
    g("s_cmp_ge_u32 s%d, 28" % S_F); g("s_cbranch_scc1 " + end)
    g("global_load_ushort v11, v%d, s[%d:%d]" % (A_OUT, S_X, S_X + 1))
    g("v_add_u32 v4, %d, v%d" % (YP, A_PART))
    for k in range(4): g("v_mov_b32 v%d, 0" % (T + 12 + k))
    def ld4(last_mask):
        def f():
            for u in range(3): gld(g, T + 4 * u, 4, 1024 * u)
            if last_mask: g("s_mov_b32 exec_hi, 0")
            gld(g, T + 12, 4, 3072)
            if last_mask: g("s_mov_b64 exec, -1")
        return f
    def red32(dst):
        if not g.nostrip: strip(g, T, 16)
        for k in range(4):
            g("v_add_f32 v%d, v%d, v%d" % (T + k, T + k, T + 4 + k))
            g("v_add_f32 v%d, v%d, v%d" % (T + 8 + k, T + 8 + k, T + 12 + k))
        for k in range(4): g("v_add_f32 v%d, v%d, v%d" % (T + k, T + k, T + 8 + k))
        for k in range(4): g("v_add_f32_dpp v%d, v%d, v%d row_ror:8 row_mask:0xf bank_mask:0xf" % (T + k, T + k, T + k))
        T4(g, T)
        rnd_bf16(g, dst, T)
    poll(g, ld4(True), [T, T + 4, T + 8, T + 12], (g.sleep_y if g.defer_wd else g.sleep_mid), T + 16, masked_last=True)
    red32(10)
    g("v_mul_f32 v5, 0xbfb8aa3b, v10")
    g("v_exp_f32 v5, v5")
    g("v_add_f32 v5, 1.0, v5")
    g("v_rcp_f32 v5, v5")
    g("v_mul_f32 v10, v10, v5")
    rnd_bf16(g, 10, 10)
    g("v_lshlrev_b32 v11, 16, v11")
    g("v_add_u32 v4, %d, v%d" % (SP, A_PART))
    g("s_mov_b32 s42, 0x00ff00ff"); g("s_mov_b32 s43, 0x00ff00ff")
    if g.selfin:
        ld4(False)()
        poll_sel(g, [(T + 4 * u, (lambda u=u: gld(g, T + 4 * u, 4, 1024 * u))) for u in range(4)], g.sleep_fin, T + 16, count=True)
    else:
        poll(g, ld4(False), [T, T + 4, T + 8, T + 12], g.sleep_fin, T + 16, count=True)
    g.stamp(12)
    red32(5)
    g("v_mul_f32 v5, v5, v10")
    rnd_bf16(g, 5, 5)
    g("v_add_f32 v5, v5, v11")
    g("v_cvt_pk_bf16_f32 v5, v5, v5")
    g("s_mov_b64 exec, s[42:43]")
    g("global_store_short v%d, v5, s[%d:%d]" % (A_OUT, S_OUT, S_OUT + 1))
    g("s_mov_b64 exec, -1")
    g.stamp(11)
    g("s_cmp_lg_u32 s%d, 0" % S_F); g("s_cbranch_scc1 " + end)
    g("v_mov_b32 v4, 0"); g("v_mov_b32 v5, s%d" % S_E)
    g("s_mov_b64 exec, 1")
    g("global_store_dword v4, v5, s[%d:%d] sc1" % (S_WS, S_WS + 1))
    g("s_mov_b64 exec, -1")
    g(end + ":")
    if g.dbgclk:
        sk = g.lab("NODBG")
        g("s_cmp_lg_u32 s%d, 0" % S_CW); g("s_cbranch_scc1 " + sk)
        g("s_cmp_ge_u32 s%d, 8" % S_F); g("s_cbranch_scc1 " + sk)
        g("s_memtime s[64:65]"); g("s_memrealtime s[66:67]")
        g("s_load_dwordx2 s[100:101], s[0:1], 80")
        g("s_waitcnt lgkmcnt(0)")
        g("s_sub_u32 s64, s64, s96"); g("s_sub_u32 s66, s66, s98")
        g("s_lshl_b32 s41, s%d, 3" % S_F)
        g("v_mov_b32 v4, s41"); g("v_mov_b32 v6, s64"); g("v_mov_b32 v7, s66")
        g("s_mov_b64 exec, 1")
        g("global_store_dwordx2 v4, v[6:7], s[100:101]")
        g("s_mov_b64 exec, -1")
        g(sk + ":")
    if g.stamps: write_stamps(g)
    g("s_endpgm")

def diag_filter(g, lines):
    drop = getattr(g, "drop", None)
    if drop:
        out = []
        for l in lines:
            t = l.strip()
            if "cat=" in t and t.split("cat=")[1].strip() in drop: continue
            if t.startswith("v_cmp_ne_u32 vcc, 0,"):
                out.append("  s_mov_b64 vcc, 0"); continue
            out.append(l)
        return out
    if not getattr(g, "nomem", 0): return lines
    out = []; incomp = False
    for l in lines:
        if l.startswith("L_compute:"): incomp = True
        t = l.strip()
        if incomp and (t.startswith("global_load_dwordx4") and "sc1" in t):
            if g.nomem & 1: continue
        if incomp and t.startswith("global_store") and ("s[24:25]" in t) and "v100" not in t and "v[104:107]" not in t:
            if g.nomem & 2: continue
        if incomp and (g.nomem & 1) and t.startswith("v_cmp_ne_u32 vcc, 0,"):
            out.append("  s_mov_b64 vcc, 0"); continue
        out.append(l)
    return out


DOC = """; ---------------------------------------------------------------------------------------------
;   Stores are write-through (sc1) and loads bypass L1 (sc1); only when a run-time check
; ---------------------------------------------------------------------------------------------
"""

def build(**kw):
    g = G(**kw)
    g("s_cmp_ge_u32 s2, 256")
    g("s_cbranch_scc1 L_exit")
    g.stamp(0)
    if g.dbgclk:
        g("s_memtime s[96:97]"); g("s_memrealtime s[98:99]")
    g("s_load_dwordx8 s[4:11], s[0:1], 0")
    g("s_load_dwordx2 s[12:13], s[0:1], 32")
    g("s_load_dwordx4 s[16:19], s[0:1], 48")
    g("s_load_dwordx4 s[20:23], s[0:1], 64")
    g("s_load_dwordx2 s[24:25], s[0:1], 88")
    g("v_lshrrev_b32 v1, 6, v0")
    g("v_and_b32 v0, 63, v0")
    g("s_and_b32 s%d, s2, 7" % S_KVH)
    g("v_readfirstlane_b32 s%d, v1" % S_WAVE)
    g("s_lshr_b32 s%d, s2, 3" % S_I)
    g("s_lshr_b32 s%d, s%d, 4" % (S_B, S_I))
    g("s_and_b32 s%d, s%d, 15" % (S_J, S_I))
    g("s_cmp_lt_u32 s%d, 28" % S_I)
    g("s_cselect_b32 s%d, 14, 0" % S_G)
    g("s_cselect_b32 s%d, 16, 0" % S_O)
    g("s_cselect_b32 s%d, 8, 0" % S_D)
    g("s_cmp_lt_u32 s%d, 7" % S_KVH)
    g("s_cselect_b32 s%d, s%d, 0" % (S_D, S_D))
    if g.ffnlocal:
        g("s_cselect_b32 s%d, 14, 0" % S_G)
    if g.evenodd:
        g("s_bitcmp1_b32 s2, 0")
        g("s_cselect_b32 s%d, 0, s%d" % (S_G, S_G))
        g("s_mov_b32 s%d, s%d" % (S_G2, S_G))
    else:
        g("s_mov_b32 s%d, 0" % S_G2)
    g("s_add_u32 s%d, s%d, 14" % (S_BK, S_G))
    if g.defer_wd: g("s_mov_b32 s%d, s%d" % (S_BV, S_BK))
    else: g("s_add_u32 s%d, s%d, s%d" % (S_BV, S_BK, S_D))
    g("s_add_u32 s%d, s%d, s%d" % (S_BV, S_BV, S_G2))
    g("s_add_u32 s%d, s%d, 128" % (S_BV, S_BV))
    g("s_mul_i32 s%d, s%d, 37" % (S_RBL, S_I))
    g("s_lshr_b32 s%d, s%d, 8" % (S_RBL, S_RBL))
    g("s_mul_i32 s41, s%d, 7" % S_RBL)
    g("s_sub_u32 s%d, s%d, s41" % (S_CB, S_I))
    if g.ffnlocal:
        g("s_lshr_b32 s41, s%d, 3" % S_I); g("s_lshl_b32 s42, s%d, 2" % S_KVH)
        g("s_add_u32 s%d, s41, s42" % S_GFB); g("s_and_b32 s%d, s%d, 7" % (S_GSL, S_I))
        g("s_add_u32 s%d, s42, s%d" % (S_DFB, S_RBL)); g("s_mov_b32 s%d, s%d" % (S_DCB, S_CB))
    else:
        g("s_mov_b32 s%d, s%d" % (S_GFB, S_I)); g("s_mov_b32 s%d, s%d" % (S_GSL, S_KVH))
        g("s_mov_b32 s%d, s%d" % (S_DFB, S_I)); g("s_mov_b32 s%d, s%d" % (S_DCB, S_KVH))
    g("s_lshl_b32 s%d, s%d, 2" % (S_F, S_KVH))
    g("s_add_u32 s%d, s%d, s%d" % (S_F, S_F, S_I))
    g("s_sub_u32 s%d, s%d, 28" % (S_F, S_F))
    g("s_mov_b32 s%d, %d" % (S_BUD, 1 << 21))
    g("s_mov_b32 s%d, 0xC0000000" % S_LAND)
    if g.stamps:
        for k in range(1, 16): g("s_mov_b64 s[%d:%d], 0" % (64 + 2 * k, 65 + 2 * k))
    g("s_cmp_eq_u32 s%d, 0" % S_WAVE)
    g("s_cbranch_scc0 L_compute")
    loader(g)
    g("L_compute:")
    compute(g)
    g("L_exit:")
    g("s_endpgm")
    lines = hz.fix(diag_filter(g, g.l))
    name = KN + "_kernel"
    s = HDR + "; @launch grid=(256,1,1) block=(320,1,1) lds=%d\n" % LDS_BYTES
    s += DOC
    s += '.amdgcn_target "amdgcn-amd-amdhsa--gfx950"\n.text\n.globl %s\n.p2align 8\n.type %s,@function\n%s:\n' % (name, name, name)
    s += "\n".join(lines) + "\n"
    s += '.section .rodata,"a"\n.p2align 6\n.amdhsa_kernel %s\n' % name
    s += "  .amdhsa_next_free_vgpr 256\n  .amdhsa_next_free_sgpr 102\n  .amdhsa_accum_offset 256\n"
    s += "  .amdhsa_group_segment_fixed_size 0\n  .amdhsa_kernarg_size 96\n  .amdhsa_user_sgpr_count 2\n"
    s += "  .amdhsa_user_sgpr_kernarg_segment_ptr 1\n  .amdhsa_system_sgpr_workgroup_id_x 1\n"
    s += "  .amdhsa_float_denorm_mode_32 3\n"
    s += ".end_amdhsa_kernel\n"
    return s

if __name__ == "__main__":
    ap = argparse.ArgumentParser()
    ap.add_argument("-o", default="k.s")
    ap.add_argument("--stamps", action="store_true")
    ap.add_argument("--set", action="append", default=[])
    a = ap.parse_args()
    kw = {x.split("=")[0]: (int(x.split("=")[1]) if x.split("=")[1].lstrip("-").isdigit() else x.split("=")[1].split(",")) for x in a.set}
    open(a.o, "w").write(build(stamps=a.stamps, **kw))
```
